```python
import torch

def _softmax(x, axis=-1):
    return torch.softmax(x, dim=axis)
def _gelu(x):
    return torch.nn.functional.gelu(x, approximate="tanh")
def _silu(x):
    return torch.nn.functional.silu(x)
def _sigmoid(x):
    return torch.sigmoid(x)
def _layernorm(x, axis=-1, eps=1e-5):
    m = x.mean(dim=axis, keepdim=True)
    v = x.var(dim=axis, keepdim=True, unbiased=False)
    return (x - m) / torch.sqrt(v + eps)
def _scatter_add(tgt, idx, src, axis=0):
    return tgt.clone().index_add_(axis, idx, src)
def _segment_sum(src, seg, n):
    out = torch.zeros((n,) + src.shape[1:], dtype=src.dtype)
    return out.index_add_(0, seg, src)
def _pad(x, pw):
    flat = tuple(v for pair in reversed(pw) for v in pair)
    return torch.nn.functional.pad(x, flat)

kernel_name = 'parallel_sum__gqa_block_cached__mixer_token_mlp__decode'

def setup_inputs():

    _w = (lambda a: (lambda t: t.to(torch.bfloat16) if t.is_floating_point() else t)(torch.as_tensor(a)))
    def _A_setup():
        B, Sq, D = 1, 1, 512
        Hq, Hkv, Sk, Dh = 32, 8, 32768, 128
        assert Hq % Hkv == 0, (Hq, Hkv)
        return {
            "x": _w((lambda *s: torch.randn(*s, dtype=torch.bfloat16) * 0.05)(B, Sq, D)),
            "k_cache": _w((lambda *s: torch.randn(*s, dtype=torch.bfloat16) * 3.2)(B, Hkv, Sk, Dh)),
            "v_cache": _w((lambda *s: torch.randn(*s, dtype=torch.bfloat16) * 1.6)(B, Hkv, Sk, Dh)),
            "wq": _w((lambda *s: torch.randn(*s, dtype=torch.bfloat16) * 3.2)(D, Hq * Dh) * (D ** -0.5)),
            "wo": _w((lambda *s: torch.randn(*s, dtype=torch.bfloat16) * 1.6)(Hq * Dh, D) * ((Hq * Dh) ** -0.5)),
        }
    _A_in = _A_setup()

    def _B_setup():
        B, S, D, F = 1, 1, 512, 1792
        return {
            "x": _w((lambda *s: torch.randn(*s, dtype=torch.bfloat16) * 0.05)(B, S, D)),
            "w1": _w((lambda *s: torch.randn(*s, dtype=torch.bfloat16) * 1.6)(S, F) * (S ** -0.5)),
            "b1": _w((lambda *s: torch.randn(*s, dtype=torch.bfloat16) * 1.6)(F) * 0.02),
            "w2": _w((lambda *s: torch.randn(*s, dtype=torch.bfloat16) * 1.6)(F, S) * (F ** -0.5)),
            "b2": _w((lambda *s: torch.randn(*s, dtype=torch.bfloat16) * 1.6)(S) * 0.02),
        }
    _B_in = _B_setup()

    return {
        "A_x": _A_in["x"],
        "A_k_cache": _A_in["k_cache"],
        "A_v_cache": _A_in["v_cache"],
        "A_wq": _A_in["wq"],
        "A_wo": _A_in["wo"],
        "B_x": _B_in["x"],
        "B_w1": _B_in["w1"],
        "B_b1": _B_in["b1"],
        "B_w2": _B_in["w2"],
        "B_b2": _B_in["b2"],
    }

def reference(A_x, A_k_cache, A_v_cache, A_wq, A_wo, B_x, B_w1, B_b1, B_w2, B_b2):
    def _A_ref(x, k_cache, v_cache, wq, wo):
        B, Sq, D = x.shape
        Hq, Dh = 32, 128
        Hkv = k_cache.shape[1]
        rep = Hq // Hkv
        q = (lambda x, *d: x.permute(*d))((x @ wq).reshape(B, Sq, Hq, Dh), 0, 2, 1, 3)
        k = (lambda x, n, axis: torch.repeat_interleave(x, n, dim=axis))(k_cache, rep, axis=1)
        v = (lambda x, n, axis: torch.repeat_interleave(x, n, dim=axis))(v_cache, rep, axis=1)
        scores = torch.einsum("bhqd,bhkd->bhqk", q, k) * (Dh ** -0.5)
        p = _softmax(scores, axis=-1)
        o = torch.einsum("bhqk,bhkd->bhqd", p, v)
        return (lambda x, *d: x.permute(*d))(o, 0, 2, 1, 3).reshape(B, Sq, Hq * Dh) @ wo

    def _B_ref(x, w1, b1, w2, b2):
        B, S, D = x.shape
        h = _layernorm(x, axis=-1)
        u = torch.einsum("bsd,sf->bdf", h, w1) + b1
        u = _gelu(u)
        y = torch.einsum("bdf,fs->bds", u, w2) + b2
        return (lambda x, *d: x.permute(*d))(y, 0, 2, 1)

    x = A_x
    xn = _layernorm(x, axis=-1)
    return x + _A_ref(xn, A_k_cache, A_v_cache, A_wq, A_wo) + _B_ref(xn, B_w1, B_b1, B_w2, B_b2)
```

```python
import re

REG = re.compile(r'^(-|abs\()?([vas])(?:(\d+)|\[(\d+):(\d+)\])\)?$')
TRANS = ('v_exp_f32', 'v_log_f32', 'v_rcp_f32', 'v_rsq_f32', 'v_sqrt_f32', 'v_sin_f32', 'v_cos_f32')


def regs_of(tok):
    tok = tok.strip()
    if tok == 'vcc':
        return {('s', 'vcc')}
    if tok in ('exec', 'exec_lo', 'exec_hi'):
        return {('s', 'exec')}
    if tok == 'm0':
        return {('s', 'm0')}
    m = REG.match(tok)
    if not m:
        return set()
    k = m.group(2)
    if m.group(3) is not None:
        return {(k, int(m.group(3)))}
    return {(k, i) for i in range(int(m.group(4)), int(m.group(5)) + 1)}


class Ins:
    def __init__(self, text):
        self.text = text
        t = text.split(';')[0].strip()
        parts = t.split(None, 1)
        self.op = parts[0]
        rest = parts[1] if len(parts) > 1 else ''
        ops = []
        cur = ''
        depth = 0
        for ch in rest:
            if ch in '[(':
                depth += 1
            if ch in '])':
                depth -= 1
            if ch == ',' and depth == 0:
                ops.append(cur.strip())
                cur = ''
            else:
                cur += ch
        if cur.strip():
            ops.append(cur.strip())
        mods = ''
        if ops:
            l = ops[-1].split(None, 1)
            ops[-1] = l[0]
            mods = l[1] if len(l) > 1 else ''
        self.ops = ops
        self.mods = mods
        op = self.op
        self.kind = None
        self.dst = set()
        self.src = set()
        self.srcC = set()
        self.srcAB = set()
        self.ws = 1
        self.dpp = ('_dpp' in op) or ('row_' in mods) or ('quad_perm' in mods)
        R = [regs_of(o) for o in ops]
        if op == 's_nop':
            self.kind = 'nop'
            self.ws = int(ops[0]) + 1
        elif op.startswith('v_mfma'):
            self.kind = 'mfma'
            self.dst = R[0]
            self.srcAB = R[1] | R[2]
            self.srcC = R[3]
            self.src = self.srcAB | self.srcC
        elif op.startswith('v_'):
            self.kind = 'valu'
            if op.startswith('v_permlane') and 'swap' in op:
                self.dst = R[0] | R[1]
                self.src = R[0] | R[1]
            else:
                self.dst = R[0]
                for r in R[1:]:
                    self.src |= r
                if op.startswith(('v_fmac', 'v_dot2c', 'v_pk_fmac')) or self.dpp:
                    self.src |= R[0]
                if op.startswith('v_cndmask') and len(ops) == 3:
                    self.src |= {('s', 'vcc')}
        elif op.startswith('buffer_') or op.startswith('global_'):
            self.kind = 'vmem'
            self.lds = ' lds' in (' ' + mods) or 'load_lds' in op
            self.store = 'store' in op or 'atomic' in op
            if op.startswith('buffer_'):
                if self.lds:
                    for r in R:
                        self.src |= r
                    self.src |= {('s', 'm0')}
                elif self.store:
                    self.data = R[0]
                    for r in R:
                        self.src |= r
                    if 'sc0' in mods and 'atomic' in op:
                        self.dst = R[0]
                else:
                    self.dst = R[0]
                    for r in R[1:]:
                        self.src |= r
            else:
                if self.store:
                    if 'atomic' in op and 'sc0' in mods:
                        self.dst = R[0]
                        self.data = R[2]
                        for r in R[1:]:
                            self.src |= r
                    else:
                        self.data = R[1]
                        for r in R:
                            self.src |= r
                else:
                    self.dst = R[0]
                    for r in R[1:]:
                        self.src |= r
            self.wide = self.store and ('x3' in op or 'x4' in op)
        elif op.startswith('ds_'):
            self.kind = 'ds'
            if op.startswith('ds_read') or 'rtn' in op or 'permute' in op or 'swizzle' in op:
                self.dst = R[0]
                for r in R[1:]:
                    self.src |= r
            else:
                for r in R:
                    self.src |= r
        elif op.startswith(('s_load', 's_memrealtime', 's_memtime', 's_atomic', 's_buffer_load')):
            self.kind = 'smem'
            self.dst = R[0]
            for r in R[1:]:
                self.src |= r
        elif op.startswith('s_'):
            self.kind = 'salu'
            if op.startswith(('s_cmp', 's_bitcmp', 's_cbranch', 's_branch', 's_waitcnt', 's_barrier', 's_endpgm', 's_sleep', 's_setprio')):
                for r in R:
                    self.src |= r
            else:
                self.dst = R[0] if R else set()
                for r in R[1:]:
                    self.src |= r
                if 'saveexec' in op:
                    self.dst = self.dst | {('s', 'exec')}
        else:
            raise ValueError('unknown instr ' + text)
        self.trans = op.split('_e')[0] in TRANS or op in TRANS
        self.dot = op.startswith('v_dot')
        self.perml = op.startswith('v_permlane')
        self.rdlane = op.startswith(('v_readlane', 'v_readfirstlane'))


def vec(rs):
    return {r for r in rs if r[0] in 'va'}


def sca(rs):
    return {r for r in rs if r[0] == 's'}


def need(p, c):
    n = 0
    if p.kind == 'valu':
        pv = vec(p.dst)
        ps = sca(p.dst)
        if pv:
            if c.kind == 'valu' and pv & c.src:
                if c.dpp or c.perml:
                    n = max(n, 2)
                if c.rdlane:
                    n = max(n, 1)
                if p.trans:
                    n = max(n, 1)
            if c.kind == 'mfma' and pv & c.src:
                n = max(n, 2)
            if p.dot:
                if c.kind in ('valu', 'mfma', 'vmem', 'ds') and pv & (c.src | c.dst):
                    base = lambda o: o.replace('_dpp', '')
                    if c.kind == 'valu' and c.dot and base(c.op) == base(p.op):
                        ab = set()
                        for o in c.ops[1:3]:
                            ab |= regs_of(o)
                        if pv & ab:
                            n = max(n, 3)
                    else:
                        n = max(n, 3)
        if ps:
            if c.kind == 'valu' and ps & c.src:
                n = max(n, 4 if c.op.startswith(('v_readlane', 'v_writelane')) else 2)
            if c.kind == 'vmem' and ps & c.src:
                n = max(n, 5)
            assert ('s', 'exec') not in ps, 'VALU exec writes not modelled'
    elif p.kind == 'mfma':
        d = p.dst
        if c.kind == 'mfma':
            if d & c.srcAB:
                n = max(n, 8)
            if d & c.srcC:
                if not (c.srcC == d and c.op == p.op):
                    n = max(n, 6)
            elif d & c.dst:
                n = max(n, 8)
        elif c.kind in ('valu', 'vmem', 'ds') and d & (c.src | c.dst):
            n = max(n, 8)
        if c.kind == 'valu' and p.srcC & c.dst:
            n = max(n, 3)
    elif p.kind == 'salu':
        if ('s', 'm0') in p.dst and c.kind == 'vmem' and c.lds:
            n = max(n, 1)
    elif p.kind == 'vmem':
        if p.wide and p.data & c.dst:
            n = max(n, 2 if c.kind in ('valu', 'mfma') else 1)
    return n


class Asm:
    def __init__(self):
        self.lines = []
        self.hist = []
        self.vm = 0
        self.vm_done = 0
        self.lg = 0
        self.lg_done = 0
        self.smem_out = False
        self.cond = 0
        self.nins = 0

    def raw(self, s):
        self.lines.append(s)

    def comment(self, s):
        self.lines.append('; ' + s)

    def label(self, name):
        self.lines.append(name + ':')

    def __call__(self, text):
        c = Ins(text)
        d = 0
        pad = 0
        for p in reversed(self.hist):
            n = need(p, c)
            if n - d > pad:
                pad = n - d
            d += p.ws
            if d >= 10:
                break
        if pad > 0:
            nop = Ins('s_nop %d' % (pad - 1))
            self.lines.append('  ' + nop.text)
            self.hist.append(nop)
            self.nins += 1
        self.lines.append('  ' + text)
        self.hist.append(c)
        self.hist = self.hist[-16:]
        self.nins += 1
        if c.kind == 'vmem':
            if self.cond == 0:
                self.vm += 1
            return self.vm
        if c.kind == 'ds':
            self.lg += 1
            return self.lg
        if c.kind == 'smem':
            self.smem_out = True
        return None

    def settle(self, n=9):
        self('s_nop %d' % (n - 1))

    def wait_vm(self, tok, force=False):
        if tok <= self.vm_done and not force:
            return
        n = min(self.vm - tok, 63)
        self('s_waitcnt vmcnt(%d)' % n)
        self.vm_done = max(self.vm_done, self.vm - n)

    def wait_vm0(self):
        self('s_waitcnt vmcnt(0)')
        self.vm_done = self.vm

    def wait_lg(self, tok=None):
        if tok is None or self.smem_out:
            self('s_waitcnt lgkmcnt(0)')
            self.lg_done = self.lg
            self.smem_out = False
            return
        if tok <= self.lg_done:
            return
        n = min(self.lg - tok, 15)
        self('s_waitcnt lgkmcnt(%d)' % n)
        self.lg_done = max(self.lg_done, self.lg - n)

    def text(self):
        return '\n'.join(self.lines) + '\n'


class VAlloc:
    def __init__(self, start=0, limit=256):
        self.next = start
        self.limit = limit
        self.free = []
        self.names = {}

    def __call__(self, n=1, align=None, name=None):
        if align is None:
            align = 1 if n == 1 else (2 if n == 2 else 4)
        b = (self.next + align - 1) // align * align
        self.next = b + n
        assert self.next <= self.limit, 'out of VGPRs'
        if name:
            self.names[name] = b
        return b


def vr(b, n=1):
    return 'v%d' % b if n == 1 else 'v[%d:%d]' % (b, b + n - 1)


def ar(b, n=1):
    return 'a%d' % b if n == 1 else 'a[%d:%d]' % (b, b + n - 1)


def sr(b, n=1):
    return 's%d' % b if n == 1 else 's[%d:%d]' % (b, b + n - 1)
```

```python
import sys, math, struct
from asmlib import *

KN = "parallel_sum__gqa_block_cached__mixer_token_mlp__decode_kernel"
REF = "parallel_sum__gqa_block_cached__mixer_token_mlp__decode.s.ref"


def f32(x):
    return '0x%08x' % struct.unpack('<I', struct.pack('<f', x))[0]


WS_EPOCH = 0
WS_Q = 0x1000
WS_PART = 0x100000
WS_OUTP = 0x200000
WS_STAMP = 0x300000
WS_SIZE = 0x400000
L_K = 0
L_WQ = 131072
L_RED = L_WQ
L_XN = 147456
L_QP = L_XN + 1024
L_ML = L_QP + 256
L_YP = L_ML + 128
LDS_BYTES = 149504
SPIN = 4000
LOG2E = 1.4426950408889634


def gen(W0=6, W=4, mapping='mod', stamps=False, nv_pre=3, qpoll_after=2, dbg=None, wo_pos='afterK', prefetch=True):
    a = Asm()
    hdr = [l for l in open(REF).read().split('\n') if l.startswith(';') and '@launch' not in l]
    for l in hdr:
        a.raw(l)
    a.raw('; @launch grid=(256,1,1) block=(256,1,1) lds=%d' % LDS_BYTES)
    a.raw('.amdgcn_target "amdgcn-amd-amdhsa--gfx950"')
    a.raw('.text')
    a.raw('.globl ' + KN)
    a.raw('.p2align 8')
    a.raw('.type %s,@function' % KN)
    a.label(KN)

    sW = 3
    pX, pK, pV, pWQ, pWO, pW1, pB1, pW2, pB2, pOUT, pWS = 4, 6, 8, 10, 12, 16, 18, 20, 22, 24, 28
    rK, rV, rWQ, rWO, rWS, rW1, rB1, rW2 = 32, 36, 40, 44, 48, 52, 56, 60
    sG, sC, sP, sJ = 64, 65, 66, 67
    sKL = 68
    sT0, sT1, sT2 = 69, 70, 71
    sOff = 72
    sCnt = 73
    sQg, sPub = 74, 75
    sPC = 76
    sC0, sC1 = 78, 79
    sST = 80
    nst = [0]

    def stamp():
        if stamps:
            assert nst[0] < 10
            a('s_memrealtime %s' % sr(sST + 2 * nst[0], 2))
            nst[0] += 1

    va = VAlloc(1)
    vL = va(); vTag = va(); vT16 = va(); vT4 = va()
    vKo = va(4); vKa = va(4); vVo = va(2); vSel = va(4)
    vM = va(); vLs = va(); vY = va(2); vXp = va(); vB2 = va(); vJunk = va(); vTmp = va(8, 4)
    vZ = va(32, 4)
    vQ = va(32, 4)
    vKf = va(32, 4)
    vS = va(64, 4)
    vAS = va(8, 4)
    vO = va(8, 4)
    vWt = va(8, 4)
    vX = vZ; vXf = vZ + 4; vW1 = vZ + 12; vB1 = vZ + 16; vW2 = vZ + 20; vH = vZ + 24
    vWOr = vZ; vWOp = vZ + 16

    def rnd(d, s):
        a('v_cvt_pk_bf16_f32 v%d, 0, %s' % (d, s if isinstance(s, str) else 'v%d' % s))

    def allred(regs, op, tmps, bits=(0, 1, 2, 3, 4, 5)):
        for b in bits:
            if b < 4:
                for r in regs:
                    a('v_%s_dpp v%d, v%d, v%d row_ror:%d row_mask:0xf bank_mask:0xf' % (op, r, r, r, 1 << b))
            else:
                for r, t in zip(regs, tmps):
                    a('v_mov_b32 v%d, v%d' % (t, r))
                for r, t in zip(regs, tmps):
                    a('v_permlane%d_swap_b32 v%d, v%d' % (16 if b == 4 else 32, r, t))
                for r, t in zip(regs, tmps):
                    a('v_%s v%d, v%d, v%d' % (op, r, r, t))

    a('s_cmp_lt_u32 s2, 256')
    a('s_cbranch_scc1 L_go')
    a('s_endpgm')
    a.label('L_go')
    stamp()
    a('s_load_dwordx16 s[4:19], s[0:1], 0')
    a('s_load_dwordx8 s[20:27], s[0:1], 64')
    a('s_load_dwordx2 s[28:29], s[0:1], 96')
    a('v_lshrrev_b32 v%d, 6, v0' % vTmp)
    a('v_and_b32 v%d, 63, v0' % vL)
    a('v_readfirstlane_b32 s%d, v%d' % (sW, vTmp))
    if prefetch:
        a('s_getpc_b64 %s' % sr(sPC, 2))
        a.label('L_pc')
        a('s_lshr_b32 s%d, s2, 3' % sT0)
        a('s_and_b32 s%d, s%d, 3' % (sT0, sT0))
        a('s_lshl_b32 s%d, s%d, 2' % (sT0, sT0))
        a('s_add_u32 s%d, s%d, s%d' % (sT0, sT0, sW))
        a('s_lshl_b32 s%d, s%d, 10' % (sT0, sT0))
        a('v_and_b32 v%d, 7, v0' % (vTmp + 1))
        a('v_lshlrev_b32 v%d, 7, v%d' % (vTmp + 1, vTmp + 1))
        a('v_add_u32 v%d, s%d, v%d' % (vTmp + 1, sT0, vTmp + 1))
        a('v_min_u32 v%d, L_codeend-L_pc-4, v%d' % (vTmp + 1, vTmp + 1))
        a('global_load_dword v%d, v%d, %s' % (vJunk, vTmp + 1, sr(sPC, 2)))
    if mapping == 'mod':
        a('s_and_b32 s%d, s2, 7' % sG)
        a('s_lshr_b32 s%d, s2, 3' % sC)
        a('s_lshl_b32 s%d, s%d, 5' % (sP, sG))
        a('s_add_u32 s%d, s%d, s%d' % (sP, sP, sC))
        a('s_mov_b32 s%d, s%d' % (sJ, sP))
    else:
        a('s_lshr_b32 s%d, s2, 5' % sG)
        a('s_and_b32 s%d, s2, 31' % sC)
        a('s_and_b32 s%d, s2, 7' % sP)
        a('s_lshl_b32 s%d, s%d, 5' % (sP, sP))
        a('s_lshr_b32 s%d, s2, 3' % sT0)
        a('s_add_u32 s%d, s%d, s%d' % (sP, sP, sT0))
        a('s_mov_b32 s%d, s2' % sJ)
    i15, ks = vTmp + 2, vTmp + 3
    a('v_and_b32 v%d, 15, v%d' % (i15, vL))
    a('v_lshrrev_b32 v%d, 4, v%d' % (ks, vL))
    a('v_xor_b32 v%d, v%d, v%d' % (vTmp + 4, i15, ks))
    a('v_lshlrev_b32 v%d, 4, v%d' % (vTmp + 4, vTmp + 4))
    a('v_lshl_add_u32 v%d, v%d, 8, v%d' % (vKo, ks, vTmp + 4))
    for j in range(1, 4):
        a('v_xor_b32 v%d, 0x%x, v%d' % (vKo + j, j << 6, vKo))
    vWq = vTmp + 5
    a('v_lshrrev_b32 v%d, 1, v%d' % (vWq, vL))
    a('v_lshlrev_b32 v%d, 13, v%d' % (vWq, vWq))
    a('v_and_b32 v%d, 1, v%d' % (vTmp + 6, vL))
    a('v_lshl_add_u32 v%d, v%d, 4, v%d' % (vWq, vTmp + 6, vWq))
    a('v_lshlrev_b32 v%d, 4, v%d' % (vTmp + 6, vL))
    a('v_mov_b32 v%d, 0' % (vTmp + 7))
    a('s_lshl_b32 s%d, s%d, 23' % (sT0, sG))
    a('s_lshl_b32 s%d, s%d, 18' % (sT1, sC))
    a('s_add_u32 s%d, s%d, s%d' % (sT0, sT0, sT1))
    a('s_lshl_b32 s%d, s%d, 13' % (sT1, sW))
    a('s_add_u32 s%d, s%d, s%d' % (sT0, sT0, sT1))
    a('s_lshl_b32 s%d, s%d, 20' % (sT1, sW))
    a('s_lshl_b32 s%d, s%d, 5' % (sT2, sP))
    a('s_add_u32 s%d, s%d, s%d' % (sT1, sT1, sT2))
    a('s_lshl_b32 s%d, s%d, 15' % (sKL, sW))
    a('s_lshl_b32 s%d, s%d, 12' % (sT2, sW))
    a('s_add_u32 m0, s%d, %d' % (sT2, L_WQ))
    a('s_mov_b32 s%d, 0xfe020' % (rWQ + 2))
    a('s_mov_b32 s%d, 0x20000' % (rWQ + 3))
    a('s_mov_b32 s%d, 0x3a000' % (rK + 2))
    a('s_mov_b32 s%d, 0x20000' % (rK + 3))
    a.wait_lg()
    stamp()
    tX = a('global_load_dwordx4 %s, v%d, %s' % (vr(vX, 4), vTmp + 6, sr(pX, 2)))
    tE = a('global_load_dword v%d, v%d, %s sc1' % (vTag, vTmp + 7, sr(pWS, 2)))
    a('s_add_u32 s%d, s%d, s%d' % (rWQ, pWQ, sT1))
    a('s_addc_u32 s%d, s%d, 0' % (rWQ + 1, pWQ + 1))
    a('s_add_u32 s%d, s%d, s%d' % (rK, pK, sT0))
    a('s_addc_u32 s%d, s%d, 0' % (rK + 1, pK + 1))
    for j in range(4):
        if j:
            a('s_mov_b32 s%d, 0x%x' % (sOff, j * (262144 - 1024)))
        tWQ = a('buffer_load_dwordx4 v%d, %s, %s offen offset:%d nt lds' % (vWq, sr(rWQ, 4), 's%d' % sOff if j else '0', j * 1024))

    unit_tok = []

    def issueK(t, half):
        a('s_add_u32 m0, s%d, %d' % (sKL, (t % 4) * 8192 + half * 4096))
        a('s_mov_b32 s%d, 0x%x' % (sOff, t * 32768 + half * 4096))
        for j in range(4):
            tok = a('buffer_load_dwordx4 v%d, %s, s%d offen offset:%d nt lds' % (vKo + j, sr(rK, 4), sOff, j * 1024))
        return tok

    vtok = {}

    def issueV(t, half):
        if half == 0:
            a('s_mov_b32 s%d, 0x%x' % (sOff, t * 32768))
        else:
            a('s_mov_b32 s%d, 0x%x' % (sOff, t * 32768))
        for r in range(4):
            tok = a('buffer_load_dwordx4 %s, v%d, %s, s%d offen offset:%d nt' % (ar(t * 32 + half * 16 + r * 4, 4), vVo + half, sr(rV, 4), sOff, r * 256))
            vtok[(t, half, r)] = tok
        return tok

    def issueWO():
        for r in range(16):
            if r % 4 == 0 and r:
                a('s_mov_b32 s%d, %d' % (sOff, r * 1024))
            tok = a('buffer_load_dword v%d, v%d, %s, %s offen offset:%d nt' % (vWOr + r, vT4, sr(rWO, 4), 's%d' % sOff if r >= 4 else '0', (r % 4) * 1024))
        return tok

    tok = {}

    def unit(name, win):
        n = len(unit_tok)
        if n - win >= 0:
            a.wait_vm(unit_tok[n - win])
        a.comment('unit ' + name)
        if name == 'WO':
            t = issueWO()
        else:
            t = (issueK if name[0] == 'K' else issueV)(int(name[1]), 0 if name[2] == 'a' else 1)
        unit_tok.append(t)
        tok[name] = t

    seq = []
    for t in range(4):
        seq += ['K%da' % t, 'K%db' % t]
    for t in range(nv_pre):
        seq += ['V%da' % t, 'V%db' % t]
    for t in range(4, 8):
        seq += ['K%da' % t, 'K%db' % t]
    seq += ['WO']
    for t in range(nv_pre, 8):
        seq += ['V%da' % t, 'V%db' % t]
    pos = [0]

    def nxt(win=None):
        unit(seq[pos[0]], W if win is None else win)
        pos[0] += 1

    for _ in range(W0):
        nxt(99)
    a('s_mov_b32 s%d, 0x3a000' % (rV + 2))
    a('s_mov_b32 s%d, 0x20000' % (rV + 3))
    a('s_add_u32 s%d, s%d, s%d' % (rV, pV, sT0))
    a('s_addc_u32 s%d, s%d, 0' % (rV + 1, pV + 1))
    a('v_lshlrev_b32 v%d, 4, v0' % vT16)
    a('v_lshlrev_b32 v%d, 2, v0' % vT4)
    for r, p in ((rW1, pW1), (rB1, pB1), (rW2, pW2)):
        a('s_mov_b32 s%d, s%d' % (r, p))
        a('s_mov_b32 s%d, s%d' % (r + 1, p + 1))
        a('s_mov_b32 s%d, 3584' % (r + 2))
        a('s_mov_b32 s%d, 0x20000' % (r + 3))
    a('s_lshl_b32 s%d, s%d, 2' % (sT1, sP))
    a('v_mov_b32 v%d, s%d' % (vXp, sT1))
    for r, v in ((rW1, vW1), (rB1, vB1), (rW2, vW2)):
        a('buffer_load_dwordx4 %s, v%d, %s, 0 offen' % (vr(v, 4), vT16, sr(r, 4)))
    a('global_load_ushort v%d, v%d, %s' % (vB2, vTmp + 7, sr(pB2, 2)))
    tSmall = a('global_load_dword v%d, v%d, %s' % (vXp, vXp, sr(pX, 2)))
    a('s_mov_b32 s%d, s%d' % (rWS, pWS))
    a('s_mov_b32 s%d, s%d' % (rWS + 1, pWS + 1))
    a('s_mov_b32 s%d, 0x%x' % (rWS + 2, WS_SIZE))
    a('s_mov_b32 s%d, 0x20000' % (rWS + 3))
    a('s_lshl_b32 s%d, s%d, 14' % (sT1, sJ))
    a('s_add_u32 s%d, s%d, s%d' % (rWO, pWO, sT1))
    a('s_addc_u32 s%d, s%d, 0' % (rWO + 1, pWO + 1))
    a('s_mov_b32 s%d, 16384' % (rWO + 2))
    a('s_mov_b32 s%d, 0x20000' % (rWO + 3))
    a('v_lshlrev_b32 v%d, 4, v%d' % (vVo, i15))
    a('v_lshl_add_u32 v%d, v%d, 10, v%d' % (vVo, ks, vVo))
    a('v_add_u32 v%d, 4096, v%d' % (vVo + 1, vVo))
    a('v_lshl_add_u32 v%d, v%d, 8, v%d' % (vKa, i15, vTmp + 4))
    a('v_add_u32 v%d, s%d, v%d' % (vKa, sKL, vKa))
    for j in range(1, 4):
        a('v_xor_b32 v%d, 0x%x, v%d' % (vKa + j, j << 6, vKa))
    vTr, vXb, vXw = vWt, vWt + 1, vWt + 2
    a('s_lshl_b32 s%d, s%d, 12' % (sT1, sW))
    a('s_add_u32 s%d, s%d, %d' % (sT1, sT1, L_WQ))
    a('v_lshlrev_b32 v%d, 3, v%d' % (vTr, i15))
    a('v_lshl_add_u32 v%d, v%d, 8, v%d' % (vTr, ks, vTr))
    a('v_add_u32 v%d, s%d, v%d' % (vTr, sT1, vTr))
    a('s_lshl_b32 s%d, s%d, 8' % (sT1, sW))
    a('s_add_u32 s%d, s%d, %d' % (sT1, sT1, L_XN))
    a('v_lshlrev_b32 v%d, 4, v%d' % (vXb, ks))
    a('v_add_u32 v%d, s%d, v%d' % (vXb, sT1, vXb))
    a('v_add_u32 v%d, %d, v%d' % (vXw, L_XN, vTmp + 6))
    vQw, vQo = vWt + 3, vWt + 4
    a('s_lshl_b32 s%d, s%d, 6' % (sT1, sW))
    a('s_add_u32 s%d, s%d, %d' % (sT1, sT1, L_QP))
    a('v_lshlrev_b32 v%d, 4, v%d' % (vQw, ks))
    a('v_add_u32 v%d, s%d, v%d' % (vQw, sT1, vQw))
    a('v_bfe_u32 v%d, v%d, 2, 2' % (vQo, vL))
    a('v_lshlrev_b32 v%d, 9, v%d' % (vQo, vQo))
    a('v_lshl_add_u32 v%d, v%d, 5, v%d' % (vQo, ks, vQo))
    a('s_lshl_b32 s%d, s%d, 11' % (sQg, sG))
    a('s_add_u32 s%d, s%d, 0x%x' % (sQg, sQg, WS_Q))
    e = vTmp
    a('v_and_b32 v%d, 3, v%d' % (e, vL))
    a('s_mov_b32 s%d, 0x0c0c0c0c' % sC0)
    for k, (ev0, lo) in enumerate(((0, 0x0100), (2, 0x0100), (0, 0x0302), (2, 0x0302))):
        a('v_mov_b32 v%d, s%d' % (vSel + k, sC0))
        a('v_mov_b32 v%d, 0x%08x' % (vTmp + 1, 0x0c0c0000 | lo))
        a('v_cmp_eq_u32 vcc, %d, v%d' % (ev0, e))
        a('v_cndmask_b32 v%d, v%d, v%d, vcc' % (vSel + k, vSel + k, vTmp + 1))
        a('v_mov_b32 v%d, 0x%08x' % (vTmp + 1, (lo << 16) | 0x0c0c))
        a('v_cmp_eq_u32 vcc, %d, v%d' % (ev0 + 1, e))
        a('v_cndmask_b32 v%d, v%d, v%d, vcc' % (vSel + k, vSel + k, vTmp + 1))

    def unpack(dst, src, n):
        for i in range(n):
            a('v_lshlrev_b32 v%d, 16, v%d' % (dst + 2 * i, src + i))
            a('v_and_b32 v%d, 0xffff0000, v%d' % (dst + 2 * i + 1, src + i))

    def ln_stats(xf, t):
        s, tm = t + 8, t + 9
        a('v_add_f32 v%d, v%d, v%d' % (t, xf, xf + 1))
        a('v_add_f32 v%d, v%d, v%d' % (t + 1, xf + 2, xf + 3))
        a('v_add_f32 v%d, v%d, v%d' % (t + 2, xf + 4, xf + 5))
        a('v_add_f32 v%d, v%d, v%d' % (t + 3, xf + 6, xf + 7))
        a('v_add_f32 v%d, v%d, v%d' % (t, t, t + 1))
        a('v_add_f32 v%d, v%d, v%d' % (t + 2, t + 2, t + 3))
        a('v_add_f32 v%d, v%d, v%d' % (s, t, t + 2))
        allred([s], 'add_f32', [tm])
        a('v_mul_f32 v%d, %s, v%d' % (s, f32(1 / 512), s))
        for i in range(8):
            a('v_sub_f32 v%d, v%d, v%d' % (t + i, xf + i, s))
        rnd(s, s)
        a('v_mul_f32 v%d, v%d, v%d' % (t, t, t))
        a('v_mul_f32 v%d, v%d, v%d' % (t + 1, t + 1, t + 1))
        for i in range(2, 8):
            a('v_fmac_f32 v%d, v%d, v%d' % (t + (i & 1), t + i, t + i))
        a('v_add_f32 v%d, v%d, v%d' % (t, t, t + 1))
        allred([t], 'add_f32', [tm])
        a('v_mul_f32 v%d, %s, v%d' % (t, f32(1 / 512), t))
        rnd(t, t)
        a('v_add_f32 v%d, %s, v%d' % (t, f32(1e-5), t))
        rnd(t, t)
        a('v_sqrt_f32 v%d, v%d' % (t, t))
        rnd(t, t)
        a('v_rcp_f32 v%d, v%d' % (t, t))
        return s, t

    a.wait_vm(tE)
    a('s_mov_b32 s%d, 1664525' % sC0)
    a('v_mul_lo_u32 v%d, v%d, s%d' % (vTag, vTag, sC0))
    a('v_add_u32 v%d, 1013904223, v%d' % (vTag, vTag))
    unpack(vXf, vX, 4)
    T = vKf
    mb, rc = ln_stats(vXf, T)
    for i in range(8):
        a('v_sub_f32 v%d, v%d, v%d' % (vXf + i, vXf + i, mb))
    for i in range(8):
        rnd(vXf + i, vXf + i)
    for i in range(8):
        a('v_mul_f32 v%d, v%d, v%d' % (vXf + i, vXf + i, rc))
    for i in range(4):
        a('v_cvt_pk_bf16_f32 v%d, v%d, v%d' % (vX + i, vXf + 2 * i, vXf + 2 * i + 1))
    a('ds_write_b128 v%d, %s' % (vXw, vr(vX, 4)))
    a.wait_lg()
    for t in range(4):
        a('ds_read_b128 %s, v%d offset:%d' % (vr(vKf + 16 + 4 * t, 4), vXb, t * 64))
    a.wait_vm(tWQ)
    stamp()
    lt = []
    for t in range(4):
        a('ds_read_b64_tr_b16 %s, v%d offset:%d' % (vr(vKf + 4 * t, 2), vTr, t * 1024))
        lt.append(a('ds_read_b64_tr_b16 %s, v%d offset:%d' % (vr(vKf + 4 * t + 2, 2), vTr, t * 1024 + 128)))
    for t in range(4):
        a.wait_lg(lt[t])
        a('v_mfma_f32_16x16x32_bf16 %s, %s, %s, %s' % (vr(vAS, 4), vr(vKf + 4 * t, 4), vr(vKf + 16 + 4 * t, 4), '0' if t == 0 else vr(vAS, 4)))
    vQr = vTr
    a('s_lshl_b32 s%d, s%d, 4' % (sT1, sW))
    a('s_add_u32 s%d, s%d, %d' % (sT2, sT1, L_QP))
    a('v_mov_b32 v%d, s%d' % (vQr, sT2))
    a('s_lshl_b32 s%d, s%d, 6' % (sPub, sP))
    a('s_add_u32 s%d, s%d, s%d' % (sPub, sPub, sT1))
    a('s_add_u32 s%d, s%d, 0x%x' % (sPub, sPub, WS_Q))
    a('s_mov_b32 exec_lo, 0x00010001')
    a('s_mov_b32 exec_hi, 0x00010001')
    a('ds_write_b128 v%d, %s' % (vQw, vr(vAS, 4)))
    a('s_mov_b64 exec, -1')
    a.wait_lg()
    a('s_barrier')
    for w in range(4):
        a('ds_read_b128 %s, v%d offset:%d' % (vr(vKf + 4 * w, 4), vQr, w * 64))
    a.wait_lg()
    for i in range(4):
        a('v_add_f32 v%d, v%d, v%d' % (vKf + i, vKf + i, vKf + 4 + i))
        a('v_add_f32 v%d, v%d, v%d' % (vKf + 8 + i, vKf + 8 + i, vKf + 12 + i))
    for i in range(4):
        a('v_add_f32 v%d, v%d, v%d' % (vKf + i, vKf + i, vKf + 8 + i))
    G = vKf + 16
    a('v_cvt_pk_bf16_f32 v%d, v%d, v%d' % (G + 2, vKf, vKf + 1))
    a('v_cvt_pk_bf16_f32 v%d, v%d, v%d' % (G + 3, vKf + 2, vKf + 3))
    a('v_bitop3_b32 v%d, v%d, v%d, v%d bitop3:0x96' % (G, G + 2, G + 3, vTag))
    for i in (1, 4, 5):
        a('v_mov_b32 v%d, v%d' % (G + i, G))
    a('s_mov_b64 exec, 1')
    a('s_bitcmp1_b32 s%d, 0' % sW)
    a('s_cbranch_scc1 L_qodd')
    a('buffer_store_dwordx4 %s, off, %s, s%d sc1' % (vr(G, 4), sr(rWS, 4), sPub))
    a('s_branch L_qpub')
    a.label('L_qodd')
    a.cond += 1
    a('buffer_store_dwordx4 %s, off, %s, s%d sc1' % (vr(G + 2, 4), sr(rWS, 4), sPub))
    a.cond -= 1
    a.label('L_qpub')
    a('s_mov_b64 exec, -1')
    stamp()

    def ln2():
        unpack(vXf, vX, 4)
        a('s_lshl_b32 s%d, s%d, 2' % (sT1, sP))
        a('s_add_u32 s%d, s%d, %d' % (sT1, sT1, L_XN))
        a('v_mov_b32 v%d, s%d' % (vH, sT1))
        a('ds_read_b32 v%d, v%d' % (vH + 2, vH))
        mb, rc = ln_stats(vXf, T)
        a.wait_lg()
        unpack(vH, vH + 2, 1)
        for i in range(2):
            a('v_sub_f32 v%d, v%d, v%d' % (vH + i, vH + i, mb))
        for i in range(2):
            rnd(vH + i, vH + i)
        for i in range(2):
            a('v_mul_f32 v%d, v%d, v%d' % (vH + i, vH + i, rc))
        for i in range(2):
            rnd(vH + i, vH + i)
        a('v_mov_b32 v%d, 0' % vY)
        a('v_mov_b32 v%d, 0' % (vY + 1))

    c0 = -2.0 * math.sqrt(2.0 / math.pi) * LOG2E
    c1 = c0 * 0.044715

    def gelu_chunk(k):
        wf, bf_, u, tt = T, T + 2, T + 4, T + 8
        unpack(wf, vW1 + k, 1)
        unpack(bf_, vB1 + k, 1)
        a('s_mov_b32 s%d, %s' % (sC0, f32(c0)))
        a('v_mov_b32 v%d, %s' % (T + 12, f32(c1)))
        for c in range(2):
            for i in range(2):
                a('v_mul_f32 v%d, v%d, v%d' % (u + 2 * c + i, vH + c, wf + i))
        for i in range(4):
            rnd(u + i, u + i)
        for i in range(4):
            a('v_add_f32 v%d, v%d, v%d' % (u + i, u + i, bf_ + (i & 1)))
        for i in range(4):
            rnd(u + i, u + i)
        for i in range(4):
            a('v_mul_f32 v%d, v%d, v%d' % (tt + i, u + i, u + i))
        for i in range(4):
            a('v_fma_f32 v%d, v%d, v%d, s%d' % (tt + i, tt + i, T + 12, sC0))
        for i in range(4):
            a('v_mul_f32 v%d, v%d, v%d' % (tt + i, tt + i, u + i))
        for i in range(4):
            a('v_exp_f32 v%d, v%d' % (tt + i, tt + i))
        for i in range(4):
            a('v_add_f32 v%d, 1.0, v%d' % (tt + i, tt + i))
        for i in range(4):
            a('v_rcp_f32 v%d, v%d' % (tt + i, tt + i))
        for i in range(4):
            a('v_mul_f32 v%d, v%d, v%d' % (u + i, u + i, tt + i))
        for c in range(2):
            a('v_cvt_pk_bf16_f32 v%d, v%d, v%d' % (tt + c, u + 2 * c, u + 2 * c + 1))
        for c in range(2):
            a('v_dot2c_f32_bf16 v%d, v%d, v%d' % (vY + c, tt + c, vW2 + k))

    def y_finish():
        allred([vY, vY + 1], 'add_f32', [T, T + 1])
        a('s_lshl_b32 s%d, s%d, 3' % (sT1, sW))
        a('s_add_u32 s%d, s%d, %d' % (sT1, sT1, L_YP))
        a('v_mov_b32 v%d, s%d' % (T, sT1))
        a('s_mov_b64 exec, 1')
        a('ds_write_b64 v%d, %s' % (T, vr(vY, 2)))
        a('s_mov_b64 exec, -1')

    def q_loads():
        for t in range(4):
            for h in range(2):
                tk = a('buffer_load_dwordx4 %s, v%d, %s, s%d offen offset:%d sc1' % (vr(vQ + t * 8 + h * 4, 4), vQo, sr(rWS, 4), sQg, t * 128 + h * 16))
        return tk

    def q_check():
        acc = vTmp
        for t in range(4):
            b = vQ + t * 8
            a('v_bitop3_b32 v%d, v%d, v%d, v%d bitop3:0x96' % (b + 1, b, b + 2, b + 3))
            a('v_bitop3_b32 v%d, v%d, v%d, v%d bitop3:0x96' % (b + 7, b + 4, b + 5, b + 6))
        for t in range(4):
            b = vQ + t * 8
            a('v_xor_b32 v%d, v%d, v%d' % (b + 1, b + 1, vTag))
            a('v_xor_b32 v%d, v%d, v%d' % (b + 7, b + 7, vTag))
        a('v_or3_b32 v%d, v%d, v%d, v%d' % (acc, vQ + 1, vQ + 7, vQ + 9))
        a('v_or3_b32 v%d, v%d, v%d, v%d' % (acc, acc, vQ + 15, vQ + 17))
        a('v_or3_b32 v%d, v%d, v%d, v%d' % (acc, acc, vQ + 23, vQ + 25))
        a('v_or_b32 v%d, v%d, v%d' % (acc, acc, vQ + 31))
        a('v_cmp_ne_u32 vcc, 0, v%d' % acc)

    SCALE = float(struct.unpack('<f', struct.pack('<f', 128 ** -0.5))[0])

    def qk(t):
        a.wait_vm(tok['K%db' % t])
        lt = {}
        for g in range(2):
            for k in range(4):
                lt[g, k] = a('ds_read_b128 %s, v%d offset:%d' % (vr(vKf + g * 16 + k * 4, 4), vKa + k, (t % 4) * 8192 + g * 4096))
        for g in range(2):
            for k in range(4):
                a.wait_lg(lt[g, k])
                a('v_mfma_f32_16x16x32_bf16 %s, %s, %s, %s' % (vr(vAS + 4 * g, 4), vr(vKf + g * 16 + k * 4, 4), vr(vQ + k * 8 + 2, 4), '0' if k == 0 else vr(vAS + 4 * g, 4)))
        S = vS + t * 8
        a('s_mov_b32 s%d, %s' % (sC0, f32(SCALE)))
        for i in range(8):
            rnd(S + i, vAS + i)
        for i in range(8):
            a('v_mul_f32 v%d, s%d, v%d' % (S + i, sC0, S + i))
        for i in range(8):
            rnd(S + i, S + i)
        if t == 0:
            a('v_max3_f32 v%d, v%d, v%d, v%d' % (vM, S, S + 1, S + 2))
            a('v_max3_f32 v%d, v%d, v%d, v%d' % (vM, vM, S + 3, S + 4))
            a('v_max3_f32 v%d, v%d, v%d, v%d' % (vM, vM, S + 5, S + 6))
            a('v_max_f32 v%d, v%d, v%d' % (vM, vM, S + 7))
        else:
            for i in range(4):
                a('v_max3_f32 v%d, v%d, v%d, v%d' % (vM, vM, S + 2 * i, S + 2 * i + 1))

    def sm_max():
        allred([vM], 'max_f32', [vTmp], bits=(4, 5))
        a('v_mul_f32 v%d, %s, v%d' % (vM, f32(LOG2E), vM))
        a('v_mov_b32 v%d, 0' % vLs)
        a('v_mov_b32 v%d, 0' % (vTmp + 1))

    def sm_exp(t):
        S = vS + t * 8
        a('s_mov_b32 s%d, %s' % (sC0, f32(LOG2E)))
        for i in range(8):
            a('v_fma_f32 v%d, v%d, s%d, -v%d' % (S + i, S + i, sC0, vM))
        for i in range(8):
            a('v_exp_f32 v%d, v%d' % (S + i, S + i))
        for i in range(4):
            a('v_add_f32 v%d, v%d, v%d' % (vLs, vLs, S + 2 * i))
            a('v_add_f32 v%d, v%d, v%d' % (vTmp + 1, vTmp + 1, S + 2 * i + 1))
        for i in range(4):
            a('v_cvt_pk_bf16_f32 v%d, v%d, v%d' % (S + i, S + 2 * i, S + 2 * i + 1))

    def sm_fin():
        a('v_add_f32 v%d, v%d, v%d' % (vLs, vLs, vTmp + 1))
        allred([vLs], 'add_f32', [vTmp], bits=(4, 5))
        a('s_lshl_b32 s%d, s%d, 3' % (sT1, sW))
        a('s_add_u32 s%d, s%d, %d' % (sT1, sT1, L_ML))
        a('v_lshlrev_b32 v%d, 3, v%d' % (vTmp, vL))
        a('v_add_u32 v%d, s%d, v%d' % (vTmp, sT1, vTmp))
        a('s_mov_b64 exec, 0x1111')
        a('ds_write_b64 v%d, %s' % (vTmp, vr(vM, 2)))
        a('s_mov_b64 exec, -1')

    def p_prep(t):
        P = vKf + (t & 1) * 16
        S = vS + t * 8
        for g in range(2):
            for r in range(4):
                pk = S + g * 2 + (r >> 1)
                sl = vSel + (r & 1) * 2
                a('v_perm_b32 v%d, v%d, v%d, v%d' % (P + g * 8 + r * 2, pk, pk, sl))
                a('v_perm_b32 v%d, v%d, v%d, v%d' % (P + g * 8 + r * 2 + 1, pk, pk, sl + 1))

    def pv(t, fine=False):
        P = vKf + (t & 1) * 16
        if not fine:
            a.wait_vm(tok['V%db' % t])
        for g in range(2):
            for r in range(4):
                if fine:
                    a.wait_vm(vtok[(t, g, r)])
                for hf in range(2):
                    first = (t == 0 and g == 0 and r == 0)
                    a('v_mfma_f32_16x16x16_bf16 %s, %s, %s, %s' % (vr(vO + 4 * hf, 4), vr(P + g * 8 + r * 2, 2), ar(t * 32 + g * 16 + r * 4 + hf * 2, 2), '0' if first else vr(vO + 4 * hf, 4)))

    assert vLs == vM + 1 and vM % 2 == 0, (vM, vLs)
    chunks = [lambda: (a.wait_vm(tSmall), ln2())] + [lambda k=k: gelu_chunk(k) for k in range(4)] + [y_finish]
    npre = 8 + 2 * nv_pre
    tQ = None
    while pos[0] < npre:
        nxt()
        if pos[0] == 8 + qpoll_after:
            tQ = q_loads()
            stamp()
        if chunks:
            chunks.pop(0)()
    while chunks:
        chunks.pop(0)()
    a.wait_vm(tQ)
    q_check()
    a('s_cbranch_vccnz L_qretry')
    a.label('L_qok')
    stamp()
    for t in range(4):
        qk(t)
        nxt()
        nxt()
    for t in range(4, 8):
        k = seq.index('K%db' % t)
        while pos[0] < len(seq) and pos[0] - W < k:
            nxt()
        qk(t)
    stamp()
    work = [sm_max] + [lambda t=t: (sm_exp(t), sm_exp(t + 1)) for t in range(0, 8, 2)] + [sm_fin]

    def wo_pair():
        a.wait_vm(tok['WO'])
        a('s_mov_b32 s%d, 0x05040100' % sC0)
        a('s_mov_b32 s%d, 0x07060302' % sC1)
        for k in range(8):
            a('v_perm_b32 v%d, v%d, v%d, s%d' % (vWOp + k, vWOr + 2 * k + 1, vWOr + 2 * k, sC0))
            a('v_perm_b32 v%d, v%d, v%d, s%d' % (vWOp + 8 + k, vWOr + 2 * k + 1, vWOr + 2 * k, sC1))
    done_pv = 0
    while pos[0] < len(seq) or work:
        for _ in range(2):
            if work:
                work.pop(0)()
        if not work:
            while done_pv < 7 and ('V%db' % done_pv) in tok and tok['V%db' % done_pv] <= a.vm_done:
                p_prep(done_pv)
                pv(done_pv)
                done_pv += 1
        if pos[0] < len(seq):
            nxt()
    wo_pair()
    a.wait_lg()
    a('s_barrier')
    vA = vTmp
    a('s_lshl_b32 s%d, s%d, 5' % (sT1, sW))
    a('s_add_u32 s%d, s%d, %d' % (sT1, sT1, L_ML))
    a('v_mov_b32 v%d, s%d' % (vA, sT1))
    ML = vQ
    a('ds_read_b128 %s, v%d' % (vr(ML, 4), vA))
    a('ds_read_b128 %s, v%d offset:16' % (vr(ML + 4, 4), vA))
    a('v_mov_b32 v%d, %d' % (vA + 1, L_YP))
    a('ds_read_b128 %s, v%d' % (vr(ML + 8, 4), vA + 1))
    a('ds_read_b128 %s, v%d offset:16' % (vr(ML + 12, 4), vA + 1))
    vRw, vRr, vPo, vOo = vKo, vKo + 1, vKo + 2, vKo + 3
    a('s_lshl_b32 s%d, s%d, 11' % (sT1, sW))
    a('s_add_u32 s%d, s%d, %d' % (sT1, sT1, L_RED))
    a('v_lshlrev_b32 v%d, 5, v%d' % (vRw, vL))
    a('v_add_u32 v%d, s%d, v%d' % (vRw, sT1, vRw))
    a('v_lshlrev_b32 v%d, 3, v0' % vRr)
    a('v_add_u32 v%d, %d, v%d' % (vRr, L_RED, vRr))
    a('v_lshrrev_b32 v%d, 3, v%d' % (vPo, vL))
    a('v_lshlrev_b32 v%d, 12, v%d' % (vPo, vPo))
    a('v_and_b32 v%d, 7, v%d' % (vOo, vL))
    a('v_lshl_add_u32 v%d, v%d, 4, v%d' % (vPo, vOo, vPo))
    a('v_lshlrev_b32 v%d, 12, v%d' % (vOo, vL))
    a('s_lshl_b32 s%d, s%d, 5' % (sPub, sG))
    a('s_add_u32 s%d, s%d, s%d' % (sPub, sPub, sC))
    a('s_lshl_b32 s%d, s%d, 12' % (sPub, sPub))
    a('s_add_u32 s%d, s%d, 0x%x' % (sPub, sPub, WS_PART))
    sGa = 64 + 40 - 12
    sGa = 52
    a('s_lshr_b32 s%d, s%d, 5' % (sT1, sJ))
    a('s_lshl_b32 s%d, s%d, 17' % (sT1, sT1))
    a('s_and_b32 s%d, s%d, 31' % (sT2, sJ))
    a('s_lshl_b32 s%d, s%d, 7' % (sT2, sT2))
    a('s_add_u32 s%d, s%d, s%d' % (sT1, sT1, sT2))
    for jj in range(4):
        a('s_add_u32 s%d, s%d, 0x%x' % (sGa + jj, sT1, WS_PART + jj * 32768))
    a('s_lshl_b32 s%d, s%d, 4' % (sT1, sP))
    for jj in range(4):
        a('s_add_u32 s%d, s%d, 0x%x' % (sGa + 4 + jj, sT1, WS_OUTP + jj * 262144))
    a('s_lshl_b32 s%d, s%d, 12' % (sT1, sJ))
    a('s_add_u32 s%d, s%d, 0x%x' % (sGa + 8, sT1, WS_OUTP))
    a.wait_lg()
    Mx = vWt + 4
    a('v_max3_f32 v%d, v%d, v%d, v%d' % (Mx, ML, ML + 2, ML + 4))
    a('v_max_f32 v%d, v%d, v%d' % (Mx, Mx, ML + 6))
    for w in range(4):
        a('v_sub_f32 v%d, v%d, v%d' % (vWt + w, ML + 2 * w, Mx))
    for w in range(4):
        a('v_exp_f32 v%d, v%d' % (vWt + w, vWt + w))
    Ls = vWt + 5
    a('v_mul_f32 v%d, v%d, v%d' % (Ls, vWt, ML + 1))
    for w in range(1, 4):
        a('v_fmac_f32 v%d, v%d, v%d' % (Ls, vWt + w, ML + 2 * w + 1))
    a('v_rcp_f32 v%d, v%d' % (vWt + 6, Ls))
    a('v_log_f32 v%d, v%d' % (Ls, Ls))
    for w in range(4):
        a('v_mul_f32 v%d, v%d, v%d' % (vWt + w, vWt + w, vWt + 6))
    GP = vTmp + 4
    a('v_add_f32 v%d, v%d, v%d' % (GP + 2, Mx, Ls))
    a('v_xor_b32 v%d, v%d, v%d' % (GP + 3, GP + 2, vTag))
    for c in range(2):
        a('v_add_f32 v%d, v%d, v%d' % (ML + 8 + c, ML + 8 + c, ML + 10 + c))
        a('v_add_f32 v%d, v%d, v%d' % (ML + 12 + c, ML + 12 + c, ML + 14 + c))
    a('v_lshlrev_b32 v%d, 16, v%d' % (vB2, vB2))
    for c in range(2):
        a('v_add_f32 v%d, v%d, v%d' % (vY + c, ML + 8 + c, ML + 12 + c))
    for c in range(2):
        rnd(vY + c, vY + c)
    for c in range(2):
        a('v_add_f32 v%d, v%d, v%d' % (vY + c, vY + c, vB2))
    for c in range(2):
        rnd(vY + c, vY + c)
    vXu = vWt + 6
    unpack(vXu, vXp, 1)
    while done_pv < 8:
        p_prep(done_pv)
        pv(done_pv, fine=(done_pv >= 6))
        done_pv += 1
    stamp()
    a('ds_write_b128 v%d, %s' % (vRw, vr(vO, 4)))
    a('ds_write_b128 v%d, %s offset:16' % (vRw, vr(vO + 4, 4)))
    a.wait_lg()
    a('s_barrier')
    R = vQ
    lt = [a('ds_read_b64 %s, v%d offset:%d' % (vr(R + 2 * w, 2), vRr, w * 2048)) for w in range(4)]
    for w in range(4):
        a.wait_lg(lt[w])
        for c in range(2):
            if w == 0:
                a('v_mul_f32 v%d, v%d, v%d' % (GP + c, vWt, R + c))
            else:
                a('v_fmac_f32 v%d, v%d, v%d' % (GP + c, vWt + w, R + 2 * w + c))
    a('v_bitop3_b32 v%d, v%d, v%d, v%d bitop3:0x96' % (GP + 3, GP + 3, GP, GP + 1))
    a('buffer_store_dwordx4 %s, v%d, %s, s%d offen sc1' % (vr(GP, 4), vT16, sr(rWS, 4), sPub))
    stamp()
    a('s_mov_b32 s%d, 0' % sCnt)
    a.label('L_pg')
    Gq = vQ
    for jj in range(4):
        a('buffer_load_dwordx4 %s, v%d, %s, s%d offen sc1' % (vr(Gq + 4 * jj, 4), vPo, sr(rWS, 4), sGa + jj))
    a.wait_vm0()
    C = vQ + 16
    for jj in range(4):
        b = Gq + 4 * jj
        a('v_bitop3_b32 v%d, v%d, v%d, v%d bitop3:0x96' % (C + jj, b, b + 1, b + 2))
    for jj in range(4):
        b = Gq + 4 * jj
        a('v_bitop3_b32 v%d, v%d, v%d, v%d bitop3:0x96' % (C + jj, C + jj, b + 3, vTag))
    a('v_or3_b32 v%d, v%d, v%d, v%d' % (C, C, C + 1, C + 2))
    a('v_or_b32 v%d, v%d, v%d' % (C, C, C + 3))
    a('v_cmp_ne_u32 vcc, 0, v%d' % C)
    a('s_cbranch_vccz L_pok')
    a('s_add_u32 s%d, s%d, 1' % (sCnt, sCnt))
    a('s_cmp_lt_u32 s%d, %d' % (sCnt, SPIN))
    a('s_cbranch_scc1 L_pg')
    a.label('L_pok')
    stamp()
    Mx = C + 4
    a('v_max3_f32 v%d, v%d, v%d, v%d' % (Mx, Gq + 2, Gq + 6, Gq + 10))
    a('v_max_f32 v%d, v%d, v%d' % (Mx, Mx, Gq + 14))
    allred([Mx], 'max_f32', [C + 5], bits=(3, 4, 5))
    for jj in range(4):
        a('v_sub_f32 v%d, v%d, v%d' % (C + jj, Gq + 4 * jj + 2, Mx))
    for jj in range(4):
        a('v_exp_f32 v%d, v%d' % (C + jj, C + jj))
    A0, A1, Wt = C + 8, C + 9, C + 10
    a('v_mul_f32 v%d, v%d, v%d' % (A0, C, Gq))
    a('v_mul_f32 v%d, v%d, v%d' % (A1, C, Gq + 1))
    a('v_add_f32 v%d, v%d, v%d' % (Wt, C, C + 1))
    for jj in range(1, 4):
        a('v_fmac_f32 v%d, v%d, v%d' % (A0, C + jj, Gq + 4 * jj))
        a('v_fmac_f32 v%d, v%d, v%d' % (A1, C + jj, Gq + 4 * jj + 1))
        if jj > 1:
            a('v_add_f32 v%d, v%d, v%d' % (Wt, Wt, C + jj))
    allred([Wt, A0, A1], 'add_f32', [C, C + 1, C + 2], bits=(3, 4, 5))
    a('v_rcp_f32 v%d, v%d' % (Wt, Wt))
    GO = vTmp
    for i in range(4):
        a('v_mov_b32 v%d, 0' % (GO + i))
    a('v_mul_f32 v%d, v%d, v%d' % (A0, A0, Wt))
    a('v_mul_f32 v%d, v%d, v%d' % (A1, A1, Wt))
    a('v_cvt_pk_bf16_f32 v%d, v%d, v%d' % (A0, A0, A1))
    for k in range(8):
        for c in range(2):
            a('v_dot2c_f32_bf16_dpp v%d, v%d, v%d row_newbcast:%d row_mask:0xf bank_mask:0xf' % (GO + c + 2 * (k & 1), A0, vWOp + 8 * c + k, k))
    a('v_add_f32 v%d, v%d, v%d' % (GO, GO, GO + 2))
    a('v_add_f32 v%d, v%d, v%d' % (GO + 1, GO + 1, GO + 3))
    a('v_bitop3_b32 v%d, v%d, v%d, v%d bitop3:0x96' % (GO + 2, GO, GO + 1, vTag))
    a('buffer_store_dwordx4 %s, v%d, %s, s%d offen sc1' % (vr(GO, 4), vT16, sr(rWS, 4), sGa + 8))
    stamp()
    a('s_cmp_lg_u32 s%d, 0' % sW)
    a('s_cbranch_scc1 L_fin')
    a('s_mov_b32 s%d, 0' % sCnt)
    a.label('L_og')
    for jj in range(4):
        a('buffer_load_dwordx4 %s, v%d, %s, s%d offen sc1' % (vr(Gq + 4 * jj, 4), vOo, sr(rWS, 4), sGa + 4 + jj))
    a.wait_vm0()
    for jj in range(4):
        b = Gq + 4 * jj
        a('v_bitop3_b32 v%d, v%d, v%d, v%d bitop3:0x96' % (C + jj, b, b + 1, b + 2))
    for jj in range(4):
        a('v_xor_b32 v%d, v%d, v%d' % (C + jj, C + jj, vTag))
    a('v_or3_b32 v%d, v%d, v%d, v%d' % (C, C, C + 1, C + 2))
    a('v_or_b32 v%d, v%d, v%d' % (C, C, C + 3))
    a('v_cmp_ne_u32 vcc, 0, v%d' % C)
    a('s_cbranch_vccz L_ook')
    a('s_add_u32 s%d, s%d, 1' % (sCnt, sCnt))
    a('s_cmp_lt_u32 s%d, %d' % (sCnt, SPIN))
    a('s_cbranch_scc1 L_og')
    a.label('L_ook')
    for c in range(2):
        a('v_add_f32 v%d, v%d, v%d' % (Gq + c, Gq + c, Gq + 4 + c))
        a('v_add_f32 v%d, v%d, v%d' % (Gq + 8 + c, Gq + 8 + c, Gq + 12 + c))
    for c in range(2):
        a('v_add_f32 v%d, v%d, v%d' % (Gq + c, Gq + c, Gq + 8 + c))
    allred([Gq, Gq + 1], 'add_f32', [C, C + 1])
    for c in range(2):
        rnd(Gq + c, Gq + c)
    for c in range(2):
        a('v_add_f32 v%d, v%d, v%d' % (Gq + c, Gq + c, vXu + c))
    for c in range(2):
        rnd(Gq + c, Gq + c)
    for c in range(2):
        a('v_add_f32 v%d, v%d, v%d' % (Gq + c, Gq + c, vY + c))
    a('v_cvt_pk_bf16_f32 v%d, v%d, v%d' % (Gq, Gq, Gq + 1))
    a('s_lshl_b32 s%d, s%d, 2' % (sT1, sP))
    a('v_mov_b32 v%d, s%d' % (Gq + 1, sT1))
    a('s_mov_b64 exec, 1')
    a('global_store_dword v%d, v%d, %s' % (Gq + 1, Gq, sr(pOUT, 2)))
    a('s_cmp_lg_u32 s2, 0')
    a('s_cbranch_scc1 L_fin')
    a('buffer_store_dword v%d, off, %s, 0 sc1' % (vTag, sr(rWS, 4)))
    a.label('L_fin')
    if stamps:
        a('s_memrealtime s[30:31]')
        a.wait_lg()
        a('s_mov_b64 exec, 1')
        a('s_getreg_b32 s%d, hwreg(HW_REG_XCC_ID)' % sT2)
        for i in range(10):
            a('v_mov_b32 v%d, s%d' % (vS + i, sST + 2 * i if i < nst[0] else sST))
        a('v_mov_b32 v%d, s30' % (vS + 10))
        a('v_mov_b32 v%d, s%d' % (vS + 11, sCnt))
        a('v_mov_b32 v%d, s%d' % (vS + 12, sT2))
        a('s_lshl_b32 s%d, s2, 2' % sT1)
        a('s_add_u32 s%d, s%d, s%d' % (sT1, sT1, sW))
        a('s_lshl_b32 s%d, s%d, 6' % (sT1, sT1))
        a('s_add_u32 s%d, s%d, 0x%x' % (sT1, sT1, WS_STAMP))
        for i in range(4):
            a('buffer_store_dwordx4 %s, off, %s, s%d offset:%d' % (vr(vS + 4 * i, 4), sr(rWS, 4), sT1, 16 * i))
    a('s_endpgm')
    a.label('L_qretry')
    a.cond += 1
    a('s_mov_b32 s%d, 0' % sCnt)
    a.label('L_qr')
    q_loads()
    a('s_waitcnt vmcnt(0)')
    q_check()
    a('s_cbranch_vccz L_qok')
    a('s_add_u32 s%d, s%d, 1' % (sCnt, sCnt))
    a('s_cmp_lt_u32 s%d, %d' % (sCnt, SPIN))
    a('s_cbranch_scc1 L_qr')
    a('s_branch L_qok')
    a.cond -= 1
    a.label('L_codeend')
    a('s_endpgm')
    a.raw('.section .rodata,"a"')
    a.raw('.p2align 6')
    a.raw('.amdhsa_kernel ' + KN)
    for l in ('.amdhsa_next_free_vgpr 512', '.amdhsa_next_free_sgpr 102', '.amdhsa_accum_offset 256',
              '.amdhsa_group_segment_fixed_size 0', '.amdhsa_kernarg_size 104', '.amdhsa_user_sgpr_count 2',
              '.amdhsa_user_sgpr_kernarg_segment_ptr 1', '.amdhsa_system_sgpr_workgroup_id_x 1',
              '.amdhsa_float_denorm_mode_32 3'):
        a.raw('  ' + l)
    a.raw('.end_amdhsa_kernel')
    return a.text()


if __name__ == '__main__':
    out = sys.argv[1]
    kw = eval('dict(%s)' % (sys.argv[2] if len(sys.argv) > 2 else ''))
    open(out, 'w').write(gen(**kw))
```

```python
import sys, math, struct
from asmlib import *

KN = "parallel_sum__gqa_block_cached__mixer_token_mlp__decode_kernel"
REF = "parallel_sum__gqa_block_cached__mixer_token_mlp__decode.s.ref"


def f32(x):
    return '0x%08x' % struct.unpack('<I', struct.pack('<f', x))[0]


WS_EPOCH = 0
WS_Q = 0x10000
WS_PART = 0x100000
WS_OUTP = 0x200000
WS_STAMP = 0x300000
WS_SIZE = 0x400000
L_K = 0
L_WQ = 131072
L_RED = L_WQ
L_RED2 = L_RED + 8192
L_XN = 147456
L_QL = L_XN + 1024
L_ML = L_QL + 1024
L_YP = L_ML + 128
LDS_BYTES = 150016
OST = 1152
SPIN = 4000
LOG2E = 1.4426950408889634


def gen(W0=3, W=4, sub=1, mapping='mod', stamps=False, nv_pre=5, qpos='V1b', d1=1, d2=1, wo_pos='K3b', prefetch=True,
        tailpf=True, sleep=0, verbose=False, PST=4096, pflag='sc1', pld='sc1', skip=()):
    a = Asm()
    hdr = [l for l in open(REF).read().split('\n') if l.startswith(';') and '@launch' not in l]
    for l in hdr:
        a.raw(l)
    a.raw('; @launch grid=(256,1,1) block=(256,1,1) lds=%d' % LDS_BYTES)
    a.raw('.amdgcn_target "amdgcn-amd-amdhsa--gfx950"')
    a.raw('.text')
    a.raw('.globl ' + KN)
    a.raw('.p2align 8')
    a.raw('.type %s,@function' % KN)
    a.label(KN)

    sW = 3
    pX, pK, pV, pWQ, pWO, pW1, pB1, pW2, pB2, pOUT, pWS = 4, 6, 8, 10, 12, 16, 18, 20, 22, 24, 28
    rK, rV, rWQ, rWO, rWS, rW1, rB1, rW2 = 32, 36, 40, 44, 48, 52, 56, 60
    sG, sC, sP, sJ = 64, 65, 66, 67
    sKL = 68
    sT0, sT1, sT2 = 69, 70, 71
    sOff = 72
    sCnt = 73
    sQg, sPub = 74, 75
    sPC = 76
    sC0, sC1 = 78, 79
    sST = 80
    nst = [0]

    def stamp():
        if stamps:
            assert nst[0] < 11
            a('s_memrealtime %s' % sr(sST + 2 * nst[0], 2))
            nst[0] += 1

    va = VAlloc(1)
    vL = va(); vTag = va(); vT16 = va(); vL4 = va()
    vKo = va(4); vKa = va(4); vVo = va(2); vSel = va(4)
    vM = va(); vLs = va(); vY = va(2); vXp = va(); vB2 = va(); vJunk = va(); vTmp = va(8, 4)
    vZ = va(32, 4)
    vQ = va(32, 4)
    vKf = va(32, 4)
    vS = va(64, 4)
    vAS = va(8, 4)
    vO = va(8, 4)
    vWt = va(8, 4)
    vWOr = va(16, 4)
    vX = vZ; vXf = vZ + 4; vW1 = vZ + 12; vB1 = vZ + 16; vW2 = vZ + 20; vH = vZ + 24
    vWOp = vZ
    T = vKf

    def rnd(d, s):
        a('v_cvt_pk_bf16_f32 v%d, 0, v%d' % (d, s))

    def allred(regs, op, tmps, bits=(0, 1, 2, 3, 4, 5)):
        for b in bits:
            if b < 4:
                for r in regs:
                    a('v_%s_dpp v%d, v%d, v%d row_ror:%d row_mask:0xf bank_mask:0xf' % (op, r, r, r, 1 << b))
            else:
                for r, t in zip(regs, tmps):
                    a('v_mov_b32 v%d, v%d' % (t, r))
                for r, t in zip(regs, tmps):
                    a('v_permlane%d_swap_b32 v%d, v%d' % (16 if b == 4 else 32, r, t))
                for r, t in zip(regs, tmps):
                    a('v_%s v%d, v%d, v%d' % (op, r, r, t))

    def xor3(d, x, y, z):
        a('v_bitop3_b32 v%d, v%d, v%d, v%d bitop3:0x96' % (d, x, y, z))

    a('s_cmp_lt_u32 s2, 256')
    a('s_cbranch_scc1 L_go')
    a('s_endpgm')
    a.label('L_go')
    stamp()
    a('s_load_dwordx16 s[4:19], s[0:1], 0')
    a('s_load_dwordx8 s[20:27], s[0:1], 64')
    a('s_load_dwordx2 s[28:29], s[0:1], 96')
    a('v_lshrrev_b32 v%d, 6, v0' % vTmp)
    a('v_and_b32 v%d, 63, v0' % vL)
    a('v_readfirstlane_b32 s%d, v%d' % (sW, vTmp))
    a('s_getpc_b64 %s' % sr(sPC, 2))
    a.label('L_pc')
    if prefetch:
        a('s_lshr_b32 s%d, s2, 3' % sT0)
        a('s_and_b32 s%d, s%d, 3' % (sT0, sT0))
        a('s_lshl_b32 s%d, s%d, 2' % (sT0, sT0))
        a('s_add_u32 s%d, s%d, s%d' % (sT0, sT0, sW))
        a('s_lshl_b32 s%d, s%d, 10' % (sT0, sT0))
        a('v_and_b32 v%d, 7, v0' % (vTmp + 1))
        a('v_lshlrev_b32 v%d, 7, v%d' % (vTmp + 1, vTmp + 1))
        a('v_add_u32 v%d, s%d, v%d' % (vTmp + 1, sT0, vTmp + 1))
        a('v_min_u32 v%d, L_codeend-L_pc-4, v%d' % (vTmp + 1, vTmp + 1))
        a('global_load_dword v%d, v%d, %s' % (vJunk, vTmp + 1, sr(sPC, 2)))
    a('s_and_b32 s%d, s2, 7' % sG)
    a('s_lshr_b32 s%d, s2, 3' % sC)
    a('s_lshl_b32 s%d, s%d, 5' % (sP, sG))
    a('s_add_u32 s%d, s%d, s%d' % (sP, sP, sC))
    a('s_lshr_b32 s%d, s%d, 3' % (sT1, sC))
    a('s_lshl_b32 s%d, s%d, 2' % (sT1, sT1))
    a('s_add_u32 s%d, s%d, s%d' % (sT1, sT1, sW))
    a('s_lshl_b32 s%d, s%d, 18' % (sT1, sT1))
    a('s_lshl_b32 s%d, s%d, 10' % (sT2, sG))
    a('s_add_u32 s%d, s%d, s%d' % (sT1, sT1, sT2))
    a('s_and_b32 s%d, s%d, 7' % (sT2, sC))
    a('s_lshl_b32 s%d, s%d, 7' % (sT2, sT2))
    a('s_add_u32 s%d, s%d, s%d' % (sT1, sT1, sT2))
    if mapping == 'mod':
        a('s_mov_b32 s%d, s%d' % (sJ, sP))
    else:
        a('s_lshr_b32 s%d, s2, 5' % sG)
        a('s_and_b32 s%d, s2, 31' % sC)
        a('s_mov_b32 s%d, s2' % sJ)
    i15, ks, bsw, vWq, l16, zero = vTmp + 2, vTmp + 3, vTmp + 4, vTmp + 5, vTmp + 6, vTmp + 7
    a('v_and_b32 v%d, 15, v%d' % (i15, vL))
    a('v_lshrrev_b32 v%d, 4, v%d' % (ks, vL))
    a('v_xor_b32 v%d, v%d, v%d' % (bsw, i15, ks))
    a('v_lshlrev_b32 v%d, 4, v%d' % (bsw, bsw))
    a('v_lshl_add_u32 v%d, v%d, 8, v%d' % (vKo, ks, bsw))
    for j in range(1, 4):
        a('v_xor_b32 v%d, 0x%x, v%d' % (vKo + j, j << 6, vKo))
    a('v_lshrrev_b32 v%d, 3, v%d' % (vWq, vL))
    a('v_lshlrev_b32 v%d, 13, v%d' % (vWq, vWq))
    a('v_and_b32 v%d, 7, v%d' % (l16, vL))
    a('v_lshl_add_u32 v%d, v%d, 4, v%d' % (vWq, l16, vWq))
    a('v_lshlrev_b32 v%d, 4, v%d' % (l16, vL))
    a('v_mov_b32 v%d, 0' % zero)
    a('s_lshl_b32 s%d, s%d, 18' % (sT0, sJ))
    a('s_lshl_b32 s%d, s%d, 13' % (sT2, sW))
    a('s_add_u32 s%d, s%d, s%d' % (sT0, sT0, sT2))
    a('s_lshl_b32 s%d, s%d, 15' % (sKL, sW))
    a('s_lshl_b32 s%d, s%d, 12' % (sT2, sW))
    a('s_add_u32 m0, s%d, %d' % (sT2, L_WQ))
    a('s_mov_b32 s%d, 0x%x' % (rWQ + 2, 31 * 8192 + 128))
    a('s_mov_b32 s%d, 0x20000' % (rWQ + 3))
    a('s_mov_b32 s%d, 0x3a000' % (rK + 2))
    a('s_mov_b32 s%d, 0x20000' % (rK + 3))
    a.wait_lg()
    stamp()
    tX = a('global_load_dwordx4 %s, v%d, %s' % (vr(vX, 4), l16, sr(pX, 2)))
    tE = a('global_load_dword v%d, v%d, %s sc1' % (vTag, zero, sr(pWS, 2)))
    a('s_add_u32 s%d, s%d, s%d' % (rWQ, pWQ, sT1))
    a('s_addc_u32 s%d, s%d, 0' % (rWQ + 1, pWQ + 1))
    a('s_add_u32 s%d, s%d, s%d' % (rK, pK, sT0))
    a('s_addc_u32 s%d, s%d, 0' % (rK + 1, pK + 1))

    vtok = {}
    tok = {}

    def parts(s):
        n = 4 // sub
        return range(s * n, (s + 1) * n)

    def issue(name, s):
        if name in skip:
            t = a('global_load_dword v%d, v%d, %s' % (vJunk, vL, sr(pWQ, 2)))
        elif name == 'WQ':
            for j in parts(s):
                if j:
                    a('s_mov_b32 s%d, 0x%x' % (sOff, j * (65536 - 1024)))
                t = a('buffer_load_dwordx4 v%d, %s, %s offen offset:%d nt lds' % (vWq, sr(rWQ, 4), 's%d' % sOff if j else '0', j * 1024))
        elif name == 'WO':
            for q in parts(s):
                a('s_mov_b32 s%d, %d' % (sOff, q * 4096))
                for r in range(4):
                    t = a('buffer_load_dword v%d, v%d, %s, s%d offen offset:%d nt' % (vWOr + q * 4 + r, vL4, sr(rWO, 4), sOff, r * 1024))
        elif name[0] == 'K':
            tl, half = int(name[1]), 'ab'.index(name[2])
            a('s_add_u32 m0, s%d, %d' % (sKL, (tl % 4) * 8192 + half * 4096))
            a('s_mov_b32 s%d, 0x%x' % (sOff, tl * 32768 + half * 4096))
            for j in parts(s):
                t = a('buffer_load_dwordx4 v%d, %s, s%d offen offset:%d nt lds' % (vKo + j, sr(rK, 4), sOff, j * 1024))
        else:
            tl, half = int(name[1]), 'ab'.index(name[2])
            a('s_mov_b32 s%d, 0x%x' % (sOff, tl * 32768))
            for r in parts(s):
                t = a('buffer_load_dwordx4 %s, v%d, %s, s%d offen offset:%d nt' % (ar(tl * 32 + half * 16 + r * 4, 4), vVo + half, sr(rV, 4), sOff, r * 256))
                vtok[(tl, half, r)] = t
        tok[name] = t
        return t

    names = ['WQ']
    for t in range(4):
        names += ['K%da' % t, 'K%db' % t]
    for t in range(nv_pre):
        names += ['V%da' % t, 'V%db' % t]
    for t in range(4, 8):
        names += ['K%da' % t, 'K%db' % t]
    for t in range(nv_pre, 8):
        names += ['V%da' % t, 'V%db' % t]
    names.insert(names.index(wo_pos) + 1, 'WO')
    seq = [(n, s) for n in names for s in range(sub)]
    Wn = W
    last = {n: i for i, (n, s) in enumerate(seq)}
    first = {}
    for i, (n, s) in enumerate(seq):
        first.setdefault(n, i)
    N = len(seq)

    def ready(n):
        return last[n] + Wn

    vTr, vXb, vXw, vQw, vQf = vWt, vWt + 1, vWt + 2, vWt + 3, vWt + 4
    small = {}

    def setup():
        a('s_mov_b32 s%d, 0x3a000' % (rV + 2))
        a('s_mov_b32 s%d, 0x20000' % (rV + 3))
        a('s_add_u32 s%d, s%d, s%d' % (rV, pV, sT0))
        a('s_addc_u32 s%d, s%d, 0' % (rV + 1, pV + 1))
        a('v_lshlrev_b32 v%d, 4, v0' % vT16)
        a('v_lshlrev_b32 v%d, 2, v%d' % (vL4, vL))
        for r, p in ((rW1, pW1), (rB1, pB1), (rW2, pW2)):
            a('s_mov_b32 s%d, s%d' % (r, p))
            a('s_mov_b32 s%d, s%d' % (r + 1, p + 1))
            a('s_mov_b32 s%d, 3584' % (r + 2))
            a('s_mov_b32 s%d, 0x20000' % (r + 3))
        a('s_lshl_b32 s%d, s%d, 2' % (sT1, sP))
        a('v_mov_b32 v%d, s%d' % (vXp, sT1))
        for r, v in ((rW1, vW1), (rB1, vB1), (rW2, vW2)):
            a('buffer_load_dwordx4 %s, v%d, %s, 0 offen' % (vr(v, 4), vT16, sr(r, 4)))
        a('global_load_ushort v%d, v%d, %s' % (vB2, zero, sr(pB2, 2)))
        small['t'] = a('global_load_dword v%d, v%d, %s' % (vXp, vXp, sr(pX, 2)))
        a('s_mov_b32 s%d, s%d' % (rWS, pWS))
        a('s_mov_b32 s%d, s%d' % (rWS + 1, pWS + 1))
        a('s_mov_b32 s%d, 0x%x' % (rWS + 2, WS_SIZE))
        a('s_mov_b32 s%d, 0x20000' % (rWS + 3))
        a('s_and_b32 s%d, s%d, 0xfc' % (sT1, sJ))
        a('s_add_u32 s%d, s%d, s%d' % (sT1, sT1, sW))
        a('s_lshl_b32 s%d, s%d, 14' % (sT1, sT1))
        a('s_and_b32 s%d, s%d, 3' % (sT2, sJ))
        a('s_lshl_b32 s%d, s%d, 8' % (sT2, sT2))
        a('s_add_u32 s%d, s%d, s%d' % (sT1, sT1, sT2))
        a('s_add_u32 s%d, s%d, s%d' % (rWO, pWO, sT1))
        a('s_addc_u32 s%d, s%d, 0' % (rWO + 1, pWO + 1))
        a('s_mov_b32 s%d, %d' % (rWO + 2, 15 * 1024 + 256))
        a('s_mov_b32 s%d, 0x20000' % (rWO + 3))
        a('v_lshlrev_b32 v%d, 4, v%d' % (vVo, i15))
        a('v_lshl_add_u32 v%d, v%d, 10, v%d' % (vVo, ks, vVo))
        a('v_add_u32 v%d, 4096, v%d' % (vVo + 1, vVo))
        a('v_lshl_add_u32 v%d, v%d, 8, v%d' % (vKa, i15, bsw))
        a('v_add_u32 v%d, s%d, v%d' % (vKa, sKL, vKa))
        for j in range(1, 4):
            a('v_xor_b32 v%d, 0x%x, v%d' % (vKa + j, j << 6, vKa))
        e = vTmp
        a('v_and_b32 v%d, 3, v%d' % (e, vL))
        a('v_bfe_u32 v%d, v%d, 2, 2' % (vTmp + 1, vL))
        a('s_lshl_b32 s%d, s%d, 5' % (sT1, sW))
        a('s_add_u32 s%d, s%d, %d' % (sT1, sT1, L_WQ))
        a('v_lshlrev_b32 v%d, 3, v%d' % (vTr, e))
        a('v_lshl_add_u32 v%d, v%d, 7, v%d' % (vTr, vTmp + 1, vTr))
        a('v_lshl_add_u32 v%d, v%d, 10, v%d' % (vTr, ks, vTr))
        a('v_add_u32 v%d, s%d, v%d' % (vTr, sT1, vTr))
        a('s_lshr_b32 s%d, s%d, 3' % (sT1, sP))
        a('s_and_b32 s%d, s%d, 3' % (sT1, sT1))
        a('s_lshl_b32 s%d, s%d, 8' % (sT2, sT1))
        a('s_add_u32 s%d, s%d, %d' % (sT2, sT2, L_XN))
        a('v_lshlrev_b32 v%d, 4, v%d' % (vXb, ks))
        a('v_add_u32 v%d, s%d, v%d' % (vXb, sT2, vXb))
        a('v_add_u32 v%d, %d, v%d' % (vXw, L_XN, l16))
        a('s_lshr_b32 s%d, s%d, 5' % (sT2, sP))
        a('s_lshl_b32 s%d, s%d, 2' % (sT2, sT2))
        a('s_add_u32 s%d, s%d, s%d' % (sT2, sT2, sT1))
        a('s_lshl_b32 s%d, s%d, 12' % (sPub, sT2))
        a('s_and_b32 s%d, s%d, 7' % (sT2, sP))
        a('s_lshl_b32 s%d, s%d, 2' % (sT2, sT2))
        a('s_add_u32 s%d, s%d, s%d' % (sT2, sT2, sW))
        a('s_lshl_b32 s%d, s%d, 7' % (sT2, sT2))
        a('s_add_u32 s%d, s%d, s%d' % (sPub, sPub, sT2))
        a('s_add_u32 s%d, s%d, 0x%x' % (sPub, sPub, WS_Q))
        a('v_and_b32 v%d, 1, v%d' % (vQw, vL))
        a('v_lshl_add_u32 v%d, v%d, 1, v%d' % (vQw, ks, vQw))
        a('v_lshlrev_b32 v%d, 4, v%d' % (vQw, vQw))
        a('v_lshlrev_b32 v%d, 8, v%d' % (vQf, vTmp + 1))
        a('v_lshl_add_u32 v%d, v%d, 4, v%d' % (vQf, ks, vQf))
        a('v_add_u32 v%d, %d, v%d' % (vQf, L_QL, vQf))
        a('s_lshl_b32 s%d, s%d, 14' % (sQg, sG))
        a('s_add_u32 s%d, s%d, 0x%x' % (sQg, sQg, WS_Q))
        a('s_mov_b32 s%d, 0x0c0c0c0c' % sC0)
        for k, (ev0, lo) in enumerate(((0, 0x0100), (2, 0x0100), (0, 0x0302), (2, 0x0302))):
            a('v_mov_b32 v%d, s%d' % (vSel + k, sC0))
            a('v_mov_b32 v%d, 0x%08x' % (vTmp + 1, 0x0c0c0000 | lo))
            a('v_cmp_eq_u32 vcc, %d, v%d' % (ev0, e))
            a('v_cndmask_b32 v%d, v%d, v%d, vcc' % (vSel + k, vSel + k, vTmp + 1))
            a('v_mov_b32 v%d, 0x%08x' % (vTmp + 1, (lo << 16) | 0x0c0c))
            a('v_cmp_eq_u32 vcc, %d, v%d' % (ev0 + 1, e))
            a('v_cndmask_b32 v%d, v%d, v%d, vcc' % (vSel + k, vSel + k, vTmp + 1))

    def unpack(dst, src, n):
        for i in range(n):
            a('v_lshlrev_b32 v%d, 16, v%d' % (dst + 2 * i, src + i))
            a('v_and_b32 v%d, 0xffff0000, v%d' % (dst + 2 * i + 1, src + i))

    def ln_stats(xf, t):
        s, tm = t + 8, t + 9
        a('v_add_f32 v%d, v%d, v%d' % (t, xf, xf + 1))
        a('v_add_f32 v%d, v%d, v%d' % (t + 1, xf + 2, xf + 3))
        a('v_add_f32 v%d, v%d, v%d' % (t + 2, xf + 4, xf + 5))
        a('v_add_f32 v%d, v%d, v%d' % (t + 3, xf + 6, xf + 7))
        a('v_add_f32 v%d, v%d, v%d' % (t, t, t + 1))
        a('v_add_f32 v%d, v%d, v%d' % (t + 2, t + 2, t + 3))
        a('v_add_f32 v%d, v%d, v%d' % (s, t, t + 2))
        allred([s], 'add_f32', [tm])
        a('v_mul_f32 v%d, %s, v%d' % (s, f32(1 / 512), s))
        for i in range(8):
            a('v_sub_f32 v%d, v%d, v%d' % (t + i, xf + i, s))
        rnd(s, s)
        a('v_mul_f32 v%d, v%d, v%d' % (t, t, t))
        a('v_mul_f32 v%d, v%d, v%d' % (t + 1, t + 1, t + 1))
        for i in range(2, 8):
            a('v_fmac_f32 v%d, v%d, v%d' % (t + (i & 1), t + i, t + i))
        a('v_add_f32 v%d, v%d, v%d' % (t, t, t + 1))
        allred([t], 'add_f32', [tm])
        a('v_mul_f32 v%d, %s, v%d' % (t, f32(1 / 512), t))
        rnd(t, t)
        a('v_add_f32 v%d, %s, v%d' % (t, f32(1e-5), t))
        rnd(t, t)
        a('v_sqrt_f32 v%d, v%d' % (t, t))
        rnd(t, t)
        a('v_rcp_f32 v%d, v%d' % (t, t))
        return s, t

    def ln1():
        a.wait_vm(tE)
        a('s_mov_b32 s%d, 1664525' % sC0)
        a('v_mul_lo_u32 v%d, v%d, s%d' % (vTag, vTag, sC0))
        a('v_add_u32 v%d, 1013904223, v%d' % (vTag, vTag))
        unpack(vXf, vX, 4)
        mb, rc = ln_stats(vXf, T)
        for i in range(8):
            a('v_sub_f32 v%d, v%d, v%d' % (vXf + i, vXf + i, mb))
        for i in range(8):
            rnd(vXf + i, vXf + i)
        for i in range(8):
            a('v_mul_f32 v%d, v%d, v%d' % (vXf + i, vXf + i, rc))
        for i in range(4):
            a('v_cvt_pk_bf16_f32 v%d, v%d, v%d' % (vX + i, vXf + 2 * i, vXf + 2 * i + 1))
        a('ds_write_b128 v%d, %s' % (vXw, vr(vX, 4)))

    def qpart():
        a.wait_vm(tok['WQ'])
        a.wait_lg()
        stamp()
        a('s_barrier')
        for t in range(4):
            a('ds_read_b128 %s, v%d offset:%d' % (vr(vKf + 16 + 4 * t, 4), vXb, t * 64))
        lt = []
        for t in range(4):
            a('ds_read_b64_tr_b16 %s, v%d offset:%d' % (vr(vKf + 4 * t, 2), vTr, t * 4096))
            lt.append(a('ds_read_b64_tr_b16 %s, v%d offset:%d' % (vr(vKf + 4 * t + 2, 2), vTr, t * 4096 + 512)))
        a('s_mov_b32 vcc_lo, 0xaaaaaaaa')
        a('s_mov_b32 vcc_hi, 0xaaaaaaaa')
        for t in range(4):
            a.wait_lg(lt[t])
            a('v_mfma_f32_16x16x32_bf16 %s, %s, %s, %s' % (vr(vAS, 4), vr(vKf + 4 * t, 4), vr(vKf + 16 + 4 * t, 4), '0' if t == 0 else vr(vAS, 4)))
        G = vAS + 4
        a('v_cndmask_b32 v%d, v%d, v%d, vcc' % (G, vAS, vAS + 2))
        a('v_cndmask_b32 v%d, v%d, v%d, vcc' % (G + 1, vAS + 1, vAS + 3))
        xor3(G + 2, G, G + 1, vTag)
        a('s_mov_b32 exec_lo, 0x00030003')
        a('s_mov_b32 exec_hi, 0x00030003')
        a('buffer_store_dwordx4 %s, v%d, %s, s%d offen sc1' % (vr(G, 4), vQw, sr(rWS, 4), sPub))
        a('s_mov_b64 exec, -1')
        stamp()

    def ln2():
        a.wait_vm(small['t'])
        unpack(vXf, vX, 4)
        a('s_lshl_b32 s%d, s%d, 2' % (sT1, sP))
        a('s_add_u32 s%d, s%d, %d' % (sT1, sT1, L_XN))
        a('v_mov_b32 v%d, s%d' % (vH, sT1))
        a('ds_read_b32 v%d, v%d' % (vH + 2, vH))
        mb, rc = ln_stats(vXf, T)
        a.wait_lg()
        unpack(vH, vH + 2, 1)
        for i in range(2):
            a('v_sub_f32 v%d, v%d, v%d' % (vH + i, vH + i, mb))
        for i in range(2):
            rnd(vH + i, vH + i)
        for i in range(2):
            a('v_mul_f32 v%d, v%d, v%d' % (vH + i, vH + i, rc))
        for i in range(2):
            rnd(vH + i, vH + i)
        a('v_mov_b32 v%d, 0' % vY)
        a('v_mov_b32 v%d, 0' % (vY + 1))

    c0 = -2.0 * math.sqrt(2.0 / math.pi) * LOG2E
    c1 = c0 * 0.044715

    def gelu_chunk(k):
        wf, bf_, u, tt = T, T + 2, T + 4, T + 8
        unpack(wf, vW1 + k, 1)
        unpack(bf_, vB1 + k, 1)
        a('s_mov_b32 s%d, %s' % (sC0, f32(c0)))
        a('v_mov_b32 v%d, %s' % (T + 12, f32(c1)))
        for c in range(2):
            for i in range(2):
                a('v_mul_f32 v%d, v%d, v%d' % (u + 2 * c + i, vH + c, wf + i))
        for i in range(4):
            rnd(u + i, u + i)
        for i in range(4):
            a('v_add_f32 v%d, v%d, v%d' % (u + i, u + i, bf_ + (i & 1)))
        for i in range(4):
            rnd(u + i, u + i)
        for i in range(4):
            a('v_mul_f32 v%d, v%d, v%d' % (tt + i, u + i, u + i))
        for i in range(4):
            a('v_fma_f32 v%d, v%d, v%d, s%d' % (tt + i, tt + i, T + 12, sC0))
        for i in range(4):
            a('v_mul_f32 v%d, v%d, v%d' % (tt + i, tt + i, u + i))
        for i in range(4):
            a('v_exp_f32 v%d, v%d' % (tt + i, tt + i))
        for i in range(4):
            a('v_add_f32 v%d, 1.0, v%d' % (tt + i, tt + i))
        for i in range(4):
            a('v_rcp_f32 v%d, v%d' % (tt + i, tt + i))
        for i in range(4):
            a('v_mul_f32 v%d, v%d, v%d' % (u + i, u + i, tt + i))
        for c in range(2):
            a('v_cvt_pk_bf16_f32 v%d, v%d, v%d' % (tt + c, u + 2 * c, u + 2 * c + 1))
        for c in range(2):
            a('v_dot2c_f32_bf16 v%d, v%d, v%d' % (vY + c, tt + c, vW2 + k))

    def y_finish():
        allred([vY, vY + 1], 'add_f32', [T, T + 1])
        a('s_lshl_b32 s%d, s%d, 3' % (sT1, sW))
        a('s_add_u32 s%d, s%d, %d' % (sT1, sT1, L_YP))
        a('v_mov_b32 v%d, s%d' % (T, sT1))
        a('s_mov_b64 exec, 1')
        a('ds_write_b64 v%d, %s' % (T, vr(vY, 2)))
        a('s_mov_b64 exec, -1')

    QG = vQ + 16

    def q_loads():
        for k in range(4):
            if k:
                a('s_add_u32 s%d, s%d, %d' % (sOff, sQg, k * 4096))
            tk = a('buffer_load_dwordx4 %s, v%d, %s, s%d offen sc1' % (vr(QG + 4 * k, 4), vT16, sr(rWS, 4), sOff if k else sQg))
        tok['QG'] = tk

    def q_check():
        for k in range(4):
            xor3(QG + 4 * k + 3, QG + 4 * k, QG + 4 * k + 1, QG + 4 * k + 2)
        for k in range(4):
            a('v_xor_b32 v%d, v%d, v%d' % (QG + 4 * k + 3, QG + 4 * k + 3, vTag))
        a('v_or3_b32 v%d, v%d, v%d, v%d' % (vTmp, QG + 3, QG + 7, QG + 11))
        a('v_or_b32 v%d, v%d, v%d' % (vTmp, vTmp, QG + 15))
        a('v_cmp_ne_u32 vcc, 0, v%d' % vTmp)

    def q_issue():
        q_loads()
        stamp()

    def q_take():
        a.wait_vm(tok['QG'])
        q_check()
        a('s_cbranch_vccnz L_qretry')
        a.label('L_qok')
        for c in range(2):
            a('v_add_f32 v%d, v%d, v%d' % (QG + c, QG + c, QG + 4 + c))
            a('v_add_f32 v%d, v%d, v%d' % (QG + 8 + c, QG + 8 + c, QG + 12 + c))
        for c in range(2):
            a('v_add_f32 v%d, v%d, v%d' % (QG + c, QG + c, QG + 8 + c))
        a('v_cvt_pk_bf16_f32 v%d, v%d, v%d' % (QG, QG, QG + 1))
        a('v_lshlrev_b32 v%d, 2, v0' % (QG + 1))
        a('v_add_u32 v%d, %d, v%d' % (QG + 1, L_QL, QG + 1))
        a('ds_write_b32 v%d, v%d' % (QG + 1, QG))

    def q_frag():
        a.wait_lg()
        a('s_barrier')
        for t in range(4):
            a('ds_read_b128 %s, v%d offset:%d' % (vr(vQ + 4 * t, 4), vQf, t * 64))
        stamp()

    SCALE = float(struct.unpack('<f', struct.pack('<f', 128 ** -0.5))[0])

    def qk(t):
        a.wait_vm(tok['K%db' % t])
        lt = {}
        for g in range(2):
            for k in range(4):
                lt[g, k] = a('ds_read_b128 %s, v%d offset:%d' % (vr(vKf + g * 16 + k * 4, 4), vKa + k, (t % 4) * 8192 + g * 4096))
        for g in range(2):
            for k in range(4):
                a.wait_lg(lt[g, k])
                a('v_mfma_f32_16x16x32_bf16 %s, %s, %s, %s' % (vr(vAS + 4 * g, 4), vr(vKf + g * 16 + k * 4, 4), vr(vQ + k * 4, 4), '0' if k == 0 else vr(vAS + 4 * g, 4)))
        S = vS + t * 8
        a('s_mov_b32 s%d, %s' % (sC0, f32(SCALE)))
        for i in range(8):
            rnd(S + i, vAS + i)
        for i in range(8):
            a('v_mul_f32 v%d, s%d, v%d' % (S + i, sC0, S + i))
        for i in range(8):
            rnd(S + i, S + i)
        if t == 0:
            a('v_max3_f32 v%d, v%d, v%d, v%d' % (vM, S, S + 1, S + 2))
            a('v_max3_f32 v%d, v%d, v%d, v%d' % (vM, vM, S + 3, S + 4))
            a('v_max3_f32 v%d, v%d, v%d, v%d' % (vM, vM, S + 5, S + 6))
            a('v_max_f32 v%d, v%d, v%d' % (vM, vM, S + 7))
        else:
            for i in range(4):
                a('v_max3_f32 v%d, v%d, v%d, v%d' % (vM, vM, S + 2 * i, S + 2 * i + 1))
        if t == 7:
            stamp()

    def sm_max():
        allred([vM], 'max_f32', [vTmp], bits=(4, 5))
        a('v_mul_f32 v%d, %s, v%d' % (vM, f32(LOG2E), vM))
        a('v_mov_b32 v%d, 0' % vLs)
        a('v_mov_b32 v%d, 0' % (vTmp + 1))

    def sm_exp(t):
        S = vS + t * 8
        a('s_mov_b32 s%d, %s' % (sC0, f32(LOG2E)))
        for i in range(8):
            a('v_fma_f32 v%d, v%d, s%d, -v%d' % (S + i, S + i, sC0, vM))
        for i in range(8):
            a('v_exp_f32 v%d, v%d' % (S + i, S + i))
        for i in range(4):
            a('v_add_f32 v%d, v%d, v%d' % (vLs, vLs, S + 2 * i))
            a('v_add_f32 v%d, v%d, v%d' % (vTmp + 1, vTmp + 1, S + 2 * i + 1))
        for i in range(4):
            a('v_cvt_pk_bf16_f32 v%d, v%d, v%d' % (S + i, S + 2 * i, S + 2 * i + 1))

    def sm_fin():
        a('v_add_f32 v%d, v%d, v%d' % (vLs, vLs, vTmp + 1))
        allred([vLs], 'add_f32', [vTmp], bits=(4, 5))
        a('s_lshl_b32 s%d, s%d, 3' % (sT1, sW))
        a('s_add_u32 s%d, s%d, %d' % (sT1, sT1, L_ML))
        a('v_lshlrev_b32 v%d, 3, v%d' % (vTmp, vL))
        a('v_add_u32 v%d, s%d, v%d' % (vTmp, sT1, vTmp))
        a('s_mov_b64 exec, 0x1111')
        a('ds_write_b64 v%d, %s' % (vTmp, vr(vM, 2)))
        a('s_mov_b64 exec, -1')

    def p_prep(t):
        P = vKf + (t & 1) * 16
        S = vS + t * 8
        for g in range(2):
            for r in range(4):
                pk = S + g * 2 + (r >> 1)
                sl = vSel + (r & 1) * 2
                a('v_perm_b32 v%d, v%d, v%d, v%d' % (P + g * 8 + r * 2, pk, pk, sl))
                a('v_perm_b32 v%d, v%d, v%d, v%d' % (P + g * 8 + r * 2 + 1, pk, pk, sl + 1))

    def pv(t, fine=False):
        P = vKf + (t & 1) * 16
        if not fine:
            a.wait_vm(tok['V%db' % t])
        for g in range(2):
            for r in range(4):
                if fine:
                    a.wait_vm(vtok[(t, g, r)])
                for hf in range(2):
                    fst = (t == 0 and g == 0 and r == 0)
                    a('v_mfma_f32_16x16x16_bf16 %s, %s, %s, %s' % (vr(vO + 4 * hf, 4), vr(P + g * 8 + r * 2, 2), ar(t * 32 + g * 16 + r * 4 + hf * 2, 2), '0' if fst else vr(vO + 4 * hf, 4)))

    def wo_pair():
        a.wait_vm(tok['WO'])
        a('s_mov_b32 s%d, 0x05040100' % sC0)
        a('s_mov_b32 s%d, 0x07060302' % sC1)
        for k in range(8):
            a('v_perm_b32 v%d, v%d, v%d, s%d' % (vWOp + k, vWOr + 2 * k + 1, vWOr + 2 * k, sC0))
            a('v_perm_b32 v%d, v%d, v%d, s%d' % (vWOp + 8 + k, vWOr + 2 * k + 1, vWOr + 2 * k, sC1))

    vRw, vRr, vPo, vOo = vWOr, vWOr + 1, vWOr + 2, vWOr + 3
    vR2w, vR2r = vWOr + 4, vWOr + 5
    sGa = 52

    def tail_setup():
        if tailpf:
            a('v_and_b32 v%d, 31, v0' % vTmp)
            a('v_lshlrev_b32 v%d, 7, v%d' % (vTmp, vTmp))
            a('v_add_u32 v%d, L_tail-L_pc, v%d' % (vTmp, vTmp))
            a('v_min_u32 v%d, L_codeend-L_pc-4, v%d' % (vTmp, vTmp))
            a('global_load_dword v%d, v%d, %s' % (vJunk, vTmp, sr(sPC, 2)))
        a('s_lshl_b32 s%d, s%d, 11' % (sT1, sW))
        a('s_add_u32 s%d, s%d, %d' % (sT1, sT1, L_RED))
        a('v_lshlrev_b32 v%d, 5, v%d' % (vRw, vL))
        a('v_add_u32 v%d, s%d, v%d' % (vRw, sT1, vRw))
        a('v_lshlrev_b32 v%d, 3, v0' % vRr)
        a('v_add_u32 v%d, %d, v%d' % (vR2w, L_RED2, vRr))
        a('v_add_u32 v%d, %d, v%d' % (vRr, L_RED, vRr))
        a('v_lshrrev_b32 v%d, 3, v%d' % (vPo, vL))
        a('v_mul_u32_u24 v%d, %d, v%d' % (vPo, PST, vPo))
        a('v_and_b32 v%d, 7, v%d' % (vOo, vL))
        a('v_lshl_add_u32 v%d, v%d, 4, v%d' % (vPo, vOo, vPo))
        a('v_mul_u32_u24 v%d, %d, v%d' % (vOo, OST, vL))
        a('s_mul_i32 s%d, s%d, %d' % (sPub, sJ, PST))
        a('s_add_u32 s%d, s%d, 0x%x' % (sPub, sPub, WS_PART))
        a('s_and_b32 s%d, s%d, 0xe0' % (sT1, sJ))
        a('s_mul_i32 s%d, s%d, %d' % (sT1, sT1, PST))
        a('s_and_b32 s%d, s%d, 0x1c' % (sT2, sJ))
        a('s_add_u32 s%d, s%d, s%d' % (sT2, sT2, sW))
        a('s_lshl_b32 s%d, s%d, 7' % (sT2, sT2))
        a('s_add_u32 s%d, s%d, s%d' % (sT1, sT1, sT2))
        for jj in range(4):
            a('s_add_u32 s%d, s%d, 0x%x' % (sGa + jj, sT1, WS_PART + jj * 8 * PST))
        a('s_and_b32 s%d, s%d, 3' % (sT1, sJ))
        a('s_lshl_b32 s%d, s%d, 6' % (sT1, sT1))
        a('s_lshr_b32 s%d, s%d, 2' % (sT2, sJ))
        a('s_add_u32 s%d, s%d, s%d' % (sT1, sT1, sT2))
        a('s_mul_i32 s%d, s%d, %d' % (sT1, sT1, OST))
        a('s_add_u32 s%d, s%d, 0x%x' % (sGa + 4, sT1, WS_OUTP))
        a('s_and_b32 s%d, s%d, 0xc0' % (sT1, sP))
        a('s_mul_i32 s%d, s%d, %d' % (sT1, sT1, OST))
        a('s_and_b32 s%d, s%d, 63' % (sT2, sP))
        a('s_lshl_b32 s%d, s%d, 4' % (sT2, sT2))
        a('s_add_u32 s%d, s%d, s%d' % (sT1, sT1, sT2))
        a('s_add_u32 s%d, s%d, 0x%x' % (sGa + 5, sT1, WS_OUTP))

    sched = {i: [] for i in range(-1, N)}

    def at(i, f):
        i = min(i, N - 1)
        sched[i].append(f)
        return i

    p = W0 * sub - 1
    at(p, setup)
    at(p, ln1)
    p = at(max(ready('WQ') + d1 * sub, p), qpart)
    for f in [ln2] + [lambda k=k: gelu_chunk(k) for k in range(4)] + [y_finish]:
        p = at(p + sub, f)
    pq = at(last[qpos], q_issue)
    p1 = at(pq + Wn, q_take)
    p2 = at(p1 + d2 * sub, q_frag)
    assert p <= p2, 'gelu must finish before qk'
    assert p2 < first['K4a'], (p2, first['K4a'])
    p = p2
    for t in range(4):
        p = at(min(max(p, p2 + t * sub), first['K%da' % (t + 4)] - 1), lambda t=t: qk(t))
    at(max(ready('WO'), p), wo_pair)
    at(max(ready('WO'), p), tail_setup)
    for t in range(4, 8):
        p = at(ready('K%db' % t), lambda t=t: qk(t))
    at(p, sm_max)
    for t in range(0, 8, 2):
        p = at(p + (sub if t % 4 else 0), lambda t=t: (sm_exp(t), sm_exp(t + 1)))
    at(p, sm_fin)
    late = []
    for t in range(8):
        r = max(ready('V%db' % t), p)
        if r < N - 1 and t < 7:
            at(r, lambda t=t: (p_prep(t), pv(t)))
        else:
            late.append(t)
    utok = []
    for i, (n, s) in enumerate(seq):
        if i >= W0 * sub and i - Wn >= 0:
            a.wait_vm(utok[i - Wn])
        a.comment('unit %s.%d' % (n, s))
        utok.append(issue(n, s))
        for f in sched[i]:
            f()
    a.label('L_tail')
    a.wait_lg()
    a('s_barrier')
    vA = vTmp
    a('s_lshl_b32 s%d, s%d, 5' % (sT1, sW))
    a('s_add_u32 s%d, s%d, %d' % (sT1, sT1, L_ML))
    a('v_mov_b32 v%d, s%d' % (vA, sT1))
    ML = vQ
    a('ds_read_b128 %s, v%d' % (vr(ML, 4), vA))
    a('ds_read_b128 %s, v%d offset:16' % (vr(ML + 4, 4), vA))
    a('v_mov_b32 v%d, %d' % (vA + 1, L_YP))
    a('ds_read_b128 %s, v%d' % (vr(ML + 8, 4), vA + 1))
    a('ds_read_b128 %s, v%d offset:16' % (vr(ML + 12, 4), vA + 1))
    a.wait_lg()
    Mx = vWt + 4
    a('v_max3_f32 v%d, v%d, v%d, v%d' % (Mx, ML, ML + 2, ML + 4))
    a('v_max_f32 v%d, v%d, v%d' % (Mx, Mx, ML + 6))
    for w in range(4):
        a('v_sub_f32 v%d, v%d, v%d' % (vWt + w, ML + 2 * w, Mx))
    for w in range(4):
        a('v_exp_f32 v%d, v%d' % (vWt + w, vWt + w))
    Ls = vWt + 5
    a('v_mul_f32 v%d, v%d, v%d' % (Ls, vWt, ML + 1))
    for w in range(1, 4):
        a('v_fmac_f32 v%d, v%d, v%d' % (Ls, vWt + w, ML + 2 * w + 1))
    a('v_rcp_f32 v%d, v%d' % (vWt + 6, Ls))
    a('v_log_f32 v%d, v%d' % (Ls, Ls))
    for w in range(4):
        a('v_mul_f32 v%d, v%d, v%d' % (vWt + w, vWt + w, vWt + 6))
    GP = vTmp + 4
    a('v_add_f32 v%d, v%d, v%d' % (GP + 2, Mx, Ls))
    a('v_xor_b32 v%d, v%d, v%d' % (GP + 3, GP + 2, vTag))
    for c in range(2):
        a('v_add_f32 v%d, v%d, v%d' % (ML + 8 + c, ML + 8 + c, ML + 10 + c))
        a('v_add_f32 v%d, v%d, v%d' % (ML + 12 + c, ML + 12 + c, ML + 14 + c))
    a('v_lshlrev_b32 v%d, 16, v%d' % (vB2, vB2))
    for c in range(2):
        a('v_add_f32 v%d, v%d, v%d' % (vY + c, ML + 8 + c, ML + 12 + c))
    for c in range(2):
        rnd(vY + c, vY + c)
    for c in range(2):
        a('v_add_f32 v%d, v%d, v%d' % (vY + c, vY + c, vB2))
    for c in range(2):
        rnd(vY + c, vY + c)
    vXu = vWt + 6
    unpack(vXu, vXp, 1)
    for t in late:
        p_prep(t)
        pv(t, fine=True)
    stamp()
    a('ds_write_b128 v%d, %s' % (vRw, vr(vO, 4)))
    a('ds_write_b128 v%d, %s offset:16' % (vRw, vr(vO + 4, 4)))
    a.wait_lg()
    a('s_barrier')
    R = vQ
    lt = [a('ds_read_b64 %s, v%d offset:%d' % (vr(R + 2 * w, 2), vRr, w * 2048)) for w in range(4)]
    a('s_mov_b32 s%d, 0' % sCnt)
    for w in range(4):
        a.wait_lg(lt[w])
        for c in range(2):
            if w == 0:
                a('v_mul_f32 v%d, v%d, v%d' % (GP + c, vWt, R + c))
            else:
                a('v_fmac_f32 v%d, v%d, v%d' % (GP + c, vWt + w, R + 2 * w + c))
    xor3(GP + 3, GP + 3, GP, GP + 1)
    a('buffer_store_dwordx4 %s, v%d, %s, s%d offen %s' % (vr(GP, 4), vT16, sr(rWS, 4), sPub, pflag))
    stamp()
    a.label('L_pg')
    Gq = vQ
    for jj in range(4):
        a('buffer_load_dwordx4 %s, v%d, %s, s%d offen %s' % (vr(Gq + 4 * jj, 4), vPo, sr(rWS, 4), sGa + jj, pld))
    GO = vTmp
    for i in range(4):
        a('v_mov_b32 v%d, 0' % (GO + i))
    a.wait_vm0()
    C = vQ + 16
    Mx = C + 4
    a('v_max3_f32 v%d, v%d, v%d, v%d' % (Mx, Gq + 2, Gq + 6, Gq + 10))
    a('v_max_f32 v%d, v%d, v%d' % (Mx, Mx, Gq + 14))
    K = C + 12
    for jj in range(2):
        xor3(K + jj, Gq + 4 * jj, Gq + 4 * jj + 1, Gq + 4 * jj + 2)
    a('v_max_f32_dpp v%d, v%d, v%d row_ror:8 row_mask:0xf bank_mask:0xf' % (Mx, Mx, Mx))
    a('v_mov_b32 v%d, v%d' % (C + 5, Mx))
    for jj in range(2, 4):
        xor3(K + jj, Gq + 4 * jj, Gq + 4 * jj + 1, Gq + 4 * jj + 2)
    a('v_permlane16_swap_b32 v%d, v%d' % (Mx, C + 5))
    a('v_max_f32 v%d, v%d, v%d' % (Mx, Mx, C + 5))
    a('v_mov_b32 v%d, v%d' % (C + 5, Mx))
    for jj in range(2):
        xor3(K + jj, K + jj, Gq + 4 * jj + 3, vTag)
    a('v_permlane32_swap_b32 v%d, v%d' % (Mx, C + 5))
    a('v_max_f32 v%d, v%d, v%d' % (Mx, Mx, C + 5))
    for jj in range(4):
        a('v_sub_f32 v%d, v%d, v%d' % (C + jj, Gq + 4 * jj + 2, Mx))
    for jj in range(4):
        a('v_exp_f32 v%d, v%d' % (C + jj, C + jj))
    A0, A1, Wt = C + 8, C + 9, C + 10
    a('v_mul_f32 v%d, v%d, v%d' % (A0, C, Gq))
    a('v_mul_f32 v%d, v%d, v%d' % (A1, C, Gq + 1))
    a('v_add_f32 v%d, v%d, v%d' % (Wt, C, C + 1))
    for jj in range(1, 4):
        a('v_fmac_f32 v%d, v%d, v%d' % (A0, C + jj, Gq + 4 * jj))
        a('v_fmac_f32 v%d, v%d, v%d' % (A1, C + jj, Gq + 4 * jj + 1))
        if jj > 1:
            a('v_add_f32 v%d, v%d, v%d' % (Wt, Wt, C + jj))
    allred([Wt, A0, A1], 'add_f32', [C, C + 1, C + 2], bits=(3, 4, 5))
    a('v_rcp_f32 v%d, v%d' % (Wt, Wt))
    for jj in range(2, 4):
        xor3(K + jj, K + jj, Gq + 4 * jj + 3, vTag)
    a('v_mul_f32 v%d, v%d, v%d' % (A0, A0, Wt))
    a('v_mul_f32 v%d, v%d, v%d' % (A1, A1, Wt))
    a('v_cvt_pk_bf16_f32 v%d, v%d, v%d' % (A0, A0, A1))
    a('v_or3_b32 v%d, v%d, v%d, v%d' % (K, K, K + 1, K + 2))
    a('v_or_b32 v%d, v%d, v%d' % (K, K, K + 3))
    for k in range(8):
        for c in range(2):
            a('v_dot2c_f32_bf16_dpp v%d, v%d, v%d row_newbcast:%d row_mask:0xf bank_mask:0xf' % (GO + c + 2 * (k & 1), A0, vWOp + 8 * c + k, k))
    a('v_cmp_ne_u32 vcc, 0, v%d' % K)
    a('s_add_u32 s%d, s%d, 1' % (sCnt, sCnt))
    a('v_add_f32 v%d, v%d, v%d' % (GO, GO, GO + 2))
    a('v_add_f32 v%d, v%d, v%d' % (GO + 1, GO + 1, GO + 3))
    a('s_cbranch_vccz L_pok')
    if sleep:
        a('s_sleep %d' % sleep)
    a('s_cmp_lt_u32 s%d, %d' % (sCnt, SPIN))
    a('s_cbranch_scc1 L_pg')
    a.label('L_pok')
    a('ds_write_b64 v%d, %s' % (vR2w, vr(GO, 2)))
    stamp()
    a.wait_lg()
    a('s_barrier')
    a('s_cmp_lg_u32 s%d, 0' % sW)
    a('s_cbranch_scc1 L_fin')
    lt = [a('ds_read_b64 %s, v%d offset:%d' % (vr(R + 2 * w, 2), vR2w, w * 512)) for w in range(4)]
    a('s_mov_b32 s%d, 0' % sCnt)
    a.wait_lg(lt[1])
    for c in range(2):
        a('v_add_f32 v%d, v%d, v%d' % (R + c, R + c, R + 2 + c))
    a.wait_lg(lt[3])
    for c in range(2):
        a('v_add_f32 v%d, v%d, v%d' % (R + 4 + c, R + 4 + c, R + 6 + c))
    for c in range(2):
        a('v_add_f32 v%d, v%d, v%d' % (GO + c, R + c, R + 4 + c))
    xor3(GO + 2, GO, GO + 1, vTag)
    a('buffer_store_dwordx4 %s, v%d, %s, s%d offen sc1' % (vr(GO, 4), vT16, sr(rWS, 4), sGa + 4))
    stamp()
    a('s_lshl_b32 s%d, s%d, 2' % (sT1, sP))
    a('v_mov_b32 v%d, s%d' % (Gq + 8, sT1))
    a.label('L_og')
    a('buffer_load_dwordx4 %s, v%d, %s, s%d offen sc1' % (vr(Gq, 4), vOo, sr(rWS, 4), sGa + 5))
    a.wait_vm0()
    xor3(C + 4, Gq, Gq + 1, Gq + 2)
    a('v_cmp_ne_u32 vcc, v%d, v%d' % (C + 4, vTag))
    allred([Gq, Gq + 1], 'add_f32', [C, C + 1])
    for c in range(2):
        rnd(Gq + c, Gq + c)
    for c in range(2):
        a('v_add_f32 v%d, v%d, v%d' % (Gq + c, Gq + c, vXu + c))
    for c in range(2):
        rnd(Gq + c, Gq + c)
    for c in range(2):
        a('v_add_f32 v%d, v%d, v%d' % (Gq + c, Gq + c, vY + c))
    a('v_cvt_pk_bf16_f32 v%d, v%d, v%d' % (Gq, Gq, Gq + 1))
    a('s_add_u32 s%d, s%d, 1' % (sCnt, sCnt))
    a('s_cbranch_vccz L_ook')
    if sleep:
        a('s_sleep %d' % sleep)
    a('s_cmp_lt_u32 s%d, %d' % (sCnt, SPIN))
    a('s_cbranch_scc1 L_og')
    a.label('L_ook')
    a('s_mov_b64 exec, 1')
    a('global_store_dword v%d, v%d, %s' % (Gq + 8, Gq, sr(pOUT, 2)))
    a('s_cmp_lg_u32 s2, 0')
    a('s_cbranch_scc1 L_fin')
    a('buffer_store_dword v%d, off, %s, 0 sc1' % (vTag, sr(rWS, 4)))
    a.label('L_fin')
    if stamps:
        a('s_memrealtime s[30:31]')
        a.wait_lg()
        a('s_mov_b64 exec, 1')
        a('s_getreg_b32 s%d, hwreg(HW_REG_XCC_ID)' % sT2)
        for i in range(11):
            a('v_mov_b32 v%d, s%d' % (vS + i, sST + 2 * i if i < nst[0] else sST))
        a('v_mov_b32 v%d, s30' % (vS + 11))
        a('v_mov_b32 v%d, s%d' % (vS + 12, sCnt))
        a('v_mov_b32 v%d, s%d' % (vS + 13, sT2))
        a('s_lshl_b32 s%d, s2, 2' % sT1)
        a('s_add_u32 s%d, s%d, s%d' % (sT1, sT1, sW))
        a('s_lshl_b32 s%d, s%d, 6' % (sT1, sT1))
        a('s_add_u32 s%d, s%d, 0x%x' % (sT1, sT1, WS_STAMP))
        for i in range(4):
            a('buffer_store_dwordx4 %s, off, %s, s%d offset:%d' % (vr(vS + 4 * i, 4), sr(rWS, 4), sT1, 16 * i))
    a('s_endpgm')
    a.label('L_qretry')
    a.cond += 1
    a('s_mov_b32 s%d, 0' % sCnt)
    a.label('L_qr')
    q_loads()
    a('s_waitcnt vmcnt(0)')
    q_check()
    a('s_cbranch_vccz L_qok')
    a('s_add_u32 s%d, s%d, 1' % (sCnt, sCnt))
    a('s_cmp_lt_u32 s%d, %d' % (sCnt, SPIN))
    a('s_cbranch_scc1 L_qr')
    a('s_branch L_qok')
    a.cond -= 1
    a.label('L_codeend')
    a('s_endpgm')
    a.raw('.section .rodata,"a"')
    a.raw('.p2align 6')
    a.raw('.amdhsa_kernel ' + KN)
    for l in ('.amdhsa_next_free_vgpr 512', '.amdhsa_next_free_sgpr 102', '.amdhsa_accum_offset 256',
              '.amdhsa_group_segment_fixed_size 0', '.amdhsa_kernarg_size 104', '.amdhsa_user_sgpr_count 2',
              '.amdhsa_user_sgpr_kernarg_segment_ptr 1', '.amdhsa_system_sgpr_workgroup_id_x 1',
              '.amdhsa_float_denorm_mode_32 3'):
        a.raw('  ' + l)
    a.raw('.end_amdhsa_kernel')
    if verbose:
        print('late', late, 'N', N, 'vgpr', va.next, file=sys.stderr)
    return a.text()


if __name__ == '__main__':
    out = sys.argv[1]
    kw = eval('dict(%s)' % (sys.argv[2] if len(sys.argv) > 2 else ''))
    open(out, 'w').write(gen(verbose=True, **kw))
```

```python
import sys, math, struct
from asmlib import *

KN = "parallel_sum__gqa_block_cached__mixer_token_mlp__decode_kernel"
REF = "parallel_sum__gqa_block_cached__mixer_token_mlp__decode.s.ref"


def f32(x):
    return '0x%08x' % struct.unpack('<I', struct.pack('<f', x))[0]


WS_EPOCH = 0
WS_Q = 0x10000
WS_PART = 0x100000
WS_OUTP = 0x200000
WS_STAMP = 0x300000
WS_SIZE = 0x400000
L_K = 0
L_WQ = 131072
L_RED = L_WQ
L_RED2 = L_RED + 8192
L_XN = 147456
L_QL = L_XN + 1024
L_ML = L_QL + 1024
L_YP = L_ML + 128
L_XF = L_YP + 32
LDS_BYTES = 150016
OST = 1152
SPIN = 4000
LOG2E = 1.4426950408889634


def gen(W0=4, W=4, sub=1, mapping='mod', stamps=False, nv_pre=4, qpos='V0b', d1=1, d2=1, wo_pos='K3b', prefetch=True,
        tailpf=True, sleep=0, verbose=False, PST=4096, pflag='', pld='sc1', skip=()):
    a = Asm()
    hdr = [l for l in open(REF).read().split('\n') if l.startswith(';') and '@launch' not in l]
    for l in hdr:
        a.raw(l)
    a.raw('; @launch grid=(256,1,1) block=(256,1,1) lds=%d' % LDS_BYTES)
    a.raw('.amdgcn_target "amdgcn-amd-amdhsa--gfx950"')
    a.raw('.text')
    a.raw('.globl ' + KN)
    a.raw('.p2align 8')
    a.raw('.type %s,@function' % KN)
    a.label(KN)

    sW = 3
    pX, pK, pV, pWQ, pWO, pW1, pB1, pW2, pB2, pOUT, pWS = 4, 6, 8, 10, 12, 16, 18, 20, 22, 24, 28
    rK, rV, rWQ, rWO, rWS, rW1, rB1, rW2 = 32, 36, 40, 44, 48, 52, 56, 60
    sG, sC, sP, sJ = 64, 65, 66, 67
    sKL = 68
    sT0, sT1, sT2 = 69, 70, 71
    sOff = 72
    sCnt = 73
    sQg, sPub = 74, 75
    sPC = 76
    sXcc, sMode = 30, 31
    sC0, sC1 = 78, 79
    sST = 80
    nst = [0]

    def stamp():
        if stamps:
            assert nst[0] < 11
            a('s_memrealtime %s' % sr(sST + 2 * nst[0], 2))
            nst[0] += 1

    va = VAlloc(1)
    vL = va(); vTag = va(); vT16 = va(); vL4 = va()
    vKo = va(4); vKa = va(4); vVo = va(2); vSel = va(4)
    vM = va(); vLs = va(); vY = va(2); vXp = va(); vB2 = va(); vJunk = va(); vTmp = va(8, 4)
    vZ = va(32, 4)
    vQ = va(32, 4)
    vKf = va(32, 4)
    vS = va(64, 4)
    vAS = va(8, 4)
    vO = va(8, 4)
    vWt = va(8, 4)
    vWOr = va(16, 4)
    vX = vZ; vXf = vZ + 4; vW1 = vZ + 12; vB1 = vZ + 16; vW2 = vZ + 20; vH = vZ + 24
    vWOp = vZ
    T = vKf

    def rnd(d, s):
        a('v_cvt_pk_bf16_f32 v%d, 0, v%d' % (d, s))

    def allred(regs, op, tmps, bits=(0, 1, 2, 3, 4, 5)):
        for b in bits:
            if b < 4:
                for r in regs:
                    a('v_%s_dpp v%d, v%d, v%d row_ror:%d row_mask:0xf bank_mask:0xf' % (op, r, r, r, 1 << b))
            else:
                for r, t in zip(regs, tmps):
                    a('v_mov_b32 v%d, v%d' % (t, r))
                for r, t in zip(regs, tmps):
                    a('v_permlane%d_swap_b32 v%d, v%d' % (16 if b == 4 else 32, r, t))
                for r, t in zip(regs, tmps):
                    a('v_%s v%d, v%d, v%d' % (op, r, r, t))

    def xor3(d, x, y, z):
        a('v_bitop3_b32 v%d, v%d, v%d, v%d bitop3:0x96' % (d, x, y, z))

    a('s_cmp_lt_u32 s2, 256')
    a('s_cbranch_scc1 L_go')
    a('s_endpgm')
    a.label('L_go')
    stamp()
    a('s_load_dwordx16 s[4:19], s[0:1], 0')
    a('s_load_dwordx8 s[20:27], s[0:1], 64')
    a('s_load_dwordx2 s[28:29], s[0:1], 96')
    a('v_lshrrev_b32 v%d, 6, v0' % vTmp)
    a('v_and_b32 v%d, 63, v0' % vL)
    a('v_readfirstlane_b32 s%d, v%d' % (sW, vTmp))
    a('s_getpc_b64 %s' % sr(sPC, 2))
    a.label('L_pc')
    if prefetch:
        a('s_lshr_b32 s%d, s2, 3' % sT0)
        a('s_and_b32 s%d, s%d, 3' % (sT0, sT0))
        a('s_lshl_b32 s%d, s%d, 2' % (sT0, sT0))
        a('s_add_u32 s%d, s%d, s%d' % (sT0, sT0, sW))
        a('s_lshl_b32 s%d, s%d, 10' % (sT0, sT0))
        a('v_and_b32 v%d, 7, v0' % (vTmp + 1))
        a('v_lshlrev_b32 v%d, 7, v%d' % (vTmp + 1, vTmp + 1))
        a('v_add_u32 v%d, s%d, v%d' % (vTmp + 1, sT0, vTmp + 1))
        a('v_min_u32 v%d, L_codeend-L_pc-4, v%d' % (vTmp + 1, vTmp + 1))
        a('global_load_dword v%d, v%d, %s' % (vJunk, vTmp + 1, sr(sPC, 2)))
    a('s_and_b32 s%d, s2, 7' % sG)
    a('s_lshr_b32 s%d, s2, 3' % sC)
    a('s_lshl_b32 s%d, s%d, 5' % (sP, sG))
    a('s_add_u32 s%d, s%d, s%d' % (sP, sP, sC))
    a('s_lshr_b32 s%d, s%d, 3' % (sT1, sC))
    a('s_lshl_b32 s%d, s%d, 2' % (sT1, sT1))
    a('s_add_u32 s%d, s%d, s%d' % (sT1, sT1, sW))
    a('s_lshl_b32 s%d, s%d, 18' % (sT1, sT1))
    a('s_lshl_b32 s%d, s%d, 10' % (sT2, sG))
    a('s_add_u32 s%d, s%d, s%d' % (sT1, sT1, sT2))
    a('s_and_b32 s%d, s%d, 7' % (sT2, sC))
    a('s_lshl_b32 s%d, s%d, 7' % (sT2, sT2))
    a('s_add_u32 s%d, s%d, s%d' % (sT1, sT1, sT2))
    if mapping == 'mod':
        a('s_mov_b32 s%d, s%d' % (sJ, sP))
    else:
        a('s_lshr_b32 s%d, s2, 5' % sG)
        a('s_and_b32 s%d, s2, 31' % sC)
        a('s_mov_b32 s%d, s2' % sJ)
    i15, ks, bsw, vWq, l16, zero = vTmp + 2, vTmp + 3, vTmp + 4, vTmp + 5, vTmp + 6, vTmp + 7
    a('v_and_b32 v%d, 15, v%d' % (i15, vL))
    a('v_lshrrev_b32 v%d, 4, v%d' % (ks, vL))
    a('v_xor_b32 v%d, v%d, v%d' % (bsw, i15, ks))
    a('v_lshlrev_b32 v%d, 4, v%d' % (bsw, bsw))
    a('v_lshl_add_u32 v%d, v%d, 8, v%d' % (vKo, ks, bsw))
    for j in range(1, 4):
        a('v_xor_b32 v%d, 0x%x, v%d' % (vKo + j, j << 6, vKo))
    a('v_lshrrev_b32 v%d, 3, v%d' % (vWq, vL))
    a('v_lshlrev_b32 v%d, 13, v%d' % (vWq, vWq))
    a('v_and_b32 v%d, 7, v%d' % (l16, vL))
    a('v_lshl_add_u32 v%d, v%d, 4, v%d' % (vWq, l16, vWq))
    a('v_lshlrev_b32 v%d, 4, v%d' % (l16, vL))
    a('v_mov_b32 v%d, 0' % zero)
    a('s_lshl_b32 s%d, s%d, 18' % (sT0, sJ))
    a('s_lshl_b32 s%d, s%d, 13' % (sT2, sW))
    a('s_add_u32 s%d, s%d, s%d' % (sT0, sT0, sT2))
    a('s_lshl_b32 s%d, s%d, 15' % (sKL, sW))
    a('s_lshl_b32 s%d, s%d, 12' % (sT2, sW))
    a('s_add_u32 m0, s%d, %d' % (sT2, L_WQ))
    a('s_mov_b32 s%d, 0x%x' % (rWQ + 2, 31 * 8192 + 128))
    a('s_mov_b32 s%d, 0x20000' % (rWQ + 3))
    a('s_mov_b32 s%d, 0x3a000' % (rK + 2))
    a('s_mov_b32 s%d, 0x20000' % (rK + 3))
    a.wait_lg()
    stamp()
    tX = a('global_load_dwordx4 %s, v%d, %s' % (vr(vX, 4), l16, sr(pX, 2)))
    tE = a('global_load_dword v%d, v%d, %s sc1' % (vTag, zero, sr(pWS, 2)))
    a('s_add_u32 s%d, s%d, s%d' % (rWQ, pWQ, sT1))
    a('s_addc_u32 s%d, s%d, 0' % (rWQ + 1, pWQ + 1))
    a('s_add_u32 s%d, s%d, s%d' % (rK, pK, sT0))
    a('s_addc_u32 s%d, s%d, 0' % (rK + 1, pK + 1))

    vtok = {}
    tok = {}

    def parts(s):
        n = 4 // sub
        return range(s * n, (s + 1) * n)

    def issue(name, s):
        if name in skip:
            t = a('global_load_dword v%d, v%d, %s' % (vJunk, vL, sr(pWQ, 2)))
        elif name == 'WQ':
            for j in parts(s):
                if j:
                    a('s_mov_b32 s%d, 0x%x' % (sOff, j * (65536 - 1024)))
                t = a('buffer_load_dwordx4 v%d, %s, %s offen offset:%d nt lds' % (vWq, sr(rWQ, 4), 's%d' % sOff if j else '0', j * 1024))
        elif name == 'WO':
            for q in parts(s):
                a('s_mov_b32 s%d, %d' % (sOff, q * 4096))
                for r in range(4):
                    t = a('buffer_load_dword v%d, v%d, %s, s%d offen offset:%d nt' % (vWOr + q * 4 + r, vL4, sr(rWO, 4), sOff, r * 1024))
        elif name[0] == 'K':
            tl, half = int(name[1]), 'ab'.index(name[2])
            a('s_add_u32 m0, s%d, %d' % (sKL, (tl % 4) * 8192 + half * 4096))
            a('s_mov_b32 s%d, 0x%x' % (sOff, tl * 32768 + half * 4096))
            for j in parts(s):
                t = a('buffer_load_dwordx4 v%d, %s, s%d offen offset:%d nt lds' % (vKo + j, sr(rK, 4), sOff, j * 1024))
        else:
            tl, half = int(name[1]), 'ab'.index(name[2])
            a('s_mov_b32 s%d, 0x%x' % (sOff, tl * 32768))
            for r in parts(s):
                t = a('buffer_load_dwordx4 %s, v%d, %s, s%d offen offset:%d nt' % (ar(tl * 32 + half * 16 + r * 4, 4), vVo + half, sr(rV, 4), sOff, r * 256))
                vtok[(tl, half, r)] = t
        tok[name] = t
        return t

    names = ['WQ']
    for t in range(4):
        names += ['K%da' % t, 'K%db' % t]
    for t in range(nv_pre):
        names += ['V%da' % t, 'V%db' % t]
    for t in range(4, 8):
        names += ['K%da' % t, 'K%db' % t]
    for t in range(nv_pre, 8):
        names += ['V%da' % t, 'V%db' % t]
    names.insert(names.index(wo_pos) + 1, 'WO')
    seq = [(n, s) for n in names for s in range(sub)]
    Wn = W
    last = {n: i for i, (n, s) in enumerate(seq)}
    first = {}
    for i, (n, s) in enumerate(seq):
        first.setdefault(n, i)
    N = len(seq)

    def ready(n):
        return last[n] + Wn

    vTr, vXb, vXw, vQw, vQf = vWt, vWt + 1, vWt + 2, vWt + 3, vWt + 4
    small = {}

    def setup():
        a('s_getreg_b32 s%d, hwreg(HW_REG_XCC_ID, 0, 4)' % sXcc)
        a('s_mov_b32 s%d, 0x3a000' % (rV + 2))
        a('s_mov_b32 s%d, 0x20000' % (rV + 3))
        a('s_add_u32 s%d, s%d, s%d' % (rV, pV, sT0))
        a('s_addc_u32 s%d, s%d, 0' % (rV + 1, pV + 1))
        a('v_lshlrev_b32 v%d, 4, v0' % vT16)
        a('v_lshlrev_b32 v%d, 2, v%d' % (vL4, vL))
        for r, p in ((rW1, pW1), (rB1, pB1), (rW2, pW2)):
            a('s_mov_b32 s%d, s%d' % (r, p))
            a('s_mov_b32 s%d, s%d' % (r + 1, p + 1))
            a('s_mov_b32 s%d, 3584' % (r + 2))
            a('s_mov_b32 s%d, 0x20000' % (r + 3))
        a('s_lshl_b32 s%d, s%d, 2' % (sT1, sP))
        a('v_mov_b32 v%d, s%d' % (vXp, sT1))
        for r, v in ((rW1, vW1), (rB1, vB1), (rW2, vW2)):
            a('buffer_load_dwordx4 %s, v%d, %s, 0 offen' % (vr(v, 4), vT16, sr(r, 4)))
        a('global_load_ushort v%d, v%d, %s' % (vB2, zero, sr(pB2, 2)))
        small['t'] = a('global_load_dword v%d, v%d, %s' % (vXp, vXp, sr(pX, 2)))
        a('s_mov_b32 s%d, s%d' % (rWS, pWS))
        a('s_mov_b32 s%d, s%d' % (rWS + 1, pWS + 1))
        a('s_mov_b32 s%d, 0x%x' % (rWS + 2, WS_SIZE))
        a('s_mov_b32 s%d, 0x20000' % (rWS + 3))
        a('s_and_b32 s%d, s%d, 0xfc' % (sT1, sJ))
        a('s_add_u32 s%d, s%d, s%d' % (sT1, sT1, sW))
        a('s_lshl_b32 s%d, s%d, 14' % (sT1, sT1))
        a('s_and_b32 s%d, s%d, 3' % (sT2, sJ))
        a('s_lshl_b32 s%d, s%d, 8' % (sT2, sT2))
        a('s_add_u32 s%d, s%d, s%d' % (sT1, sT1, sT2))
        a('s_add_u32 s%d, s%d, s%d' % (rWO, pWO, sT1))
        a('s_addc_u32 s%d, s%d, 0' % (rWO + 1, pWO + 1))
        a('s_mov_b32 s%d, %d' % (rWO + 2, 15 * 1024 + 256))
        a('s_mov_b32 s%d, 0x20000' % (rWO + 3))
        a('v_lshlrev_b32 v%d, 4, v%d' % (vVo, i15))
        a('v_lshl_add_u32 v%d, v%d, 10, v%d' % (vVo, ks, vVo))
        a('v_add_u32 v%d, 4096, v%d' % (vVo + 1, vVo))
        a('v_lshl_add_u32 v%d, v%d, 8, v%d' % (vKa, i15, bsw))
        a('v_add_u32 v%d, s%d, v%d' % (vKa, sKL, vKa))
        for j in range(1, 4):
            a('v_xor_b32 v%d, 0x%x, v%d' % (vKa + j, j << 6, vKa))
        e = vTmp
        a('v_and_b32 v%d, 3, v%d' % (e, vL))
        a('v_bfe_u32 v%d, v%d, 2, 2' % (vTmp + 1, vL))
        a('s_lshl_b32 s%d, s%d, 5' % (sT1, sW))
        a('s_add_u32 s%d, s%d, %d' % (sT1, sT1, L_WQ))
        a('v_lshlrev_b32 v%d, 3, v%d' % (vTr, e))
        a('v_lshl_add_u32 v%d, v%d, 7, v%d' % (vTr, vTmp + 1, vTr))
        a('v_lshl_add_u32 v%d, v%d, 10, v%d' % (vTr, ks, vTr))
        a('v_add_u32 v%d, s%d, v%d' % (vTr, sT1, vTr))
        a('s_lshr_b32 s%d, s%d, 3' % (sT1, sP))
        a('s_and_b32 s%d, s%d, 3' % (sT1, sT1))
        a('s_lshl_b32 s%d, s%d, 8' % (sT2, sT1))
        a('s_add_u32 s%d, s%d, %d' % (sT2, sT2, L_XN))
        a('v_lshlrev_b32 v%d, 4, v%d' % (vXb, ks))
        a('v_add_u32 v%d, s%d, v%d' % (vXb, sT2, vXb))
        a('v_add_u32 v%d, %d, v%d' % (vXw, L_XN, l16))
        a('s_lshr_b32 s%d, s%d, 5' % (sT2, sP))
        a('s_lshl_b32 s%d, s%d, 2' % (sT2, sT2))
        a('s_add_u32 s%d, s%d, s%d' % (sT2, sT2, sT1))
        a('s_lshl_b32 s%d, s%d, 12' % (sPub, sT2))
        a('s_and_b32 s%d, s%d, 7' % (sT2, sP))
        a('s_lshl_b32 s%d, s%d, 2' % (sT2, sT2))
        a('s_add_u32 s%d, s%d, s%d' % (sT2, sT2, sW))
        a('s_lshl_b32 s%d, s%d, 7' % (sT2, sT2))
        a('s_add_u32 s%d, s%d, s%d' % (sPub, sPub, sT2))
        a('s_add_u32 s%d, s%d, 0x%x' % (sPub, sPub, WS_Q))
        a('v_and_b32 v%d, 1, v%d' % (vQw, vL))
        a('v_lshl_add_u32 v%d, v%d, 1, v%d' % (vQw, ks, vQw))
        a('v_lshlrev_b32 v%d, 4, v%d' % (vQw, vQw))
        a('v_lshlrev_b32 v%d, 8, v%d' % (vQf, vTmp + 1))
        a('v_lshl_add_u32 v%d, v%d, 4, v%d' % (vQf, ks, vQf))
        a('v_add_u32 v%d, %d, v%d' % (vQf, L_QL, vQf))
        a('s_lshl_b32 s%d, s%d, 14' % (sQg, sG))
        a('s_add_u32 s%d, s%d, 0x%x' % (sQg, sQg, WS_Q))
        a('s_mov_b32 s%d, 0x0c0c0c0c' % sC0)
        for k, (ev0, lo) in enumerate(((0, 0x0100), (2, 0x0100), (0, 0x0302), (2, 0x0302))):
            a('v_mov_b32 v%d, s%d' % (vSel + k, sC0))
            a('v_mov_b32 v%d, 0x%08x' % (vTmp + 1, 0x0c0c0000 | lo))
            a('v_cmp_eq_u32 vcc, %d, v%d' % (ev0, e))
            a('v_cndmask_b32 v%d, v%d, v%d, vcc' % (vSel + k, vSel + k, vTmp + 1))
            a('v_mov_b32 v%d, 0x%08x' % (vTmp + 1, (lo << 16) | 0x0c0c))
            a('v_cmp_eq_u32 vcc, %d, v%d' % (ev0 + 1, e))
            a('v_cndmask_b32 v%d, v%d, v%d, vcc' % (vSel + k, vSel + k, vTmp + 1))

    def unpack(dst, src, n):
        for i in range(n):
            a('v_lshlrev_b32 v%d, 16, v%d' % (dst + 2 * i, src + i))
            a('v_and_b32 v%d, 0xffff0000, v%d' % (dst + 2 * i + 1, src + i))

    def ln_stats(xf, t):
        s, tm = t + 8, t + 9
        a('v_add_f32 v%d, v%d, v%d' % (t, xf, xf + 1))
        a('v_add_f32 v%d, v%d, v%d' % (t + 1, xf + 2, xf + 3))
        a('v_add_f32 v%d, v%d, v%d' % (t + 2, xf + 4, xf + 5))
        a('v_add_f32 v%d, v%d, v%d' % (t + 3, xf + 6, xf + 7))
        a('v_add_f32 v%d, v%d, v%d' % (t, t, t + 1))
        a('v_add_f32 v%d, v%d, v%d' % (t + 2, t + 2, t + 3))
        a('v_add_f32 v%d, v%d, v%d' % (s, t, t + 2))
        allred([s], 'add_f32', [tm])
        a('v_mul_f32 v%d, %s, v%d' % (s, f32(1 / 512), s))
        for i in range(8):
            a('v_sub_f32 v%d, v%d, v%d' % (t + i, xf + i, s))
        rnd(s, s)
        a('v_mul_f32 v%d, v%d, v%d' % (t, t, t))
        a('v_mul_f32 v%d, v%d, v%d' % (t + 1, t + 1, t + 1))
        for i in range(2, 8):
            a('v_fmac_f32 v%d, v%d, v%d' % (t + (i & 1), t + i, t + i))
        a('v_add_f32 v%d, v%d, v%d' % (t, t, t + 1))
        allred([t], 'add_f32', [tm])
        a('v_mul_f32 v%d, %s, v%d' % (t, f32(1 / 512), t))
        rnd(t, t)
        a('v_add_f32 v%d, %s, v%d' % (t, f32(1e-5), t))
        rnd(t, t)
        a('v_sqrt_f32 v%d, v%d' % (t, t))
        rnd(t, t)
        a('v_rcp_f32 v%d, v%d' % (t, t))
        return s, t

    def ln1():
        a.wait_vm(tE)
        a('s_mov_b32 s%d, 1664525' % sC0)
        a('v_mul_lo_u32 v%d, v%d, s%d' % (vTag, vTag, sC0))
        a('v_add_u32 v%d, 1013904223, v%d' % (vTag, vTag))
        unpack(vXf, vX, 4)
        mb, rc = ln_stats(vXf, T)
        for i in range(8):
            a('v_sub_f32 v%d, v%d, v%d' % (vXf + i, vXf + i, mb))
        for i in range(8):
            rnd(vXf + i, vXf + i)
        for i in range(8):
            a('v_mul_f32 v%d, v%d, v%d' % (vXf + i, vXf + i, rc))
        for i in range(4):
            a('v_cvt_pk_bf16_f32 v%d, v%d, v%d' % (vX + i, vXf + 2 * i, vXf + 2 * i + 1))
        a('ds_write_b128 v%d, %s' % (vXw, vr(vX, 4)))

    def qpart():
        a.wait_vm(tok['WQ'])
        a.wait_lg()
        stamp()
        a('s_barrier')
        for t in range(4):
            a('ds_read_b128 %s, v%d offset:%d' % (vr(vKf + 16 + 4 * t, 4), vXb, t * 64))
        lt = []
        for t in range(4):
            a('ds_read_b64_tr_b16 %s, v%d offset:%d' % (vr(vKf + 4 * t, 2), vTr, t * 4096))
            lt.append(a('ds_read_b64_tr_b16 %s, v%d offset:%d' % (vr(vKf + 4 * t + 2, 2), vTr, t * 4096 + 512)))
        a('s_mov_b32 vcc_lo, 0xaaaaaaaa')
        a('s_mov_b32 vcc_hi, 0xaaaaaaaa')
        for t in range(4):
            a.wait_lg(lt[t])
            a('v_mfma_f32_16x16x32_bf16 %s, %s, %s, %s' % (vr(vAS, 4), vr(vKf + 4 * t, 4), vr(vKf + 16 + 4 * t, 4), '0' if t == 0 else vr(vAS, 4)))
        G = vAS + 4
        a('v_cndmask_b32 v%d, v%d, v%d, vcc' % (G, vAS, vAS + 2))
        a('v_cndmask_b32 v%d, v%d, v%d, vcc' % (G + 1, vAS + 1, vAS + 3))
        a('v_mov_b32 v%d, s%d' % (G + 3, sXcc))
        xor3(G + 2, G, G + 1, vTag)
        a('v_xor_b32 v%d, v%d, v%d' % (G + 2, G + 2, G + 3))
        a('s_mov_b32 exec_lo, 0x00030003')
        a('s_mov_b32 exec_hi, 0x00030003')
        a('buffer_store_dwordx4 %s, v%d, %s, s%d offen sc1' % (vr(G, 4), vQw, sr(rWS, 4), sPub))
        a('s_mov_b64 exec, -1')
        stamp()

    def ln2():
        a.wait_vm(small['t'])
        unpack(vXf, vX, 4)
        a('s_lshl_b32 s%d, s%d, 2' % (sT1, sP))
        a('s_add_u32 s%d, s%d, %d' % (sT1, sT1, L_XN))
        a('v_mov_b32 v%d, s%d' % (vH, sT1))
        a('ds_read_b32 v%d, v%d' % (vH + 2, vH))
        mb, rc = ln_stats(vXf, T)
        a.wait_lg()
        unpack(vH, vH + 2, 1)
        for i in range(2):
            a('v_sub_f32 v%d, v%d, v%d' % (vH + i, vH + i, mb))
        for i in range(2):
            rnd(vH + i, vH + i)
        for i in range(2):
            a('v_mul_f32 v%d, v%d, v%d' % (vH + i, vH + i, rc))
        for i in range(2):
            rnd(vH + i, vH + i)
        a('v_mov_b32 v%d, 0' % vY)
        a('v_mov_b32 v%d, 0' % (vY + 1))

    c0 = -2.0 * math.sqrt(2.0 / math.pi) * LOG2E
    c1 = c0 * 0.044715

    def gelu_chunk(k):
        wf, bf_, u, tt = T, T + 2, T + 4, T + 8
        unpack(wf, vW1 + k, 1)
        unpack(bf_, vB1 + k, 1)
        a('s_mov_b32 s%d, %s' % (sC0, f32(c0)))
        a('v_mov_b32 v%d, %s' % (T + 12, f32(c1)))
        for c in range(2):
            for i in range(2):
                a('v_mul_f32 v%d, v%d, v%d' % (u + 2 * c + i, vH + c, wf + i))
        for i in range(4):
            rnd(u + i, u + i)
        for i in range(4):
            a('v_add_f32 v%d, v%d, v%d' % (u + i, u + i, bf_ + (i & 1)))
        for i in range(4):
            rnd(u + i, u + i)
        for i in range(4):
            a('v_mul_f32 v%d, v%d, v%d' % (tt + i, u + i, u + i))
        for i in range(4):
            a('v_fma_f32 v%d, v%d, v%d, s%d' % (tt + i, tt + i, T + 12, sC0))
        for i in range(4):
            a('v_mul_f32 v%d, v%d, v%d' % (tt + i, tt + i, u + i))
        for i in range(4):
            a('v_exp_f32 v%d, v%d' % (tt + i, tt + i))
        for i in range(4):
            a('v_add_f32 v%d, 1.0, v%d' % (tt + i, tt + i))
        for i in range(4):
            a('v_rcp_f32 v%d, v%d' % (tt + i, tt + i))
        for i in range(4):
            a('v_mul_f32 v%d, v%d, v%d' % (u + i, u + i, tt + i))
        for c in range(2):
            a('v_cvt_pk_bf16_f32 v%d, v%d, v%d' % (tt + c, u + 2 * c, u + 2 * c + 1))
        for c in range(2):
            a('v_dot2c_f32_bf16 v%d, v%d, v%d' % (vY + c, tt + c, vW2 + k))

    def y_finish():
        allred([vY, vY + 1], 'add_f32', [T, T + 1])
        a('s_lshl_b32 s%d, s%d, 3' % (sT1, sW))
        a('s_add_u32 s%d, s%d, %d' % (sT1, sT1, L_YP))
        a('v_mov_b32 v%d, s%d' % (T, sT1))
        a('s_mov_b64 exec, 1')
        a('ds_write_b64 v%d, %s' % (T, vr(vY, 2)))
        a('s_mov_b64 exec, -1')

    QG = vQ + 16

    def q_loads():
        for k in range(4):
            if k:
                a('s_add_u32 s%d, s%d, %d' % (sOff, sQg, k * 4096))
            tk = a('buffer_load_dwordx4 %s, v%d, %s, s%d offen sc1' % (vr(QG + 4 * k, 4), vT16, sr(rWS, 4), sOff if k else sQg))
        tok['QG'] = tk

    def q_check():
        for k in range(4):
            xor3(T + k, QG + 4 * k, QG + 4 * k + 1, QG + 4 * k + 2)
        for k in range(4):
            xor3(T + k, T + k, QG + 4 * k + 3, vTag)
        a('v_or3_b32 v%d, v%d, v%d, v%d' % (vTmp, T, T + 1, T + 2))
        a('v_or_b32 v%d, v%d, v%d' % (vTmp, vTmp, T + 3))
        a('v_cmp_ne_u32 vcc, 0, v%d' % vTmp)

    def q_issue():
        q_loads()
        stamp()

    def q_take():
        a.wait_vm(tok['QG'])
        q_check()
        a('s_cbranch_vccnz L_qretry')
        a.label('L_qok')
        for c in range(2):
            a('v_add_f32 v%d, v%d, v%d' % (QG + c, QG + c, QG + 4 + c))
            a('v_add_f32 v%d, v%d, v%d' % (QG + 8 + c, QG + 8 + c, QG + 12 + c))
        for c in range(2):
            a('v_add_f32 v%d, v%d, v%d' % (QG + c, QG + c, QG + 8 + c))
        a('v_cvt_pk_bf16_f32 v%d, v%d, v%d' % (QG, QG, QG + 1))
        a('v_lshlrev_b32 v%d, 2, v0' % (QG + 1))
        a('v_add_u32 v%d, %d, v%d' % (QG + 1, L_QL, QG + 1))
        a('ds_write_b32 v%d, v%d' % (QG + 1, QG))
        for k in range(4):
            a('v_xor_b32 v%d, s%d, v%d' % (T + k, sXcc, QG + 4 * k + 3))
        a('v_or3_b32 v%d, v%d, v%d, v%d' % (T, T, T + 1, T + 2))
        a('v_or_b32 v%d, v%d, v%d' % (T, T, T + 3))
        a('v_cmp_ne_u32 vcc, 0, v%d' % T)
        a('s_lshl_b32 s%d, s%d, 2' % (sT1, sW))
        a('s_add_u32 s%d, s%d, %d' % (sT1, sT1, L_XF))
        a('s_or_b32 s%d, vcc_lo, vcc_hi' % sT2)
        a('v_mov_b32 v%d, s%d' % (T, sT1))
        a('v_mov_b32 v%d, s%d' % (T + 1, sT2))
        a('ds_write_b32 v%d, v%d' % (T, T + 1))

    def q_mode():
        a.wait_lg(tok['XF'])
        a('v_or3_b32 v%d, v%d, v%d, v%d' % (vTmp + 4, vTmp + 4, vTmp + 5, vTmp + 6))
        a('v_or_b32 v%d, v%d, v%d' % (vTmp + 4, vTmp + 4, vTmp + 7))
        a('v_readfirstlane_b32 s%d, v%d' % (sMode, vTmp + 4))
        if mapping != 'mod':
            a('s_mov_b32 s%d, 1' % sMode)

    def q_frag():
        a('v_mov_b32 v%d, %d' % (vTmp, L_XF))
        a.wait_lg()
        a('s_barrier')
        tok['XF'] = a('ds_read_b128 %s, v%d' % (vr(vTmp + 4, 4), vTmp))
        for t in range(4):
            a('ds_read_b128 %s, v%d offset:%d' % (vr(vQ + 4 * t, 4), vQf, t * 64))
        stamp()

    SCALE = float(struct.unpack('<f', struct.pack('<f', 128 ** -0.5))[0])

    def qk(t):
        a.wait_vm(tok['K%db' % t])
        lt = {}
        for g in range(2):
            for k in range(4):
                lt[g, k] = a('ds_read_b128 %s, v%d offset:%d' % (vr(vKf + g * 16 + k * 4, 4), vKa + k, (t % 4) * 8192 + g * 4096))
        for g in range(2):
            for k in range(4):
                a.wait_lg(lt[g, k])
                a('v_mfma_f32_16x16x32_bf16 %s, %s, %s, %s' % (vr(vAS + 4 * g, 4), vr(vKf + g * 16 + k * 4, 4), vr(vQ + k * 4, 4), '0' if k == 0 else vr(vAS + 4 * g, 4)))
        S = vS + t * 8
        a('s_mov_b32 s%d, %s' % (sC0, f32(SCALE)))
        for i in range(8):
            rnd(S + i, vAS + i)
        for i in range(8):
            a('v_mul_f32 v%d, s%d, v%d' % (S + i, sC0, S + i))
        for i in range(8):
            rnd(S + i, S + i)
        if t == 0:
            a('v_max3_f32 v%d, v%d, v%d, v%d' % (vM, S, S + 1, S + 2))
            a('v_max3_f32 v%d, v%d, v%d, v%d' % (vM, vM, S + 3, S + 4))
            a('v_max3_f32 v%d, v%d, v%d, v%d' % (vM, vM, S + 5, S + 6))
            a('v_max_f32 v%d, v%d, v%d' % (vM, vM, S + 7))
        else:
            for i in range(4):
                a('v_max3_f32 v%d, v%d, v%d, v%d' % (vM, vM, S + 2 * i, S + 2 * i + 1))
        if t == 7:
            stamp()

    def sm_max():
        allred([vM], 'max_f32', [vTmp], bits=(4, 5))
        a('v_mul_f32 v%d, %s, v%d' % (vM, f32(LOG2E), vM))
        a('v_mov_b32 v%d, 0' % vLs)
        a('v_mov_b32 v%d, 0' % (vTmp + 1))

    def sm_exp(t):
        S = vS + t * 8
        a('s_mov_b32 s%d, %s' % (sC0, f32(LOG2E)))
        for i in range(8):
            a('v_fma_f32 v%d, v%d, s%d, -v%d' % (S + i, S + i, sC0, vM))
        for i in range(8):
            a('v_exp_f32 v%d, v%d' % (S + i, S + i))
        for i in range(4):
            a('v_add_f32 v%d, v%d, v%d' % (vLs, vLs, S + 2 * i))
            a('v_add_f32 v%d, v%d, v%d' % (vTmp + 1, vTmp + 1, S + 2 * i + 1))
        for i in range(4):
            a('v_cvt_pk_bf16_f32 v%d, v%d, v%d' % (S + i, S + 2 * i, S + 2 * i + 1))

    def sm_fin():
        a('v_add_f32 v%d, v%d, v%d' % (vLs, vLs, vTmp + 1))
        allred([vLs], 'add_f32', [vTmp], bits=(4, 5))
        a('s_lshl_b32 s%d, s%d, 3' % (sT1, sW))
        a('s_add_u32 s%d, s%d, %d' % (sT1, sT1, L_ML))
        a('v_lshlrev_b32 v%d, 3, v%d' % (vTmp, vL))
        a('v_add_u32 v%d, s%d, v%d' % (vTmp, sT1, vTmp))
        a('s_mov_b64 exec, 0x1111')
        a('ds_write_b64 v%d, %s' % (vTmp, vr(vM, 2)))
        a('s_mov_b64 exec, -1')

    def p_prep(t):
        P = vKf + (t & 1) * 16
        S = vS + t * 8
        for g in range(2):
            for r in range(4):
                pk = S + g * 2 + (r >> 1)
                sl = vSel + (r & 1) * 2
                a('v_perm_b32 v%d, v%d, v%d, v%d' % (P + g * 8 + r * 2, pk, pk, sl))
                a('v_perm_b32 v%d, v%d, v%d, v%d' % (P + g * 8 + r * 2 + 1, pk, pk, sl + 1))

    def pv(t, fine=False):
        P = vKf + (t & 1) * 16
        if not fine:
            a.wait_vm(tok['V%db' % t])
        for g in range(2):
            for r in range(4):
                if fine:
                    a.wait_vm(vtok[(t, g, r)])
                for hf in range(2):
                    fst = (t == 0 and g == 0 and r == 0)
                    a('v_mfma_f32_16x16x16_bf16 %s, %s, %s, %s' % (vr(vO + 4 * hf, 4), vr(P + g * 8 + r * 2, 2), ar(t * 32 + g * 16 + r * 4 + hf * 2, 2), '0' if fst else vr(vO + 4 * hf, 4)))

    def wo_pair():
        a.wait_vm(tok['WO'])
        a('s_mov_b32 s%d, 0x05040100' % sC0)
        a('s_mov_b32 s%d, 0x07060302' % sC1)
        for k in range(8):
            a('v_perm_b32 v%d, v%d, v%d, s%d' % (vWOp + k, vWOr + 2 * k + 1, vWOr + 2 * k, sC0))
            a('v_perm_b32 v%d, v%d, v%d, s%d' % (vWOp + 8 + k, vWOr + 2 * k + 1, vWOr + 2 * k, sC1))

    vRw, vRr, vPo, vOo = vWOr, vWOr + 1, vWOr + 2, vWOr + 3
    vR2w, vR2r = vWOr + 4, vWOr + 5
    sGa = 52

    def tail_setup():
        if tailpf:
            a('v_and_b32 v%d, 31, v0' % vTmp)
            a('v_lshlrev_b32 v%d, 7, v%d' % (vTmp, vTmp))
            a('v_add_u32 v%d, L_tail-L_pc, v%d' % (vTmp, vTmp))
            a('v_min_u32 v%d, L_codeend-L_pc-4, v%d' % (vTmp, vTmp))
            a('global_load_dword v%d, v%d, %s' % (vJunk, vTmp, sr(sPC, 2)))
        a('s_lshl_b32 s%d, s%d, 11' % (sT1, sW))
        a('s_add_u32 s%d, s%d, %d' % (sT1, sT1, L_RED))
        a('v_lshlrev_b32 v%d, 5, v%d' % (vRw, vL))
        a('v_add_u32 v%d, s%d, v%d' % (vRw, sT1, vRw))
        a('v_lshlrev_b32 v%d, 3, v0' % vRr)
        a('v_add_u32 v%d, %d, v%d' % (vR2w, L_RED2, vRr))
        a('v_add_u32 v%d, %d, v%d' % (vRr, L_RED, vRr))
        a('v_lshrrev_b32 v%d, 3, v%d' % (vPo, vL))
        a('v_mul_u32_u24 v%d, %d, v%d' % (vPo, PST, vPo))
        a('v_and_b32 v%d, 7, v%d' % (vOo, vL))
        a('v_lshl_add_u32 v%d, v%d, 4, v%d' % (vPo, vOo, vPo))
        a('v_mul_u32_u24 v%d, %d, v%d' % (vOo, OST, vL))
        a('s_mul_i32 s%d, s%d, %d' % (sPub, sJ, PST))
        a('s_add_u32 s%d, s%d, 0x%x' % (sPub, sPub, WS_PART))
        a('s_and_b32 s%d, s%d, 0xe0' % (sT1, sJ))
        a('s_mul_i32 s%d, s%d, %d' % (sT1, sT1, PST))
        a('s_and_b32 s%d, s%d, 0x1c' % (sT2, sJ))
        a('s_add_u32 s%d, s%d, s%d' % (sT2, sT2, sW))
        a('s_lshl_b32 s%d, s%d, 7' % (sT2, sT2))
        a('s_add_u32 s%d, s%d, s%d' % (sT1, sT1, sT2))
        for jj in range(4):
            a('s_add_u32 s%d, s%d, 0x%x' % (sGa + jj, sT1, WS_PART + jj * 8 * PST))
        a('s_and_b32 s%d, s%d, 3' % (sT1, sJ))
        a('s_lshl_b32 s%d, s%d, 6' % (sT1, sT1))
        a('s_lshr_b32 s%d, s%d, 2' % (sT2, sJ))
        a('s_add_u32 s%d, s%d, s%d' % (sT1, sT1, sT2))
        a('s_mul_i32 s%d, s%d, %d' % (sT1, sT1, OST))
        a('s_add_u32 s%d, s%d, 0x%x' % (sGa + 4, sT1, WS_OUTP))
        a('s_and_b32 s%d, s%d, 0xc0' % (sT1, sP))
        a('s_mul_i32 s%d, s%d, %d' % (sT1, sT1, OST))
        a('s_and_b32 s%d, s%d, 63' % (sT2, sP))
        a('s_lshl_b32 s%d, s%d, 4' % (sT2, sT2))
        a('s_add_u32 s%d, s%d, s%d' % (sT1, sT1, sT2))
        a('s_add_u32 s%d, s%d, 0x%x' % (sGa + 5, sT1, WS_OUTP))

    sched = {i: [] for i in range(-1, N)}

    def at(i, f):
        i = min(i, N - 1)
        sched[i].append(f)
        return i

    p = W0 * sub - 1
    at(p, setup)
    at(p, ln1)
    p = at(max(ready('WQ') + d1 * sub, p), qpart)
    for f in [ln2] + [lambda k=k: gelu_chunk(k) for k in range(4)] + [y_finish]:
        p = at(p + sub, f)
    pq = at(last[qpos], q_issue)
    p1 = at(pq + Wn, q_take)
    p2 = at(p1 + d2 * sub, q_frag)
    assert p <= p2, 'gelu must finish before qk'
    assert p2 < first['K4a'], (p2, first['K4a'])
    p = p2
    for t in range(4):
        p = at(min(max(p, p2 + t * sub), first['K%da' % (t + 4)] - 1), lambda t=t: qk(t))
    at(p, q_mode)
    at(max(ready('WO'), p), wo_pair)
    at(max(ready('WO'), p), tail_setup)
    for t in range(4, 8):
        p = at(ready('K%db' % t), lambda t=t: qk(t))
    at(p, sm_max)
    for t in range(0, 8, 2):
        p = at(p + (sub if t % 4 else 0), lambda t=t: (sm_exp(t), sm_exp(t + 1)))
    at(p, sm_fin)
    late = []
    for t in range(8):
        r = max(ready('V%db' % t), p)
        if r < N - 1 and t < 7:
            at(r, lambda t=t: (p_prep(t), pv(t)))
        else:
            late.append(t)
    utok = []
    for i, (n, s) in enumerate(seq):
        if i >= W0 * sub and i - Wn >= 0:
            a.wait_vm(utok[i - Wn])
        a.comment('unit %s.%d' % (n, s))
        utok.append(issue(n, s))
        for f in sched[i]:
            f()
    a.label('L_tail')
    a.wait_lg()
    a('s_barrier')
    vA = vTmp
    a('s_lshl_b32 s%d, s%d, 5' % (sT1, sW))
    a('s_add_u32 s%d, s%d, %d' % (sT1, sT1, L_ML))
    a('v_mov_b32 v%d, s%d' % (vA, sT1))
    ML = vQ
    a('ds_read_b128 %s, v%d' % (vr(ML, 4), vA))
    a('ds_read_b128 %s, v%d offset:16' % (vr(ML + 4, 4), vA))
    a('v_mov_b32 v%d, %d' % (vA + 1, L_YP))
    a('ds_read_b128 %s, v%d' % (vr(ML + 8, 4), vA + 1))
    a('ds_read_b128 %s, v%d offset:16' % (vr(ML + 12, 4), vA + 1))
    a.wait_lg()
    Mx = vWt + 4
    a('v_max3_f32 v%d, v%d, v%d, v%d' % (Mx, ML, ML + 2, ML + 4))
    a('v_max_f32 v%d, v%d, v%d' % (Mx, Mx, ML + 6))
    for w in range(4):
        a('v_sub_f32 v%d, v%d, v%d' % (vWt + w, ML + 2 * w, Mx))
    for w in range(4):
        a('v_exp_f32 v%d, v%d' % (vWt + w, vWt + w))
    Ls = vWt + 5
    a('v_mul_f32 v%d, v%d, v%d' % (Ls, vWt, ML + 1))
    for w in range(1, 4):
        a('v_fmac_f32 v%d, v%d, v%d' % (Ls, vWt + w, ML + 2 * w + 1))
    a('v_rcp_f32 v%d, v%d' % (vWt + 6, Ls))
    a('v_log_f32 v%d, v%d' % (Ls, Ls))
    for w in range(4):
        a('v_mul_f32 v%d, v%d, v%d' % (vWt + w, vWt + w, vWt + 6))
    GP = vTmp + 4
    a('v_add_f32 v%d, v%d, v%d' % (GP + 2, Mx, Ls))
    a('v_xor_b32 v%d, v%d, v%d' % (GP + 3, GP + 2, vTag))
    for c in range(2):
        a('v_add_f32 v%d, v%d, v%d' % (ML + 8 + c, ML + 8 + c, ML + 10 + c))
        a('v_add_f32 v%d, v%d, v%d' % (ML + 12 + c, ML + 12 + c, ML + 14 + c))
    a('v_lshlrev_b32 v%d, 16, v%d' % (vB2, vB2))
    for c in range(2):
        a('v_add_f32 v%d, v%d, v%d' % (vY + c, ML + 8 + c, ML + 12 + c))
    for c in range(2):
        rnd(vY + c, vY + c)
    for c in range(2):
        a('v_add_f32 v%d, v%d, v%d' % (vY + c, vY + c, vB2))
    for c in range(2):
        rnd(vY + c, vY + c)
    vXu = vWt + 6
    unpack(vXu, vXp, 1)
    for t in late:
        p_prep(t)
        pv(t, fine=True)
    stamp()
    a('ds_write_b128 v%d, %s' % (vRw, vr(vO, 4)))
    a('ds_write_b128 v%d, %s offset:16' % (vRw, vr(vO + 4, 4)))
    a.wait_lg()
    a('s_barrier')
    R = vQ
    lt = [a('ds_read_b64 %s, v%d offset:%d' % (vr(R + 2 * w, 2), vRr, w * 2048)) for w in range(4)]
    a('s_mov_b32 s%d, 0' % sCnt)
    for w in range(4):
        a.wait_lg(lt[w])
        for c in range(2):
            if w == 0:
                a('v_mul_f32 v%d, v%d, v%d' % (GP + c, vWt, R + c))
            else:
                a('v_fmac_f32 v%d, v%d, v%d' % (GP + c, vWt + w, R + 2 * w + c))
    xor3(GP + 3, GP + 3, GP, GP + 1)
    a('s_cmp_lg_u32 s%d, 0' % sMode)
    a('s_cbranch_scc1 L_pslow')
    a('buffer_store_dwordx4 %s, v%d, %s, s%d offen %s' % (vr(GP, 4), vT16, sr(rWS, 4), sPub, pflag))
    a.label('L_pback')
    stamp()
    a.label('L_pg')
    Gq = vQ
    for jj in range(4):
        a('buffer_load_dwordx4 %s, v%d, %s, s%d offen %s' % (vr(Gq + 4 * jj, 4), vPo, sr(rWS, 4), sGa + jj, pld))
    GO = vTmp
    for i in range(4):
        a('v_mov_b32 v%d, 0' % (GO + i))
    a.wait_vm0()
    C = vQ + 16
    Mx = C + 4
    a('v_max3_f32 v%d, v%d, v%d, v%d' % (Mx, Gq + 2, Gq + 6, Gq + 10))
    a('v_max_f32 v%d, v%d, v%d' % (Mx, Mx, Gq + 14))
    K = C + 12
    for jj in range(2):
        xor3(K + jj, Gq + 4 * jj, Gq + 4 * jj + 1, Gq + 4 * jj + 2)
    a('v_max_f32_dpp v%d, v%d, v%d row_ror:8 row_mask:0xf bank_mask:0xf' % (Mx, Mx, Mx))
    a('v_mov_b32 v%d, v%d' % (C + 5, Mx))
    for jj in range(2, 4):
        xor3(K + jj, Gq + 4 * jj, Gq + 4 * jj + 1, Gq + 4 * jj + 2)
    a('v_permlane16_swap_b32 v%d, v%d' % (Mx, C + 5))
    a('v_max_f32 v%d, v%d, v%d' % (Mx, Mx, C + 5))
    a('v_mov_b32 v%d, v%d' % (C + 5, Mx))
    for jj in range(2):
        xor3(K + jj, K + jj, Gq + 4 * jj + 3, vTag)
    a('v_permlane32_swap_b32 v%d, v%d' % (Mx, C + 5))
    a('v_max_f32 v%d, v%d, v%d' % (Mx, Mx, C + 5))
    for jj in range(4):
        a('v_sub_f32 v%d, v%d, v%d' % (C + jj, Gq + 4 * jj + 2, Mx))
    for jj in range(4):
        a('v_exp_f32 v%d, v%d' % (C + jj, C + jj))
    A0, A1, Wt = C + 8, C + 9, C + 10
    a('v_mul_f32 v%d, v%d, v%d' % (A0, C, Gq))
    a('v_mul_f32 v%d, v%d, v%d' % (A1, C, Gq + 1))
    a('v_add_f32 v%d, v%d, v%d' % (Wt, C, C + 1))
    for jj in range(1, 4):
        a('v_fmac_f32 v%d, v%d, v%d' % (A0, C + jj, Gq + 4 * jj))
        a('v_fmac_f32 v%d, v%d, v%d' % (A1, C + jj, Gq + 4 * jj + 1))
        if jj > 1:
            a('v_add_f32 v%d, v%d, v%d' % (Wt, Wt, C + jj))
    allred([Wt, A0, A1], 'add_f32', [C, C + 1, C + 2], bits=(3, 4, 5))
    a('v_rcp_f32 v%d, v%d' % (Wt, Wt))
    for jj in range(2, 4):
        xor3(K + jj, K + jj, Gq + 4 * jj + 3, vTag)
    a('v_mul_f32 v%d, v%d, v%d' % (A0, A0, Wt))
    a('v_mul_f32 v%d, v%d, v%d' % (A1, A1, Wt))
    a('v_cvt_pk_bf16_f32 v%d, v%d, v%d' % (A0, A0, A1))
    a('v_or3_b32 v%d, v%d, v%d, v%d' % (K, K, K + 1, K + 2))
    a('v_or_b32 v%d, v%d, v%d' % (K, K, K + 3))
    for k in range(8):
        for c in range(2):
            a('v_dot2c_f32_bf16_dpp v%d, v%d, v%d row_newbcast:%d row_mask:0xf bank_mask:0xf' % (GO + c + 2 * (k & 1), A0, vWOp + 8 * c + k, k))
    a('v_cmp_ne_u32 vcc, 0, v%d' % K)
    a('s_add_u32 s%d, s%d, 1' % (sCnt, sCnt))
    a('v_add_f32 v%d, v%d, v%d' % (GO, GO, GO + 2))
    a('v_add_f32 v%d, v%d, v%d' % (GO + 1, GO + 1, GO + 3))
    a('s_cbranch_vccz L_pok')
    if sleep:
        a('s_sleep %d' % sleep)
    a('s_cmp_lt_u32 s%d, %d' % (sCnt, SPIN))
    a('s_cbranch_scc1 L_pg')
    a.label('L_pok')
    a('ds_write_b64 v%d, %s' % (vR2w, vr(GO, 2)))
    stamp()
    a.wait_lg()
    a('s_barrier')
    a('s_cmp_lg_u32 s%d, 0' % sW)
    a('s_cbranch_scc1 L_fin')
    lt = [a('ds_read_b64 %s, v%d offset:%d' % (vr(R + 2 * w, 2), vR2w, w * 512)) for w in range(4)]
    a('s_mov_b32 s%d, 0' % sCnt)
    a.wait_lg(lt[1])
    for c in range(2):
        a('v_add_f32 v%d, v%d, v%d' % (R + c, R + c, R + 2 + c))
    a.wait_lg(lt[3])
    for c in range(2):
        a('v_add_f32 v%d, v%d, v%d' % (R + 4 + c, R + 4 + c, R + 6 + c))
    for c in range(2):
        a('v_add_f32 v%d, v%d, v%d' % (GO + c, R + c, R + 4 + c))
    xor3(GO + 2, GO, GO + 1, vTag)
    a('buffer_store_dwordx4 %s, v%d, %s, s%d offen sc1' % (vr(GO, 4), vT16, sr(rWS, 4), sGa + 4))
    stamp()
    a('s_lshl_b32 s%d, s%d, 2' % (sT1, sP))
    a('v_mov_b32 v%d, s%d' % (Gq + 8, sT1))
    a.label('L_og')
    a('buffer_load_dwordx4 %s, v%d, %s, s%d offen sc1' % (vr(Gq, 4), vOo, sr(rWS, 4), sGa + 5))
    a.wait_vm0()
    xor3(C + 4, Gq, Gq + 1, Gq + 2)
    a('v_cmp_ne_u32 vcc, v%d, v%d' % (C + 4, vTag))
    allred([Gq, Gq + 1], 'add_f32', [C, C + 1])
    for c in range(2):
        rnd(Gq + c, Gq + c)
    for c in range(2):
        a('v_add_f32 v%d, v%d, v%d' % (Gq + c, Gq + c, vXu + c))
    for c in range(2):
        rnd(Gq + c, Gq + c)
    for c in range(2):
        a('v_add_f32 v%d, v%d, v%d' % (Gq + c, Gq + c, vY + c))
    a('v_cvt_pk_bf16_f32 v%d, v%d, v%d' % (Gq, Gq, Gq + 1))
    a('s_add_u32 s%d, s%d, 1' % (sCnt, sCnt))
    a('s_cbranch_vccz L_ook')
    if sleep:
        a('s_sleep %d' % sleep)
    a('s_cmp_lt_u32 s%d, %d' % (sCnt, SPIN))
    a('s_cbranch_scc1 L_og')
    a.label('L_ook')
    a('s_mov_b64 exec, 1')
    a('global_store_dword v%d, v%d, %s' % (Gq + 8, Gq, sr(pOUT, 2)))
    a('s_cmp_lg_u32 s2, 0')
    a('s_cbranch_scc1 L_fin')
    a('buffer_store_dword v%d, off, %s, 0 sc1' % (vTag, sr(rWS, 4)))
    a.label('L_fin')
    if stamps:
        a('s_memrealtime s[78:79]')
        a.wait_lg()
        a('s_mov_b64 exec, 1')
        a('s_getreg_b32 s%d, hwreg(HW_REG_XCC_ID)' % sT2)
        for i in range(11):
            a('v_mov_b32 v%d, s%d' % (vS + i, sST + 2 * i if i < nst[0] else sST))
        a('v_mov_b32 v%d, s78' % (vS + 11))
        a('v_mov_b32 v%d, s%d' % (vS + 12, sCnt))
        a('v_mov_b32 v%d, s%d' % (vS + 13, sT2))
        a('v_mov_b32 v%d, s%d' % (vS + 14, sMode))
        a('s_lshl_b32 s%d, s2, 2' % sT1)
        a('s_add_u32 s%d, s%d, s%d' % (sT1, sT1, sW))
        a('s_lshl_b32 s%d, s%d, 6' % (sT1, sT1))
        a('s_add_u32 s%d, s%d, 0x%x' % (sT1, sT1, WS_STAMP))
        for i in range(4):
            a('buffer_store_dwordx4 %s, off, %s, s%d offset:%d' % (vr(vS + 4 * i, 4), sr(rWS, 4), sT1, 16 * i))
    a('s_endpgm')
    a.label('L_qretry')
    a.cond += 1
    a('s_mov_b32 s%d, 0' % sCnt)
    a.label('L_qr')
    q_loads()
    a('s_waitcnt vmcnt(0)')
    q_check()
    a('s_cbranch_vccz L_qok')
    a('s_add_u32 s%d, s%d, 1' % (sCnt, sCnt))
    a('s_cmp_lt_u32 s%d, %d' % (sCnt, SPIN))
    a('s_cbranch_scc1 L_qr')
    a('s_branch L_qok')
    a.label('L_pslow')
    a('buffer_store_dwordx4 %s, v%d, %s, s%d offen sc1' % (vr(GP, 4), vT16, sr(rWS, 4), sPub))
    a('s_branch L_pback')
    a.cond -= 1
    a.label('L_codeend')
    a('s_endpgm')
    a.raw('.section .rodata,"a"')
    a.raw('.p2align 6')
    a.raw('.amdhsa_kernel ' + KN)
    for l in ('.amdhsa_next_free_vgpr 512', '.amdhsa_next_free_sgpr 102', '.amdhsa_accum_offset 256',
              '.amdhsa_group_segment_fixed_size 0', '.amdhsa_kernarg_size 104', '.amdhsa_user_sgpr_count 2',
              '.amdhsa_user_sgpr_kernarg_segment_ptr 1', '.amdhsa_system_sgpr_workgroup_id_x 1',
              '.amdhsa_float_denorm_mode_32 3'):
        a.raw('  ' + l)
    a.raw('.end_amdhsa_kernel')
    if verbose:
        print('late', late, 'N', N, 'vgpr', va.next, file=sys.stderr)
    return a.text()


if __name__ == '__main__':
    out = sys.argv[1]
    kw = eval('dict(%s)' % (sys.argv[2] if len(sys.argv) > 2 else ''))
    open(out, 'w').write(gen(verbose=True, **kw))
```

```python
import re

REG = re.compile(r'^(-|abs\()?([vas])(?:(\d+)|\[(\d+):(\d+)\])\)?$')
TRANS = ('v_exp_f32', 'v_log_f32', 'v_rcp_f32', 'v_rsq_f32', 'v_sqrt_f32', 'v_sin_f32', 'v_cos_f32')


def regs_of(tok):
    tok = tok.strip()
    if tok == 'vcc':
        return {('s', 'vcc')}
    if tok in ('exec', 'exec_lo', 'exec_hi'):
        return {('s', 'exec')}
    if tok == 'm0':
        return {('s', 'm0')}
    m = REG.match(tok)
    if not m:
        return set()
    k = m.group(2)
    if m.group(3) is not None:
        return {(k, int(m.group(3)))}
    return {(k, i) for i in range(int(m.group(4)), int(m.group(5)) + 1)}


class Ins:
    def __init__(self, text):
        self.text = text
        t = text.split(';')[0].strip()
        parts = t.split(None, 1)
        self.op = parts[0]
        rest = parts[1] if len(parts) > 1 else ''
        ops = []
        cur = ''
        depth = 0
        for ch in rest:
            if ch in '[(':
                depth += 1
            if ch in '])':
                depth -= 1
            if ch == ',' and depth == 0:
                ops.append(cur.strip())
                cur = ''
            else:
                cur += ch
        if cur.strip():
            ops.append(cur.strip())
        mods = ''
        if ops:
            l = ops[-1].split(None, 1)
            ops[-1] = l[0]
            mods = l[1] if len(l) > 1 else ''
        self.ops = ops
        self.mods = mods
        op = self.op
        self.kind = None
        self.dst = set()
        self.src = set()
        self.srcC = set()
        self.srcAB = set()
        self.ws = 1
        self.dpp = ('_dpp' in op) or ('row_' in mods) or ('quad_perm' in mods)
        R = [regs_of(o) for o in ops]
        if op == 's_nop':
            self.kind = 'nop'
            self.ws = int(ops[0]) + 1
        elif op.startswith('v_mfma'):
            self.kind = 'mfma'
            self.dst = R[0]
            self.srcAB = R[1] | R[2]
            self.srcC = R[3]
            self.src = self.srcAB | self.srcC
        elif op.startswith('v_'):
            self.kind = 'valu'
            if op.startswith('v_permlane') and 'swap' in op:
                self.dst = R[0] | R[1]
                self.src = R[0] | R[1]
            else:
                self.dst = R[0]
                for r in R[1:]:
                    self.src |= r
                if op.startswith(('v_fmac', 'v_dot2c', 'v_pk_fmac')) or self.dpp:
                    self.src |= R[0]
                if op.startswith('v_cndmask') and len(ops) == 3:
                    self.src |= {('s', 'vcc')}
        elif op in ('buffer_wbl2', 'buffer_inv'):
            self.kind = 'vmem'
            self.lds = False
            self.store = False
            self.wide = False
        elif op.startswith('buffer_') or op.startswith('global_'):
            self.kind = 'vmem'
            self.lds = ' lds' in (' ' + mods) or 'load_lds' in op
            self.store = 'store' in op or 'atomic' in op
            if op.startswith('buffer_'):
                if self.lds:
                    for r in R:
                        self.src |= r
                    self.src |= {('s', 'm0')}
                elif self.store:
                    self.data = R[0]
                    for r in R:
                        self.src |= r
                    if 'sc0' in mods and 'atomic' in op:
                        self.dst = R[0]
                else:
                    self.dst = R[0]
                    for r in R[1:]:
                        self.src |= r
            else:
                if self.store:
                    if 'atomic' in op and 'sc0' in mods:
                        self.dst = R[0]
                        self.data = R[2]
                        for r in R[1:]:
                            self.src |= r
                    else:
                        self.data = R[1]
                        for r in R:
                            self.src |= r
                else:
                    self.dst = R[0]
                    for r in R[1:]:
                        self.src |= r
            self.wide = self.store and ('x3' in op or 'x4' in op)
        elif op.startswith('ds_'):
            self.kind = 'ds'
            if op.startswith('ds_read') or 'rtn' in op or 'permute' in op or 'swizzle' in op:
                self.dst = R[0]
                for r in R[1:]:
                    self.src |= r
            else:
                for r in R:
                    self.src |= r
        elif op.startswith(('s_load', 's_memrealtime', 's_memtime', 's_atomic', 's_buffer_load')):
            self.kind = 'smem'
            self.dst = R[0]
            for r in R[1:]:
                self.src |= r
        elif op.startswith('s_'):
            self.kind = 'salu'
            if op.startswith(('s_cmp', 's_bitcmp', 's_cbranch', 's_branch', 's_waitcnt', 's_barrier', 's_endpgm', 's_sleep', 's_setprio')):
                for r in R:
                    self.src |= r
            else:
                self.dst = R[0] if R else set()
                for r in R[1:]:
                    self.src |= r
                if 'saveexec' in op:
                    self.dst = self.dst | {('s', 'exec')}
        else:
            raise ValueError('unknown instr ' + text)
        self.trans = op.split('_e')[0] in TRANS or op in TRANS
        self.dot = op.startswith('v_dot')
        self.perml = op.startswith('v_permlane')
        self.rdlane = op.startswith(('v_readlane', 'v_readfirstlane'))


def vec(rs):
    return {r for r in rs if r[0] in 'va'}


def sca(rs):
    return {r for r in rs if r[0] == 's'}


def need(p, c):
    n = 0
    if p.kind == 'valu':
        pv = vec(p.dst)
        ps = sca(p.dst)
        if pv:
            if c.kind == 'valu' and pv & c.src:
                if c.dpp or c.perml:
                    n = max(n, 2)
                if c.rdlane:
                    n = max(n, 1)
                if p.trans:
                    n = max(n, 1)
            if c.kind == 'mfma' and pv & c.src:
                n = max(n, 2)
            if p.dot:
                if c.kind in ('valu', 'mfma', 'vmem', 'ds') and pv & (c.src | c.dst):
                    base = lambda o: o.replace('_dpp', '')
                    if c.kind == 'valu' and c.dot and base(c.op) == base(p.op):
                        ab = set()
                        for o in c.ops[1:3]:
                            ab |= regs_of(o)
                        if pv & ab:
                            n = max(n, 3)
                    else:
                        n = max(n, 3)
        if ps:
            if c.kind == 'valu' and ps & c.src:
                n = max(n, 4 if c.op.startswith(('v_readlane', 'v_writelane')) else 2)
            if c.kind == 'vmem' and ps & c.src:
                n = max(n, 5)
            assert ('s', 'exec') not in ps, 'VALU exec writes not modelled'
    elif p.kind == 'mfma':
        d = p.dst
        if c.kind == 'mfma':
            if d & c.srcAB:
                n = max(n, 8)
            if d & c.srcC:
                if not (c.srcC == d and c.op == p.op):
                    n = max(n, 6)
            elif d & c.dst:
                n = max(n, 8)
        elif c.kind in ('valu', 'vmem', 'ds') and d & (c.src | c.dst):
            n = max(n, 8)
        if c.kind == 'valu' and p.srcC & c.dst:
            n = max(n, 3)
    elif p.kind == 'salu':
        if ('s', 'm0') in p.dst and c.kind == 'vmem' and c.lds:
            n = max(n, 1)
    elif p.kind == 'vmem':
        if p.wide and p.data & c.dst:
            n = max(n, 2 if c.kind in ('valu', 'mfma') else 1)
    return n


class Asm:
    def __init__(self):
        self.lines = []
        self.hist = []
        self.vm = 0
        self.vm_done = 0
        self.lg = 0
        self.lg_done = 0
        self.smem_out = False
        self.cond = 0
        self.nins = 0

    def raw(self, s):
        self.lines.append(s)

    def comment(self, s):
        self.lines.append('; ' + s)

    def label(self, name):
        self.lines.append(name + ':')

    def __call__(self, text):
        c = Ins(text)
        d = 0
        pad = 0
        for p in reversed(self.hist):
            n = need(p, c)
            if n - d > pad:
                pad = n - d
            d += p.ws
            if d >= 10:
                break
        if pad > 0:
            nop = Ins('s_nop %d' % (pad - 1))
            self.lines.append('  ' + nop.text)
            self.hist.append(nop)
            self.nins += 1
        self.lines.append('  ' + text)
        self.hist.append(c)
        self.hist = self.hist[-16:]
        self.nins += 1
        if c.kind == 'vmem':
            if self.cond == 0:
                self.vm += 1
            return self.vm
        if c.kind == 'ds':
            self.lg += 1
            return self.lg
        if c.kind == 'smem':
            self.smem_out = True
        return None

    def settle(self, n=9):
        self('s_nop %d' % (n - 1))

    def wait_vm(self, tok, force=False):
        if tok <= self.vm_done and not force:
            return
        n = min(self.vm - tok, 63)
        self('s_waitcnt vmcnt(%d)' % n)
        self.vm_done = max(self.vm_done, self.vm - n)

    def wait_vm0(self):
        self('s_waitcnt vmcnt(0)')
        self.vm_done = self.vm

    def wait_lg(self, tok=None):
        if tok is None or self.smem_out:
            self('s_waitcnt lgkmcnt(0)')
            self.lg_done = self.lg
            self.smem_out = False
            return
        if tok <= self.lg_done:
            return
        n = min(self.lg - tok, 15)
        self('s_waitcnt lgkmcnt(%d)' % n)
        self.lg_done = max(self.lg_done, self.lg - n)

    def text(self):
        return '\n'.join(self.lines) + '\n'


class VAlloc:
    def __init__(self, start=0, limit=256):
        self.next = start
        self.limit = limit
        self.free = []
        self.names = {}

    def __call__(self, n=1, align=None, name=None):
        if align is None:
            align = 1 if n == 1 else (2 if n == 2 else 4)
        b = (self.next + align - 1) // align * align
        self.next = b + n
        assert self.next <= self.limit, 'out of VGPRs'
        if name:
            self.names[name] = b
        return b


def vr(b, n=1):
    return 'v%d' % b if n == 1 else 'v[%d:%d]' % (b, b + n - 1)


def ar(b, n=1):
    return 'a%d' % b if n == 1 else 'a[%d:%d]' % (b, b + n - 1)


def sr(b, n=1):
    return 's%d' % b if n == 1 else 's[%d:%d]' % (b, b + n - 1)
```

```python
import sys, math, struct
from asmlib import *

KN = "parallel_sum__gqa_block_cached__mixer_token_mlp__decode_kernel"
REF = "parallel_sum__gqa_block_cached__mixer_token_mlp__decode.s.ref"


def f32(x):
    return '0x%08x' % struct.unpack('<I', struct.pack('<f', x))[0]


WS_EPOCH = 0
WS_BRD = 0x8000
WS_Q = 0x10000
WS_PART = 0x100000
WS_OUTP = 0x200000
WS_STAMP = 0x300000
WS_SIZE = 0x400000
L_K = 0
L_WQ = 131072
L_RED = L_WQ
L_RED2 = L_RED + 9216
L_XN = 147456
L_QL = L_XN + 1024
L_ML = L_QL + 1024
L_YP = L_ML + 128
L_XF = L_YP + 32
L_CT = L_XF + 32
LDS_BYTES = 150016
OST = 1152
SPIN = 4000
LOG2E = 1.4426950408889634


def gen(W0=2, W=2, sub=1, mapping='mod', stamps=False, nv_pre=4, qpos='V0b', d1=1, d2=1, wo_pos='K3b', prefetch=True,
        tailpf=True, sleep=0, verbose=False, PST=4096, pflag='', pld='sc1', skip=(), dbg=False, clean=0, force=None, wqskew=0, gran=4, bal=0, Wlo=3, pub=2, chk=2, theta=0, bstart=None, bend=None, thrmask=None,
        pdpos=None, olay='prod', CST=1024, opoll=1, pexit=0, ts=None,
        ctl=0, NC=16, CP=2, Wl=(1,), dth=(2,), cstart=None, cend=None, CSTR=256, cforce=None, cflag='sc0 sc1', WSB=None, cpts=None, clat=None, cop='add', wsch=None, qflag='sc1', qkpair=0, warm=0, warmpos=None, vwarm=0, OUTP=None, qld='sc1', tld='sc1', pst=0, oat=0, oflag='sc1', pm=0, om=0, ow=0, red2=0):
    a = Asm()
    WS_OUTP = OUTP or globals()['WS_OUTP']
    hdr = [l for l in open(REF).read().split('\n') if l.startswith(';') and '@launch' not in l]
    for l in hdr:
        a.raw(l)
    a.raw('; @launch grid=(256,1,1) block=(256,1,1) lds=%d' % LDS_BYTES)
    a.raw('.amdgcn_target "amdgcn-amd-amdhsa--gfx950"')
    a.raw('.text')
    a.raw('.globl ' + KN)
    a.raw('.p2align 8')
    a.raw('.type %s,@function' % KN)
    a.label(KN)

    sW = 3
    pX, pK, pV, pWQ, pWO, pW1, pB1, pW2, pB2, pOUT, pWS = 4, 6, 8, 10, 12, 16, 18, 20, 22, 24, 28
    rK, rV, rWQ, rWO, rWS, rW1, rB1, rW2 = 32, 36, 40, 44, 48, 52, 56, 60
    sG, sC, sP, sJ = 64, 65, 66, 67
    sKL = 68
    sT0, sT1, sT2 = 69, 70, 71
    sOff = 72
    sCnt = 73
    sQg, sPub = 74, 75
    sPC = 76
    sXcc, sMode = 30, 31
    sC0, sC1 = 78, 79
    sST = 80
    sThr = 14
    sCA, sCD = 16, 18
    sTagS = 14
    nst = [0]

    def stamp(mid=False):
        if mid and ts:
            return
        if stamps:
            assert nst[0] < 11
            a('s_memrealtime %s' % sr(sST + 2 * nst[0], 2))
            nst[0] += 1

    va = VAlloc(1)
    vL = va(); vTag = va(); vT16 = va(); vL4 = va()
    vKo = va(4); vKa = va(4); vVo = va(2); vSel = va(4)
    vM = va(); vLs = va(); vY = va(2); vXp = va(); vB2 = va(); vJunk = va(); vTmp = va(8, 4)
    vZ = va(32, 4)
    vQ = va(32, 4)
    vKf = va(32, 4)
    vS = va(64, 4)
    vAS = va(8, 4)
    vO = va(8, 4)
    vWt = va(8, 4)
    vWOr = va(16, 4)
    vBv = va(4, 4); vBst = vBv + 1; vBld = vBv + 2; vBt = vBv + 3; vBr = va(2)
    vX = vZ; vXf = vZ + 4; vW1 = vZ + 12; vB1 = vZ + 16; vW2 = vZ + 20; vH = vZ + 24
    vWOp = vZ
    T = vKf

    def rnd(d, s):
        a('v_cvt_pk_bf16_f32 v%d, 0, v%d' % (d, s))

    def allred(regs, op, tmps, bits=(0, 1, 2, 3, 4, 5)):
        for b in bits:
            if b < 4:
                for r in regs:
                    a('v_%s_dpp v%d, v%d, v%d row_ror:%d row_mask:0xf bank_mask:0xf' % (op, r, r, r, 1 << b))
            else:
                for r, t in zip(regs, tmps):
                    a('v_mov_b32 v%d, v%d' % (t, r))
                for r, t in zip(regs, tmps):
                    a('v_permlane%d_swap_b32 v%d, v%d' % (16 if b == 4 else 32, r, t))
                for r, t in zip(regs, tmps):
                    a('v_%s v%d, v%d, v%d' % (op, r, r, t))

    def xor3(d, x, y, z):
        a('v_bitop3_b32 v%d, v%d, v%d, v%d bitop3:0x96' % (d, x, y, z))

    a('s_cmp_lt_u32 s2, 256')
    a('s_cbranch_scc1 L_go')
    a('s_endpgm')
    a.label('L_go')
    stamp()
    a('s_load_dwordx16 s[4:19], s[0:1], 0')
    a('s_load_dwordx8 s[20:27], s[0:1], 64')
    a('s_load_dwordx2 s[28:29], s[0:1], 96')
    a('v_lshrrev_b32 v%d, 6, v0' % vTmp)
    a('v_and_b32 v%d, 63, v0' % vL)
    a('v_readfirstlane_b32 s%d, v%d' % (sW, vTmp))
    a('s_getpc_b64 %s' % sr(sPC, 2))
    a.label('L_pc')
    if prefetch:
        a('s_lshr_b32 s%d, s2, 3' % sT0)
        a('s_and_b32 s%d, s%d, 3' % (sT0, sT0))
        a('s_lshl_b32 s%d, s%d, 2' % (sT0, sT0))
        a('s_add_u32 s%d, s%d, s%d' % (sT0, sT0, sW))
        a('s_lshl_b32 s%d, s%d, 10' % (sT0, sT0))
        a('v_and_b32 v%d, 7, v0' % (vTmp + 1))
        a('v_lshlrev_b32 v%d, 7, v%d' % (vTmp + 1, vTmp + 1))
        a('v_add_u32 v%d, s%d, v%d' % (vTmp + 1, sT0, vTmp + 1))
        a('v_min_u32 v%d, L_codeend-L_pc-4, v%d' % (vTmp + 1, vTmp + 1))
        a('global_load_dword v%d, v%d, %s' % (vJunk, vTmp + 1, sr(sPC, 2)))
    a('s_and_b32 s%d, s2, 7' % sG)
    a('s_lshr_b32 s%d, s2, 3' % sC)
    a('s_lshl_b32 s%d, s%d, 5' % (sP, sG))
    a('s_add_u32 s%d, s%d, s%d' % (sP, sP, sC))
    a('s_lshr_b32 s%d, s%d, 3' % (sT1, sC))
    a('s_lshl_b32 s%d, s%d, 2' % (sT1, sT1))
    a('s_add_u32 s%d, s%d, s%d' % (sT1, sT1, sW))
    a('s_lshl_b32 s%d, s%d, 18' % (sT1, sT1))
    a('s_lshl_b32 s%d, s%d, 10' % (sT2, sG))
    a('s_add_u32 s%d, s%d, s%d' % (sT1, sT1, sT2))
    a('s_and_b32 s%d, s%d, 7' % (sT2, sC))
    a('s_lshl_b32 s%d, s%d, 7' % (sT2, sT2))
    a('s_add_u32 s%d, s%d, s%d' % (sT1, sT1, sT2))
    if mapping == 'mod':
        a('s_mov_b32 s%d, s%d' % (sJ, sP))
    else:
        a('s_lshr_b32 s%d, s2, 5' % sG)
        a('s_and_b32 s%d, s2, 31' % sC)
        a('s_mov_b32 s%d, s2' % sJ)
    i15, ks, bsw, vWq, l16, zero = vTmp + 2, vTmp + 3, vTmp + 4, vTmp + 5, vTmp + 6, vTmp + 7
    a('v_and_b32 v%d, 15, v%d' % (i15, vL))
    a('v_lshrrev_b32 v%d, 4, v%d' % (ks, vL))
    a('v_xor_b32 v%d, v%d, v%d' % (bsw, i15, ks))
    a('v_lshlrev_b32 v%d, 4, v%d' % (bsw, bsw))
    a('v_lshl_add_u32 v%d, v%d, 8, v%d' % (vKo, ks, bsw))
    for j in range(1, 4):
        a('v_xor_b32 v%d, 0x%x, v%d' % (vKo + j, j << 6, vKo))
    a('v_lshrrev_b32 v%d, 3, v%d' % (vWq, vL))
    a('v_lshlrev_b32 v%d, 13, v%d' % (vWq, vWq))
    a('v_and_b32 v%d, 7, v%d' % (l16, vL))
    a('v_lshl_add_u32 v%d, v%d, 4, v%d' % (vWq, l16, vWq))
    a('v_lshlrev_b32 v%d, 4, v%d' % (l16, vL))
    a('v_mov_b32 v%d, 0' % zero)
    a('s_lshl_b32 s%d, s%d, 18' % (sT0, sJ))
    a('s_lshl_b32 s%d, s%d, %d' % (sT2, sW, 12 if gran == 4 else 13))
    a('s_add_u32 s%d, s%d, s%d' % (sT0, sT0, sT2))
    KVN = 0x3d000 if gran == 4 else 0x3a000
    uoff = (lambda tl, half: (2 * tl + half) * 16384) if gran == 4 else (lambda tl, half: tl * 32768 + half * 4096)
    a('s_lshl_b32 s%d, s%d, 15' % (sKL, sW))
    a('s_lshl_b32 s%d, s%d, 12' % (sT2, sW))
    a('s_add_u32 m0, s%d, %d' % (sT2, L_WQ))
    a('s_mov_b32 s%d, 0x%x' % (rWQ + 2, 31 * 8192 + 128))
    a('s_mov_b32 s%d, 0x20000' % (rWQ + 3))
    a('s_mov_b32 s%d, 0x%x' % (rK + 2, KVN))
    a('s_mov_b32 s%d, 0x20000' % (rK + 3))
    a.wait_lg()
    stamp()
    tX = a('global_load_dwordx4 %s, v%d, %s' % (vr(vX, 4), l16, sr(pX, 2)))
    if tld == 's':
        a('s_load_dword s%d, %s, 0' % (sTagS, sr(pWS, 2)))
        tE = tX
    else:
        tE = a('global_load_dword v%d, v%d, %s %s' % (vTag, zero, sr(pWS, 2), tld))
    a('s_add_u32 s%d, s%d, s%d' % (rWQ, pWQ, sT1))
    a('s_addc_u32 s%d, s%d, 0' % (rWQ + 1, pWQ + 1))
    a('s_add_u32 s%d, s%d, s%d' % (rK, pK, sT0))
    a('s_addc_u32 s%d, s%d, 0' % (rK + 1, pK + 1))

    vtok = {}
    tok = {}

    def parts(s):
        n = 4 // sub
        return range(s * n, (s + 1) * n)

    def issue(name, s):
        if name in skip:
            t = a('global_load_dword v%d, v%d, %s' % (vJunk, vL, sr(pWQ, 2)))
        elif name == 'WQ' and wqskew:
            a('s_and_b32 s%d, s2, 7' % sOff)
            a('s_lshl_b32 s%d, 1, s%d' % (sOff, sOff))
            a('s_and_b32 s%d, s%d, %d' % (sMode, sOff, wqskew))
            a('s_cbranch_scc0 L_nowq')
            a.cond += 1
            a('s_mov_b32 s%d, 0x%x' % (rWQ + 2, 31 * 8192 + 128 + 1024))
            for rep in range(2):
                for j in parts(s):
                    a('s_mov_b32 s%d, 0x%x' % (sOff, j * (65536 - 1024) + rep * 1024))
                    a('buffer_load_dwordx4 v%d, %s, %s offen offset:%d nt lds' % (vWq, sr(rWQ, 4), 's%d' % sOff, j * 1024))
            a.cond -= 1
            a.label('L_nowq')
            t = a('global_load_dword v%d, v%d, %s' % (vJunk, vL, sr(pX, 2)))
        elif name == 'WQ':
            for j in parts(s):
                if j:
                    a('s_mov_b32 s%d, 0x%x' % (sOff, j * (65536 - 1024)))
                t = a('buffer_load_dwordx4 v%d, %s, %s offen offset:%d nt lds' % (vWq, sr(rWQ, 4), 's%d' % sOff if j else '0', j * 1024))
        elif name == 'WO':
            for q in parts(s):
                a('s_mov_b32 s%d, %d' % (sOff, q * 4096))
                for r in range(4):
                    t = a('buffer_load_dword v%d, v%d, %s, s%d offen offset:%d nt' % (vWOr + q * 4 + r, vL4, sr(rWO, 4), sOff, r * 1024))
        elif name[0] == 'K':
            tl, half = int(name[1]), 'ab'.index(name[2])
            a('s_add_u32 m0, s%d, %d' % (sKL, (tl % 4) * 8192 + half * 4096))
            a('s_mov_b32 s%d, 0x%x' % (sOff, uoff(tl, half)))
            for j in parts(s):
                t = a('buffer_load_dwordx4 v%d, %s, s%d offen offset:%d nt lds' % (vKo + j, sr(rK, 4), sOff, j * 1024))
        else:
            tl, half = int(name[1]), 'ab'.index(name[2])
            a('s_mov_b32 s%d, 0x%x' % (sOff, uoff(tl, half)))
            for r in parts(s):
                t = a('buffer_load_dwordx4 %s, v%d, %s, s%d offen offset:%d nt' % (ar(tl * 32 + half * 16 + r * 4, 4), vVo, sr(rV, 4), sOff, r * 256))
                vtok[(tl, half, r)] = t
        tok[name] = t
        return t

    names = ['WQ']
    for t in range(4):
        names += ['K%da' % t, 'K%db' % t]
    for t in range(nv_pre):
        names += ['V%da' % t, 'V%db' % t]
    for t in range(4, 8):
        names += ['K%da' % t, 'K%db' % t]
    for t in range(nv_pre, 8):
        names += ['V%da' % t, 'V%db' % t]
    names.insert(names.index(wo_pos) + 1, 'WO')
    seq = [(n, s) for n in names for s in range(sub)]
    Wn = W
    last = {n: i for i, (n, s) in enumerate(seq)}
    first = {}
    for i, (n, s) in enumerate(seq):
        first.setdefault(n, i)
    N = len(seq)

    def Wf(i):
        if not wsch:
            return Wn
        u = i / sub
        if u <= wsch[0][0]:
            return wsch[0][1]
        for (u0, w0), (u1, w1) in zip(wsch, wsch[1:]):
            if u <= u1:
                return int(round(w0 + (w1 - w0) * (u - u0) / (u1 - u0)))
        return wsch[-1][1]

    def rdy(j):
        i = j
        while i - Wf(i) < j:
            i += 1
        return i

    def ready(n):
        return rdy(last[n])

    vTr, vXb, vXw, vQw, vQf = vWt, vWt + 1, vWt + 2, vWt + 3, vWt + 4
    small = {}

    def setup():
        a('s_getreg_b32 s%d, hwreg(HW_REG_XCC_ID, 0, 4)' % sXcc)
        a('s_mov_b32 s%d, 0x%x' % (rV + 2, KVN))
        a('s_mov_b32 s%d, 0x20000' % (rV + 3))
        a('s_add_u32 s%d, s%d, s%d' % (rV, pV, sT0))
        a('s_addc_u32 s%d, s%d, 0' % (rV + 1, pV + 1))
        a('v_lshlrev_b32 v%d, 4, v0' % vT16)
        a('v_lshlrev_b32 v%d, 2, v%d' % (vL4, vL))
        for r, p in ((rW1, pW1), (rB1, pB1), (rW2, pW2)):
            a('s_mov_b32 s%d, s%d' % (r, p))
            a('s_mov_b32 s%d, s%d' % (r + 1, p + 1))
            a('s_mov_b32 s%d, 3584' % (r + 2))
            a('s_mov_b32 s%d, 0x20000' % (r + 3))
        a('s_lshl_b32 s%d, s%d, 2' % (sT1, sP))
        a('v_mov_b32 v%d, s%d' % (vXp, sT1))
        for r, v in ((rW1, vW1), (rB1, vB1), (rW2, vW2)):
            a('buffer_load_dwordx4 %s, v%d, %s, 0 offen' % (vr(v, 4), vT16, sr(r, 4)))
        a('global_load_ushort v%d, v%d, %s' % (vB2, zero, sr(pB2, 2)))
        small['t'] = a('global_load_dword v%d, v%d, %s' % (vXp, vXp, sr(pX, 2)))
        a('s_mov_b32 s%d, s%d' % (rWS, pWS))
        a('s_mov_b32 s%d, s%d' % (rWS + 1, pWS + 1))
        a('s_mov_b32 s%d, 0x%x' % (rWS + 2, WS_SIZE))
        a('s_mov_b32 s%d, 0x20000' % (rWS + 3))
        a('s_and_b32 s%d, s%d, 0xfc' % (sT1, sJ))
        a('s_add_u32 s%d, s%d, s%d' % (sT1, sT1, sW))
        a('s_lshl_b32 s%d, s%d, 14' % (sT1, sT1))
        a('s_and_b32 s%d, s%d, 3' % (sT2, sJ))
        a('s_lshl_b32 s%d, s%d, 8' % (sT2, sT2))
        a('s_add_u32 s%d, s%d, s%d' % (sT1, sT1, sT2))
        a('s_add_u32 s%d, s%d, s%d' % (rWO, pWO, sT1))
        a('s_addc_u32 s%d, s%d, 0' % (rWO + 1, pWO + 1))
        a('s_mov_b32 s%d, %d' % (rWO + 2, 15 * 1024 + 256))
        a('s_mov_b32 s%d, 0x20000' % (rWO + 3))
        a('v_lshlrev_b32 v%d, 4, v%d' % (vVo, i15))
        a('v_lshl_add_u32 v%d, v%d, 10, v%d' % (vVo, ks, vVo))
        a('v_lshl_add_u32 v%d, v%d, 8, v%d' % (vKa, i15, bsw))
        a('v_add_u32 v%d, s%d, v%d' % (vKa, sKL, vKa))
        for j in range(1, 4):
            a('v_xor_b32 v%d, 0x%x, v%d' % (vKa + j, j << 6, vKa))
        e = vTmp
        a('v_and_b32 v%d, 3, v%d' % (e, vL))
        a('v_bfe_u32 v%d, v%d, 2, 2' % (vTmp + 1, vL))
        a('s_lshl_b32 s%d, s%d, 5' % (sT1, sW))
        a('s_add_u32 s%d, s%d, %d' % (sT1, sT1, L_WQ))
        a('v_lshlrev_b32 v%d, 3, v%d' % (vTr, e))
        a('v_lshl_add_u32 v%d, v%d, 7, v%d' % (vTr, vTmp + 1, vTr))
        a('v_lshl_add_u32 v%d, v%d, 10, v%d' % (vTr, ks, vTr))
        a('v_add_u32 v%d, s%d, v%d' % (vTr, sT1, vTr))
        a('s_lshr_b32 s%d, s%d, 3' % (sT1, sP))
        a('s_and_b32 s%d, s%d, 3' % (sT1, sT1))
        a('s_lshl_b32 s%d, s%d, 8' % (sT2, sT1))
        a('s_add_u32 s%d, s%d, %d' % (sT2, sT2, L_XN))
        a('v_lshlrev_b32 v%d, 4, v%d' % (vXb, ks))
        a('v_add_u32 v%d, s%d, v%d' % (vXb, sT2, vXb))
        a('v_add_u32 v%d, %d, v%d' % (vXw, L_XN, l16))
        a('s_lshr_b32 s%d, s%d, 5' % (sT2, sP))
        a('s_lshl_b32 s%d, s%d, 2' % (sT2, sT2))
        a('s_add_u32 s%d, s%d, s%d' % (sT2, sT2, sT1))
        a('s_lshl_b32 s%d, s%d, 12' % (sPub, sT2))
        a('s_and_b32 s%d, s%d, 7' % (sT2, sP))
        a('s_lshl_b32 s%d, s%d, 2' % (sT2, sT2))
        a('s_add_u32 s%d, s%d, s%d' % (sT2, sT2, sW))
        a('s_lshl_b32 s%d, s%d, 7' % (sT2, sT2))
        a('s_add_u32 s%d, s%d, s%d' % (sPub, sPub, sT2))
        a('s_add_u32 s%d, s%d, 0x%x' % (sPub, sPub, WS_Q))
        a('v_and_b32 v%d, 1, v%d' % (vQw, vL))
        a('v_lshl_add_u32 v%d, v%d, 1, v%d' % (vQw, ks, vQw))
        a('v_lshlrev_b32 v%d, 4, v%d' % (vQw, vQw))
        a('v_lshlrev_b32 v%d, 8, v%d' % (vQf, vTmp + 1))
        a('v_lshl_add_u32 v%d, v%d, 4, v%d' % (vQf, ks, vQf))
        a('v_add_u32 v%d, %d, v%d' % (vQf, L_QL, vQf))
        a('s_lshl_b32 s%d, s%d, 14' % (sQg, sG))
        a('s_add_u32 s%d, s%d, 0x%x' % (sQg, sQg, WS_Q))
        if bal:
            a('s_lshl_b32 s%d, s%d, 10' % (sT1, sC))
            a('s_add_u32 s%d, s%d, 0x%x' % (sT1, sT1, WS_BRD))
            a('v_and_b32 v%d, 7, v%d' % (vBld, vL))
            a('v_lshlrev_b32 v%d, 7, v%d' % (vBld, vBld))
            a('v_add_u32 v%d, s%d, v%d' % (vBld, sT1, vBld))
            a('s_lshl_b32 s%d, s%d, 7' % (sT2, sG))
            a('s_add_u32 s%d, s%d, s%d' % (sT1, sT1, sT2))
            a('v_add_u32 v%d, s%d, v%d' % (vBst, sT1, vT16))
            a('v_mov_b32 v%d, 0x7ffffff0' % vBv)
            a('v_cmp_gt_u32 vcc, 8, v0')
            a('v_cndmask_b32 v%d, v%d, v%d, vcc' % (vBst, vBv, vBst))
        if ctl in (2, 3):
            if ctl == 2:
                a('s_lshl_b32 s%d, s%d, 2' % (sT1, sC))
                a('s_add_u32 s%d, s%d, s%d' % (sT1, sT1, sW))
                a('s_lshr_b32 s%d, s%d, %d' % (sT2, sT1, NC.bit_length() - 1))
            else:
                a('v_mov_b32 v%d, %d' % (vBv + 3, L_CT))
                a('ds_write_b32 v%d, v%d' % (vBv + 3, zero))
                a('s_mov_b32 s%d, s%d' % (sT1, sC))
                a('s_lshr_b32 s%d, s%d, %d' % (sT2, sT1, NC.bit_length() - 1))
                a('s_or_b32 s%d, s%d, s%d' % (sT2, sT2, sW))
            a('s_and_b32 s%d, s%d, %d' % (sT1, sT1, NC - 1))
            a('s_mul_i32 s%d, s%d, %d' % (sT1, sT1, CSTR))
            a('s_add_u32 s%d, s%d, 0x%x' % (sT1, sT1, WSB or WS_BRD))
            a('s_add_u32 s%d, s%d, s%d' % (sCA, pWS, sT1))
            a('s_addc_u32 s%d, s%d, 0' % (sCA + 1, pWS + 1))
            a('s_or_b32 s%d, s%d, s%d' % (sT2, sT2, sG))
            a('s_cbranch_scc1 L_noinit')
            a('s_mov_b32 s%d, 0' % sCD)
            a('s_atomic_swap s%d, %s, 0' % (sCD, sr(sCA, 2)))
            a.label('L_noinit')
        elif ctl:
            a('s_and_b32 s%d, s%d, %d' % (sT1, sC, NC - 1))
            a('s_mul_i32 s%d, s%d, %d' % (sT1, sT1, CSTR))
            a('s_add_u32 s%d, s%d, 0x%x' % (sT1, sT1, WSB or WS_BRD))
            a('v_mov_b32 v%d, s%d' % (vBv + 1, sT1))
            a('v_mov_b32 v%d, 0x7ff00000' % vBv)
            a('v_cmp_eq_u32 vcc, 0, v%d' % vL)
            a('v_cndmask_b32 v%d, v%d, v%d, vcc' % (vBv, vBv, vBv + 1))
            a('s_or_b32 s%d, s%d, s%d' % (sT1, sG, sW))
            a('s_lshr_b32 s%d, s%d, %d' % (sT2, sC, NC.bit_length() - 1))
            a('s_or_b32 s%d, s%d, s%d' % (sT1, sT1, sT2))
            a('s_cselect_b32 s%d, 0x7ff00000, 0' % sT1)
            a('v_or_b32 v%d, s%d, v%d' % (vBv + 1, sT1, vBv))
            a('buffer_store_dword v%d, v%d, %s, 0 offen sc1' % (zero, vBv + 1, sr(rWS, 4)))
            a('v_mov_b32 v%d, %d' % (vBv + 3, L_CT))
            a('ds_write_b32 v%d, v%d' % (vBv + 3, zero))
        a('s_mov_b32 s%d, 0x0c0c0c0c' % sC0)
        for k, (ev0, lo) in enumerate(((0, 0x0100), (2, 0x0100), (0, 0x0302), (2, 0x0302))):
            a('v_mov_b32 v%d, s%d' % (vSel + k, sC0))
            a('v_mov_b32 v%d, 0x%08x' % (vTmp + 1, 0x0c0c0000 | lo))
            a('v_cmp_eq_u32 vcc, %d, v%d' % (ev0, e))
            a('v_cndmask_b32 v%d, v%d, v%d, vcc' % (vSel + k, vSel + k, vTmp + 1))
            a('v_mov_b32 v%d, 0x%08x' % (vTmp + 1, (lo << 16) | 0x0c0c))
            a('v_cmp_eq_u32 vcc, %d, v%d' % (ev0 + 1, e))
            a('v_cndmask_b32 v%d, v%d, v%d, vcc' % (vSel + k, vSel + k, vTmp + 1))

        if vwarm:
            a('buffer_load_dword v%d, v%d, %s, 0 offen' % (vJunk, zero, sr(rV, 4)))
            a('buffer_load_dword v%d, v%d, %s, 0 offen' % (vJunk, zero, sr(rWO, 4)))
            a('buffer_load_dword v%d, v%d, %s, s%d offen sc1' % (vJunk, zero, sr(rWS, 4), sQg))

    def unpack(dst, src, n):
        for i in range(n):
            a('v_lshlrev_b32 v%d, 16, v%d' % (dst + 2 * i, src + i))
            a('v_and_b32 v%d, 0xffff0000, v%d' % (dst + 2 * i + 1, src + i))

    def ln_stats(xf, t):
        s, tm = t + 8, t + 9
        a('v_add_f32 v%d, v%d, v%d' % (t, xf, xf + 1))
        a('v_add_f32 v%d, v%d, v%d' % (t + 1, xf + 2, xf + 3))
        a('v_add_f32 v%d, v%d, v%d' % (t + 2, xf + 4, xf + 5))
        a('v_add_f32 v%d, v%d, v%d' % (t + 3, xf + 6, xf + 7))
        a('v_add_f32 v%d, v%d, v%d' % (t, t, t + 1))
        a('v_add_f32 v%d, v%d, v%d' % (t + 2, t + 2, t + 3))
        a('v_add_f32 v%d, v%d, v%d' % (s, t, t + 2))
        allred([s], 'add_f32', [tm])
        a('v_mul_f32 v%d, %s, v%d' % (s, f32(1 / 512), s))
        for i in range(8):
            a('v_sub_f32 v%d, v%d, v%d' % (t + i, xf + i, s))
        rnd(s, s)
        a('v_mul_f32 v%d, v%d, v%d' % (t, t, t))
        a('v_mul_f32 v%d, v%d, v%d' % (t + 1, t + 1, t + 1))
        for i in range(2, 8):
            a('v_fmac_f32 v%d, v%d, v%d' % (t + (i & 1), t + i, t + i))
        a('v_add_f32 v%d, v%d, v%d' % (t, t, t + 1))
        allred([t], 'add_f32', [tm])
        a('v_mul_f32 v%d, %s, v%d' % (t, f32(1 / 512), t))
        rnd(t, t)
        a('v_add_f32 v%d, %s, v%d' % (t, f32(1e-5), t))
        rnd(t, t)
        a('v_sqrt_f32 v%d, v%d' % (t, t))
        rnd(t, t)
        a('v_rcp_f32 v%d, v%d' % (t, t))
        return s, t

    def ln1():
        if wqskew:
            n = a.vm - tE
            a('s_cmp_eq_u32 s%d, 0' % sMode)
            a('s_cbranch_scc1 L_w1')
            a('s_waitcnt vmcnt(%d)' % (n + 8))
            a('s_branch L_w2')
            a.label('L_w1')
            a('s_waitcnt vmcnt(%d)' % n)
            a.label('L_w2')
            a.vm_done = tE
        a.wait_vm(tE)
        if tld == 's':
            a.wait_lg()
            a('v_mov_b32 v%d, s%d' % (vTag, sTagS))
        a('s_mov_b32 s%d, 1664525' % sC0)
        a('v_mul_lo_u32 v%d, v%d, s%d' % (vTag, vTag, sC0))
        a('v_add_u32 v%d, 1013904223, v%d' % (vTag, vTag))
        if bal:
            a('v_and_b32 v%d, 0xffffff00, v%d' % (vBt, vTag))
        unpack(vXf, vX, 4)
        mb, rc = ln_stats(vXf, T)
        for i in range(8):
            a('v_sub_f32 v%d, v%d, v%d' % (vXf + i, vXf + i, mb))
        for i in range(8):
            rnd(vXf + i, vXf + i)
        for i in range(8):
            a('v_mul_f32 v%d, v%d, v%d' % (vXf + i, vXf + i, rc))
        for i in range(4):
            a('v_cvt_pk_bf16_f32 v%d, v%d, v%d' % (vX + i, vXf + 2 * i, vXf + 2 * i + 1))
        a('ds_write_b128 v%d, %s' % (vXw, vr(vX, 4)))

    def qpart():
        a.wait_vm(tok['WQ'])
        a.wait_lg()
        stamp(True)
        a('s_barrier')
        for t in range(4):
            a('ds_read_b128 %s, v%d offset:%d' % (vr(vKf + 16 + 4 * t, 4), vXb, t * 64))
        lt = []
        for t in range(4):
            a('ds_read_b64_tr_b16 %s, v%d offset:%d' % (vr(vKf + 4 * t, 2), vTr, t * 4096))
            lt.append(a('ds_read_b64_tr_b16 %s, v%d offset:%d' % (vr(vKf + 4 * t + 2, 2), vTr, t * 4096 + 512)))
        a('s_mov_b32 vcc_lo, 0xaaaaaaaa')
        a('s_mov_b32 vcc_hi, 0xaaaaaaaa')
        for t in range(4):
            a.wait_lg(lt[t])
            a('v_mfma_f32_16x16x32_bf16 %s, %s, %s, %s' % (vr(vAS, 4), vr(vKf + 4 * t, 4), vr(vKf + 16 + 4 * t, 4), '0' if t == 0 else vr(vAS, 4)))
        G = vAS + 4
        a('v_cndmask_b32 v%d, v%d, v%d, vcc' % (G, vAS, vAS + 2))
        a('v_cndmask_b32 v%d, v%d, v%d, vcc' % (G + 1, vAS + 1, vAS + 3))
        a('v_mov_b32 v%d, s%d' % (G + 3, sXcc))
        xor3(G + 2, G, G + 1, vTag)
        a('v_xor_b32 v%d, v%d, v%d' % (G + 2, G + 2, G + 3))
        a('s_mov_b32 exec_lo, 0x00030003')
        a('s_mov_b32 exec_hi, 0x00030003')
        a('buffer_store_dwordx4 %s, v%d, %s, s%d offen %s' % (vr(G, 4), vQw, sr(rWS, 4), sPub, qflag))
        a('s_mov_b64 exec, -1')
        stamp(True)

    def ln2():
        a.wait_vm(small['t'])
        unpack(vXf, vX, 4)
        a('s_lshl_b32 s%d, s%d, 2' % (sT1, sP))
        a('s_add_u32 s%d, s%d, %d' % (sT1, sT1, L_XN))
        a('v_mov_b32 v%d, s%d' % (vH, sT1))
        a('ds_read_b32 v%d, v%d' % (vH + 2, vH))
        mb, rc = ln_stats(vXf, T)
        a.wait_lg()
        unpack(vH, vH + 2, 1)
        for i in range(2):
            a('v_sub_f32 v%d, v%d, v%d' % (vH + i, vH + i, mb))
        for i in range(2):
            rnd(vH + i, vH + i)
        for i in range(2):
            a('v_mul_f32 v%d, v%d, v%d' % (vH + i, vH + i, rc))
        for i in range(2):
            rnd(vH + i, vH + i)
        a('v_mov_b32 v%d, 0' % vY)
        a('v_mov_b32 v%d, 0' % (vY + 1))

    c0 = -2.0 * math.sqrt(2.0 / math.pi) * LOG2E
    c1 = c0 * 0.044715

    def gelu_chunk(k):
        wf, bf_, u, tt = T, T + 2, T + 4, T + 8
        unpack(wf, vW1 + k, 1)
        unpack(bf_, vB1 + k, 1)
        a('s_mov_b32 s%d, %s' % (sC0, f32(c0)))
        a('v_mov_b32 v%d, %s' % (T + 12, f32(c1)))
        for c in range(2):
            for i in range(2):
                a('v_mul_f32 v%d, v%d, v%d' % (u + 2 * c + i, vH + c, wf + i))
        for i in range(4):
            rnd(u + i, u + i)
        for i in range(4):
            a('v_add_f32 v%d, v%d, v%d' % (u + i, u + i, bf_ + (i & 1)))
        for i in range(4):
            rnd(u + i, u + i)
        for i in range(4):
            a('v_mul_f32 v%d, v%d, v%d' % (tt + i, u + i, u + i))
        for i in range(4):
            a('v_fma_f32 v%d, v%d, v%d, s%d' % (tt + i, tt + i, T + 12, sC0))
        for i in range(4):
            a('v_mul_f32 v%d, v%d, v%d' % (tt + i, tt + i, u + i))
        for i in range(4):
            a('v_exp_f32 v%d, v%d' % (tt + i, tt + i))
        for i in range(4):
            a('v_add_f32 v%d, 1.0, v%d' % (tt + i, tt + i))
        for i in range(4):
            a('v_rcp_f32 v%d, v%d' % (tt + i, tt + i))
        for i in range(4):
            a('v_mul_f32 v%d, v%d, v%d' % (u + i, u + i, tt + i))
        for c in range(2):
            a('v_cvt_pk_bf16_f32 v%d, v%d, v%d' % (tt + c, u + 2 * c, u + 2 * c + 1))
        for c in range(2):
            a('v_dot2c_f32_bf16 v%d, v%d, v%d' % (vY + c, tt + c, vW2 + k))

    def y_finish():
        allred([vY, vY + 1], 'add_f32', [T, T + 1])
        a('s_lshl_b32 s%d, s%d, 3' % (sT1, sW))
        a('s_add_u32 s%d, s%d, %d' % (sT1, sT1, L_YP))
        a('v_mov_b32 v%d, s%d' % (T, sT1))
        a('s_mov_b64 exec, 1')
        a('ds_write_b64 v%d, %s' % (T, vr(vY, 2)))
        a('s_mov_b64 exec, -1')

    QG = vQ + 16

    def q_loads(fl='sc1'):
        for k in range(4):
            if k:
                a('s_add_u32 s%d, s%d, %d' % (sOff, sQg, k * 4096))
            tk = a('buffer_load_dwordx4 %s, v%d, %s, s%d offen %s' % (vr(QG + 4 * k, 4), vT16, sr(rWS, 4), sOff if k else sQg, fl))
        tok['QG'] = tk

    def q_check():
        for k in range(4):
            xor3(T + k, QG + 4 * k, QG + 4 * k + 1, QG + 4 * k + 2)
        for k in range(4):
            xor3(T + k, T + k, QG + 4 * k + 3, vTag)
        a('v_or3_b32 v%d, v%d, v%d, v%d' % (vTmp, T, T + 1, T + 2))
        a('v_or_b32 v%d, v%d, v%d' % (vTmp, vTmp, T + 3))
        a('v_cmp_ne_u32 vcc, 0, v%d' % vTmp)

    def q_issue():
        q_loads(qld)
        stamp(True)

    def q_take():
        a.wait_vm(tok['QG'])
        q_check()
        a('s_cbranch_vccnz L_qretry')
        a.label('L_qok')
        for c in range(2):
            a('v_add_f32 v%d, v%d, v%d' % (QG + c, QG + c, QG + 4 + c))
            a('v_add_f32 v%d, v%d, v%d' % (QG + 8 + c, QG + 8 + c, QG + 12 + c))
        for c in range(2):
            a('v_add_f32 v%d, v%d, v%d' % (QG + c, QG + c, QG + 8 + c))
        a('v_cvt_pk_bf16_f32 v%d, v%d, v%d' % (QG, QG, QG + 1))
        a('v_lshlrev_b32 v%d, 2, v0' % (QG + 1))
        a('v_add_u32 v%d, %d, v%d' % (QG + 1, L_QL, QG + 1))
        a('ds_write_b32 v%d, v%d' % (QG + 1, QG))
        for k in range(4):
            a('v_xor_b32 v%d, s%d, v%d' % (T + k, sXcc, QG + 4 * k + 3))
        a('v_or3_b32 v%d, v%d, v%d, v%d' % (T, T, T + 1, T + 2))
        a('v_or_b32 v%d, v%d, v%d' % (T, T, T + 3))
        a('v_cmp_ne_u32 vcc, 0, v%d' % T)
        a('s_lshl_b32 s%d, s%d, 2' % (sT1, sW))
        a('s_add_u32 s%d, s%d, %d' % (sT1, sT1, L_XF))
        a('s_or_b32 s%d, vcc_lo, vcc_hi' % sT2)
        a('v_mov_b32 v%d, s%d' % (T, sT1))
        a('v_mov_b32 v%d, s%d' % (T + 1, sT2))
        a('ds_write_b32 v%d, v%d' % (T, T + 1))

    def q_mode():
        a.wait_lg(tok['XF'])
        a('v_or3_b32 v%d, v%d, v%d, v%d' % (vTmp + 4, vTmp + 4, vTmp + 5, vTmp + 6))
        a('v_or_b32 v%d, v%d, v%d' % (vTmp + 4, vTmp + 4, vTmp + 7))
        a('v_readfirstlane_b32 s%d, v%d' % (sMode, vTmp + 4))
        if mapping != 'mod':
            a('s_mov_b32 s%d, 1' % sMode)
        if force is not None:
            a('s_mov_b32 s%d, %d' % (sMode, force))

    def q_frag():
        a('v_mov_b32 v%d, %d' % (vTmp, L_XF))
        a.wait_lg()
        a('s_barrier')
        tok['XF'] = a('ds_read_b128 %s, v%d' % (vr(vTmp + 4, 4), vTmp))
        for t in range(4):
            a('ds_read_b128 %s, v%d offset:%d' % (vr(vQ + 4 * t, 4), vQf, t * 64))
        stamp(True)

    SCALE = float(struct.unpack('<f', struct.pack('<f', 128 ** -0.5))[0])

    def qk(t):
        a.wait_vm(tok['K%db' % t])
        lt = {}
        for g in range(2):
            for k in range(4):
                lt[g, k] = a('ds_read_b128 %s, v%d offset:%d' % (vr(vKf + g * 16 + k * 4, 4), vKa + k, (t % 4) * 8192 + g * 4096))
        for g in range(2):
            for k in range(4):
                a.wait_lg(lt[g, k])
                a('v_mfma_f32_16x16x32_bf16 %s, %s, %s, %s' % (vr(vAS + 4 * g, 4), vr(vKf + g * 16 + k * 4, 4), vr(vQ + k * 4, 4), '0' if k == 0 else vr(vAS + 4 * g, 4)))
        S = vS + t * 8
        a('s_mov_b32 s%d, %s' % (sC0, f32(SCALE)))
        for i in range(8):
            rnd(S + i, vAS + i)
        for i in range(8):
            a('v_mul_f32 v%d, s%d, v%d' % (S + i, sC0, S + i))
        for i in range(8):
            rnd(S + i, S + i)
        if t == 0:
            a('v_max3_f32 v%d, v%d, v%d, v%d' % (vM, S, S + 1, S + 2))
            a('v_max3_f32 v%d, v%d, v%d, v%d' % (vM, vM, S + 3, S + 4))
            a('v_max3_f32 v%d, v%d, v%d, v%d' % (vM, vM, S + 5, S + 6))
            a('v_max_f32 v%d, v%d, v%d' % (vM, vM, S + 7))
        else:
            for i in range(4):
                a('v_max3_f32 v%d, v%d, v%d, v%d' % (vM, vM, S + 2 * i, S + 2 * i + 1))
        if t == 7:
            stamp(True)

    def sm_max():
        allred([vM], 'max_f32', [vTmp], bits=(4, 5))
        a('v_mul_f32 v%d, %s, v%d' % (vM, f32(LOG2E), vM))
        a('v_mov_b32 v%d, 0' % vLs)
        a('v_mov_b32 v%d, 0' % (vTmp + 1))

    def sm_exp(t):
        S = vS + t * 8
        a('s_mov_b32 s%d, %s' % (sC0, f32(LOG2E)))
        for i in range(8):
            a('v_fma_f32 v%d, v%d, s%d, -v%d' % (S + i, S + i, sC0, vM))
        for i in range(8):
            a('v_exp_f32 v%d, v%d' % (S + i, S + i))
        for i in range(4):
            a('v_add_f32 v%d, v%d, v%d' % (vLs, vLs, S + 2 * i))
            a('v_add_f32 v%d, v%d, v%d' % (vTmp + 1, vTmp + 1, S + 2 * i + 1))
        for i in range(4):
            a('v_cvt_pk_bf16_f32 v%d, v%d, v%d' % (S + i, S + 2 * i, S + 2 * i + 1))

    def sm_fin():
        a('v_add_f32 v%d, v%d, v%d' % (vLs, vLs, vTmp + 1))
        allred([vLs], 'add_f32', [vTmp], bits=(4, 5))
        a('s_lshl_b32 s%d, s%d, 3' % (sT1, sW))
        a('s_add_u32 s%d, s%d, %d' % (sT1, sT1, L_ML))
        a('v_lshlrev_b32 v%d, 3, v%d' % (vTmp, vL))
        a('v_add_u32 v%d, s%d, v%d' % (vTmp, sT1, vTmp))
        a('s_mov_b64 exec, 0x1111')
        a('ds_write_b64 v%d, %s' % (vTmp, vr(vM, 2)))
        a('s_mov_b64 exec, -1')

    def p_prep(t):
        P = vKf + (t & 1) * 16
        S = vS + t * 8
        for g in range(2):
            for r in range(4):
                pk = S + g * 2 + (r >> 1)
                sl = vSel + (r & 1) * 2
                a('v_perm_b32 v%d, v%d, v%d, v%d' % (P + g * 8 + r * 2, pk, pk, sl))
                a('v_perm_b32 v%d, v%d, v%d, v%d' % (P + g * 8 + r * 2 + 1, pk, pk, sl + 1))

    def pv(t, fine=False):
        P = vKf + (t & 1) * 16
        if not fine:
            a.wait_vm(tok['V%db' % t])
        for g in range(2):
            for r in range(4):
                if fine:
                    a.wait_vm(vtok[(t, g, r)])
                for hf in range(2):
                    fst = (t == 0 and g == 0 and r == 0)
                    a('v_mfma_f32_16x16x16_bf16 %s, %s, %s, %s' % (vr(vO + 4 * hf, 4), vr(P + g * 8 + r * 2, 2), ar(t * 32 + g * 16 + r * 4 + hf * 2, 2), '0' if fst else vr(vO + 4 * hf, 4)))

    def wo_pair():
        a.wait_vm(tok['WO'])
        a('s_mov_b32 s%d, 0x05040100' % sC0)
        a('s_mov_b32 s%d, 0x07060302' % sC1)
        for k in range(8):
            a('v_perm_b32 v%d, v%d, v%d, s%d' % (vWOp + k, vWOr + 2 * k + 1, vWOr + 2 * k, sC0))
            a('v_perm_b32 v%d, v%d, v%d, s%d' % (vWOp + 8 + k, vWOr + 2 * k + 1, vWOr + 2 * k, sC1))

    vRw, vRr, vPo, vOo = vWOr, vWOr + 1, vWOr + 2, vWOr + 3
    vR2w, vR2r = vWOr + 4, vWOr + 5
    sGa = 52

    def tail_setup():
        if tailpf:
            a('v_and_b32 v%d, 31, v0' % vTmp)
            a('v_lshlrev_b32 v%d, 7, v%d' % (vTmp, vTmp))
            a('v_add_u32 v%d, L_tail-L_pc, v%d' % (vTmp, vTmp))
            a('v_min_u32 v%d, L_codeend-L_pc-4, v%d' % (vTmp, vTmp))
            a('global_load_dword v%d, v%d, %s' % (vJunk, vTmp, sr(sPC, 2)))
        a('s_mul_i32 s%d, s%d, %d' % (sT1, sW, 2304 if red2 else 2048))
        a('s_add_u32 s%d, s%d, %d' % (sT1, sT1, L_RED))
        a('v_lshlrev_b32 v%d, %d, v%d' % (vRw, 4 if red2 else 5, vL))
        a('v_add_u32 v%d, s%d, v%d' % (vRw, sT1, vRw))
        a('v_lshlrev_b32 v%d, 3, v0' % vRr)
        a('v_add_u32 v%d, %d, v%d' % (vR2w, L_RED2, vRr))
        if red2:
            a('v_and_b32 v%d, 8, v%d' % (vRr, vRr))
            a('v_lshrrev_b32 v%d, 2, v0' % vPo)
            a('v_lshl_add_u32 v%d, v%d, 4, v%d' % (vRr, vPo, vRr))
            a('v_bfe_u32 v%d, v0, 1, 1' % vPo)
            a('v_mul_u32_u24 v%d, 1152, v%d' % (vPo, vPo))
            a('v_add_u32 v%d, v%d, v%d' % (vRr, vPo, vRr))
        a('v_add_u32 v%d, %d, v%d' % (vRr, L_RED, vRr))
        a('v_lshrrev_b32 v%d, 3, v%d' % (vPo, vL))
        a('v_mul_u32_u24 v%d, %d, v%d' % (vPo, PST, vPo))
        a('v_and_b32 v%d, 7, v%d' % (vOo, vL))
        a('v_lshl_add_u32 v%d, v%d, 4, v%d' % (vPo, vOo, vPo))
        if olay == 'prod':
            a('v_mul_u32_u24 v%d, %d, v%d' % (vOo, OST, vL))
        else:
            a('v_mul_u32_u24 v%d, %d, v%d' % (vOo, CST, vL))
        a('s_mul_i32 s%d, s%d, %d' % (sPub, sJ, PST))
        a('s_add_u32 s%d, s%d, 0x%x' % (sPub, sPub, WS_PART))
        a('s_and_b32 s%d, s%d, 0xe0' % (sT1, sJ))
        a('s_mul_i32 s%d, s%d, %d' % (sT1, sT1, PST))
        a('s_and_b32 s%d, s%d, 0x1c' % (sT2, sJ))
        a('s_add_u32 s%d, s%d, s%d' % (sT2, sT2, sW))
        a('s_lshl_b32 s%d, s%d, 7' % (sT2, sT2))
        a('s_add_u32 s%d, s%d, s%d' % (sT1, sT1, sT2))
        for jj in range(4):
            a('s_add_u32 s%d, s%d, 0x%x' % (sGa + jj, sT1, WS_PART + jj * 8 * PST))
        if olay == 'prod':
            a('s_and_b32 s%d, s%d, 3' % (sT1, sJ))
            a('s_lshl_b32 s%d, s%d, 6' % (sT1, sT1))
            a('s_lshr_b32 s%d, s%d, 2' % (sT2, sJ))
            a('s_add_u32 s%d, s%d, s%d' % (sT1, sT1, sT2))
            a('s_mul_i32 s%d, s%d, %d' % (sT1, sT1, OST))
            a('s_add_u32 s%d, s%d, 0x%x' % (sGa + 4, sT1, WS_OUTP))
            a('s_and_b32 s%d, s%d, 0xc0' % (sT1, sP))
            a('s_mul_i32 s%d, s%d, %d' % (sT1, sT1, OST))
            a('s_and_b32 s%d, s%d, 63' % (sT2, sP))
            a('s_lshl_b32 s%d, s%d, 4' % (sT2, sT2))
            a('s_add_u32 s%d, s%d, s%d' % (sT1, sT1, sT2))
            a('s_add_u32 s%d, s%d, 0x%x' % (sGa + 5, sT1, WS_OUTP))
        else:
            a('s_and_b32 s%d, s%d, 3' % (sT1, sJ))
            a('s_mul_i32 s%d, s%d, %d' % (sT1, sT1, 64 * CST))
            a('s_lshr_b32 s%d, s%d, 2' % (sT2, sJ))
            a('s_lshl_b32 s%d, s%d, 4' % (sT2, sT2))
            a('s_add_u32 s%d, s%d, s%d' % (sT1, sT1, sT2))
            a('s_add_u32 s%d, s%d, 0x%x' % (sGa + 4, sT1, WS_OUTP))
            a('s_mul_i32 s%d, s%d, %d' % (sT1, sP, CST))
            a('s_add_u32 s%d, s%d, 0x%x' % (sGa + 5, sT1, WS_OUTP))

    def warmup():
        vOst, vOld = (vT16, vOo) if olay == 'prod' else (vOo, vT16)
        if warm & 1:
            for jj in range(4):
                a('buffer_load_dword v%d, v%d, %s, s%d offen sc1' % (vJunk, vPo, sr(rWS, 4), sGa + jj))
            a('buffer_load_dword v%d, v%d, %s, s%d offen sc1' % (vJunk, vT16, sr(rWS, 4), sPub))
        if warm & 2:
            a('buffer_load_dword v%d, v%d, %s, s%d offen sc1' % (vJunk, vOld, sr(rWS, 4), sGa + 5))
            a('buffer_load_dword v%d, v%d, %s, s%d offen sc1' % (vJunk, vL4, sr(rWS, 4), sGa + 4))
        if warm & 8:
            a('v_lshrrev_b32 v%d, 4, v%d' % (vBv, vL))
            a('v_mul_u32_u24 v%d, %d, v%d' % (vBv, 21 * OST, vBv))
            a('buffer_load_dword v%d, v%d, %s, s%d offen sc1' % (vJunk, vBv, sr(rWS, 4), sGa + 5))
            a('buffer_load_dword v%d, off, %s, s%d sc1' % (vJunk, sr(rWS, 4), sGa + 4))
        if warm & 16:
            a('v_lshrrev_b32 v%d, 4, v%d' % (vBv, vL))
            a('v_mul_u32_u24 v%d, %d, v%d' % (vBv, 10 * PST, vBv))
            a('buffer_load_dword v%d, v%d, %s, s%d offen sc1' % (vJunk, vBv, sr(rWS, 4), sGa))
        if warm & 4:
            a('global_load_dword v%d, v%d, %s sc1' % (vJunk, vL4, sr(pOUT, 2)))

    def predirty():
        D = vTmp + 4
        a('s_cmp_lg_u32 s%d, 0' % sMode)
        a('s_cbranch_scc1 L_nopd')
        a.cond += 1
        for i in range(3):
            a('v_mov_b32 v%d, 0' % (D + i))
        a('v_not_b32 v%d, v%d' % (D + 3, vTag))
        a('buffer_store_dwordx4 %s, v%d, %s, s%d offen %s' % (vr(D, 4), vT16, sr(rWS, 4), sPub, pflag))
        a('s_nop 1')
        a.cond -= 1
        a.label('L_nopd')

    btok = {}

    def b_pub(k):
        a('v_add_u32 v%d, %d, v%d' % (vBv, k, vBt))
        a('buffer_store_dwordx4 %s, v%d, %s, 0 offen sc1' % (vr(vBv, 4), vBst, sr(rWS, 4)))

    def b_load(k):
        btok[k] = a('buffer_load_dword v%d, v%d, %s, 0 offen sc1' % (vBr + (len(btok) & 1), vBld, sr(rWS, 4))), vBr + (len(btok) & 1)

    def b_use(k):
        t, r = btok[k]
        a.wait_vm(t)
        a('v_sub_u32 v%d, v%d, v%d' % (r, r, vBt))
        a('v_cmp_gt_u32 vcc, 0x100, v%d' % r)
        a('v_cndmask_b32 v%d, 0, v%d, vcc' % (r, r))
        a('v_readlane_b32 s%d, v%d, s%d' % (sT1, r, sG))
        for b in (4, 2, 1):
            a('v_add_u32_dpp v%d, v%d, v%d row_ror:%d row_mask:0xf bank_mask:0xf' % (r, r, r, b))
        a('s_lshl_b32 s%d, s%d, 3' % (sT1, sT1))
        a('v_readfirstlane_b32 s%d, v%d' % (sT2, r))
        if theta:
            a('s_add_u32 s%d, s%d, %d' % (sT2, sT2, theta))
        a('s_cmp_gt_i32 s%d, s%d' % (sT1, sT2))
        a('s_cselect_b32 s%d, 1, 0' % sThr)
        if stamps:
            a('s_add_u32 s15, s15, s%d' % sThr)

    ctok = {}

    def c_add(k):
        r = vBr + (k & 1)
        a('s_cmp_eq_u32 s%d, %d' % (sW, k & 3))
        a('s_cselect_b32 s%d, 0, 0x7ff00000' % sT1)
        a('v_or_b32 v%d, s%d, v%d' % (vBv + 1, sT1, vBv))
        a('v_mov_b32 v%d, 1' % r)
        ctok[k] = a('buffer_atomic_add v%d, v%d, %s, 0 offen %s' % (r, vBv + 1, sr(rWS, 4), cflag))

    def c_use(k):
        r = vBr + (k & 1)
        n = 256 // NC
        a.wait_vm(ctok[k])
        a('v_readfirstlane_b32 s%d, v%d' % (sT1, r))
        a('s_mov_b32 s%d, 0' % sT2)
        for d in dth:
            a('s_cmp_lt_i32 s%d, %d' % (sT1, k * n + n // 2 - d))
            a('s_addc_u32 s%d, s%d, 0' % (sT2, sT2))
        if cforce is not None:
            a('s_mov_b32 s%d, %d' % (sT2, cforce))
        a('s_cmp_eq_u32 s%d, %d' % (sW, k & 3))
        a('s_cselect_b32 s%d, 0, 4' % sT1)
        a('v_mov_b32 v%d, s%d' % (r, sT2))
        a('v_add_u32 v%d, s%d, v%d' % (vBv + 1, sT1, vBv + 3))
        a('s_mov_b64 exec, 1')
        a('ds_write_b32 v%d, v%d' % (vBv + 1, r))
        a('s_mov_b64 exec, -1')

    def s_add(k):
        if clat == k:
            stamp()
        a('s_mov_b32 s%d, 1' % sCD)
        if cop == 'add':
            a('s_atomic_add s%d, %s, 0 glc' % (sCD, sr(sCA, 2)))
        else:
            a('s_load_dword s%d, %s, %d glc' % (sCD, sr(sCA, 2), 128 * k))

    def s_use(k):
        n = 1024 // NC
        if clat == k:
            stamp()
        a.wait_lg()
        if clat == k:
            stamp()
            stamp()
            stamp()
        a('s_mov_b32 s%d, 0' % sThr)
        for d in dth:
            a('s_cmp_lt_i32 s%d, %d' % (sCD, k * n + n // 2 - d))
            a('s_addc_u32 s%d, s%d, 0' % (sThr, sThr))
        if cforce is not None:
            a('s_mov_b32 s%d, %d' % (sThr, cforce))

    def w_add(k):
        a('s_cmp_lg_u32 s%d, 0' % sW)
        a('s_cbranch_scc1 L_wa%d' % k)
        if clat == k:
            stamp()
        a('s_mov_b32 s%d, 1' % sCD)
        if cop == 'add':
            a('s_atomic_add s%d, %s, 0 glc' % (sCD, sr(sCA, 2)))
        elif cop == 'ld':
            a('s_load_dword s%d, %s, %d glc' % (sCD, sr(sCA, 2), 128 * k))
        a.label('L_wa%d' % k)

    def w_use(k):
        n = 256 // NC
        a('s_cmp_lg_u32 s%d, 0' % sW)
        a('s_cbranch_scc1 L_wu%d' % k)
        if clat == k:
            stamp()
        a.wait_lg()
        if clat == k:
            stamp()
            stamp()
            stamp()
        a('s_mov_b32 s%d, 0' % sThr)
        for d in dth:
            a('s_cmp_lt_i32 s%d, %d' % (sCD, k * n + n // 2 - d))
            a('s_addc_u32 s%d, s%d, 0' % (sThr, sThr))
        if cforce is not None:
            a('s_mov_b32 s%d, %d' % (sThr, cforce))
        a('v_mov_b32 v%d, s%d' % (vBv, sThr))
        a('s_mov_b64 exec, 1')
        a('ds_write_b32 v%d, v%d' % (vBv + 3, vBv))
        a('s_mov_b64 exec, -1')
        a.label('L_wu%d' % k)
        a.smem_out = True
        a.lg_done = 0

    nlab = [0]

    def w_read():
        nlab[0] += 1
        a('s_cmp_eq_u32 s%d, 0' % sW)
        a('s_cbranch_scc1 L_wr%d' % nlab[0])
        a('ds_read_b32 v%d, v%d' % (vBv + 2, vBv + 3))
        a.label('L_wr%d' % nlab[0])
        a.smem_out = True

    def w_get():
        nlab[0] += 1
        a('s_cmp_eq_u32 s%d, 0' % sW)
        a('s_cbranch_scc1 L_wr%d' % nlab[0])
        a.wait_lg()
        a('v_readfirstlane_b32 s%d, v%d' % (sThr, vBv + 2))
        a.label('L_wr%d' % nlab[0])
        a.smem_out = True
        a.lg_done = 0
        if stamps:
            a('s_add_u32 s15, s15, s%d' % sThr)

    def c_read():
        ctok['r'] = a('ds_read_b32 v%d, v%d' % (vBv + 2, vBv + 3))

    def c_get():
        a.wait_lg(ctok['r'])
        a('v_readfirstlane_b32 s%d, v%d' % (sThr, vBv + 2))
        if stamps:
            a('s_add_u32 s15, s15, s%d' % sThr)

    sched = {i: [] for i in range(-1, N)}

    def at(i, f):
        i = min(i, N - 1)
        sched[i].append(f)
        return i

    p = W0 * sub - 1
    at(p, setup)
    at(p, ln1)
    p = at(max(ready('WQ') + d1 * sub, p), qpart)
    pbar = p
    for f in [ln2] + [lambda k=k: gelu_chunk(k) for k in range(4)] + [y_finish]:
        p = at(p + sub, f)
    pq = at(last[qpos], q_issue)
    p1 = at(rdy(pq), q_take)
    p2 = at(p1 + d2 * sub, q_frag)
    assert p <= p2, 'gelu must finish before qk'
    assert p2 < first['K4a'], (p2, first['K4a'])
    p = p2
    for t in range(4):
        p = at(min(max(p, p2 + t * sub), first['K%da' % (t + 4)] - 1), lambda t=t: qk(t))
    at(p, q_mode)
    at(max(ready('WO'), p), wo_pair)
    at(max(ready('WO'), p), tail_setup)
    if warm:
        at(last[warmpos] if warmpos else max(ready('WO'), p), warmup)
    if pdpos:
        assert last[pdpos] >= max(ready('WO'), p)
        at(last[pdpos], predirty)
    for t in range(4, 8):
        p = at(ready('K%db' % (t | 1 if qkpair == 1 else 7 if qkpair == 2 else t)), lambda t=t: qk(t))
    at(p, sm_max)
    for t in range(0, 8, 2):
        p = at(p + (sub if t % 4 else 0), lambda t=t: (sm_exp(t), sm_exp(t + 1)))
    at(p, sm_fin)
    late = []
    for t in range(8):
        r = max(ready('V%db' % t), p)
        if r < N - 1 and t < 7:
            at(r, lambda t=t: (p_prep(t), pv(t)))
        else:
            late.append(t)
    if bal:
        b0 = (W0 * sub if bstart is None else bstart)
        b1 = (N - 1 if bend is None else bend)
        for i in range(b0, b1 if thrmask is None else b0):
            if (i - b0) % pub == 0:
                sched[i].insert(0, lambda i=i: b_pub(i))
            if (i - b0) % chk == 0 and i + Wn + 1 < N - 1:
                assert chk * 2 > Wn, 'only two result regs'
                sched[i].insert(0, lambda i=i: b_load(i))
                sched[i + Wn + 1].insert(0, lambda i=i: b_use(i))
        a('s_mov_b32 s%d, %d' % (sThr, bal - 1))
        a('s_mov_b32 s15, 0')
        if thrmask is not None:
            a('s_and_b32 s%d, s2, 7' % sThr)
            a('s_lshr_b32 s%d, %d, s%d' % (sThr, thrmask, sThr))
            a('s_and_b32 s%d, s%d, 1' % (sThr, sThr))
    cget = set()
    if verbose:
        for i in range(N):
            print(i, seq[i], [getattr(f, '__name__', '?') for f in sched[i]], file=sys.stderr)
    if ctl == 3:
        cfirst = cpts[0][1] * sub + 1
        for u in range(cpts[0][1], N // sub - 1):
            sched[u * sub + sub - 1].append(w_read)
            sched[u * sub + sub].insert(0, w_get)
        for k, (i, j) in enumerate(cpts):
            sched[i * sub + sub - 1].append(lambda k=k: w_add(k))
            sched[j * sub].insert(0, lambda k=k: w_use(k))
        a('s_mov_b32 s%d, 0' % sThr)
        a('s_mov_b32 s15, 0')
    elif ctl == 2:
        for k, (i, j) in enumerate(cpts):
            sched[i * sub + sub - 1].append(lambda k=k: s_add(k))
            sched[j * sub].insert(0, lambda k=k: s_use(k))
        cfirst = cpts[0][1] * sub + 1
        a('s_mov_b32 s%d, 0' % sThr)
        a('s_mov_b32 s15, 0')
    elif ctl:
        c0_ = max(pbar + 1, cstart or 0)
        c1_ = N - 1 if cend is None else cend
        k = 0
        assert CP * 2 > Wn
        fu = None
        for i in range(c0_, c1_, CP):
            if i + Wn + 1 >= N - 2:
                break
            sched[i].insert(0, lambda k=k: c_add(k))
            sched[i + Wn + 1].insert(0, lambda k=k: c_use(k))
            fu = fu or i + Wn + 1
            k += 1
        for i in range(fu, N - 1, sub if ctl == 1 else 1):
            sched[i].append(c_read)
            cget.add(i + 1)
        a('s_mov_b32 s%d, 0' % sThr)
        a('s_mov_b32 s15, 0')
    utok = []
    for i, (n, s) in enumerate(seq):
        if i >= W0 * sub and i - Wf(i) >= 0:
            a.wait_vm(utok[i - Wf(i)])
        if bal and i >= W0 * sub and i - Wlo >= 0:
            a('s_cmp_eq_u32 s%d, 0' % sThr)
            a('s_cbranch_scc1 L_b%d' % i)
            a('s_waitcnt vmcnt(%d)' % (a.vm - utok[i - Wlo]))
            a.label('L_b%d' % i)
        if i in cget:
            c_get()
        if ctl == 2 and stamps and i >= cfirst:
            a('s_add_u32 s15, s15, s%d' % sThr)
        if (ctl in (2, 3) and i >= cfirst) or (ctl == 1 and cget and i >= min(cget)):
            for li, wl in enumerate(Wl):
                a('s_cmp_eq_u32 s%d, %d' % (sThr, li))
                a('s_cbranch_scc1 L_c%d' % i)
                a('s_waitcnt vmcnt(%d)' % min(63, a.vm - utok[i - wl]))
            a.label('L_c%d' % i)
        if ts and i in ts:
            stamp()
            a.smem_out = False
        a.comment('unit %s.%d' % (n, s))
        utok.append(issue(n, s))
        for f in sched[i]:
            f()
    ool = []
    a.label('L_tail')
    a.wait_lg()
    a('s_barrier')
    vA = vTmp
    a('s_lshl_b32 s%d, s%d, 5' % (sT1, sW))
    a('s_add_u32 s%d, s%d, %d' % (sT1, sT1, L_ML))
    a('v_mov_b32 v%d, s%d' % (vA, sT1))
    ML = vQ
    a('ds_read_b128 %s, v%d' % (vr(ML, 4), vA))
    a('ds_read_b128 %s, v%d offset:16' % (vr(ML + 4, 4), vA))
    a('v_mov_b32 v%d, %d' % (vA + 1, L_YP))
    a('ds_read_b128 %s, v%d' % (vr(ML + 8, 4), vA + 1))
    a('ds_read_b128 %s, v%d offset:16' % (vr(ML + 12, 4), vA + 1))
    a.wait_lg()
    Mx = vWt + 4
    a('v_max3_f32 v%d, v%d, v%d, v%d' % (Mx, ML, ML + 2, ML + 4))
    a('v_max_f32 v%d, v%d, v%d' % (Mx, Mx, ML + 6))
    for w in range(4):
        a('v_sub_f32 v%d, v%d, v%d' % (vWt + w, ML + 2 * w, Mx))
    for w in range(4):
        a('v_exp_f32 v%d, v%d' % (vWt + w, vWt + w))
    Ls = vWt + 5
    a('v_mul_f32 v%d, v%d, v%d' % (Ls, vWt, ML + 1))
    for w in range(1, 4):
        a('v_fmac_f32 v%d, v%d, v%d' % (Ls, vWt + w, ML + 2 * w + 1))
    a('v_rcp_f32 v%d, v%d' % (vWt + 6, Ls))
    a('v_log_f32 v%d, v%d' % (Ls, Ls))
    for w in range(4):
        a('v_mul_f32 v%d, v%d, v%d' % (vWt + w, vWt + w, vWt + 6))
    GP = vTmp + 4
    a('v_add_f32 v%d, v%d, v%d' % (GP + 2, Mx, Ls))
    a('v_xor_b32 v%d, v%d, v%d' % (GP + 3, GP + 2, vTag))
    for c in range(2):
        a('v_add_f32 v%d, v%d, v%d' % (ML + 8 + c, ML + 8 + c, ML + 10 + c))
        a('v_add_f32 v%d, v%d, v%d' % (ML + 12 + c, ML + 12 + c, ML + 14 + c))
    a('v_lshlrev_b32 v%d, 16, v%d' % (vB2, vB2))
    for c in range(2):
        a('v_add_f32 v%d, v%d, v%d' % (vY + c, ML + 8 + c, ML + 12 + c))
    for c in range(2):
        rnd(vY + c, vY + c)
    for c in range(2):
        a('v_add_f32 v%d, v%d, v%d' % (vY + c, vY + c, vB2))
    for c in range(2):
        rnd(vY + c, vY + c)
    vXu = vWt + 6
    unpack(vXu, vXp, 1)
    for t in late:
        p_prep(t)
        pv(t, fine=True)
    stamp()
    a('ds_write_b128 v%d, %s' % (vRw, vr(vO, 4)))
    a('ds_write_b128 v%d, %s offset:%d' % (vRw, vr(vO + 4, 4), 1152 if red2 else 16))
    a.wait_lg()
    a('s_barrier')
    R = vQ
    lt = [a('ds_read_b64 %s, v%d offset:%d' % (vr(R + 2 * w, 2), vRr, w * (2304 if red2 else 2048))) for w in range(4)]
    a('s_mov_b32 s%d, 0' % sCnt)
    a('s_cmp_lg_u32 s%d, 0' % sMode)
    for w in range(4):
        a.wait_lg(lt[w])
        if red2:
            sel = 'op_sel:[0,1,0] op_sel_hi:[1,1,1]' if w & 1 else 'op_sel_hi:[1,0,1]'
            if w == 0:
                a('v_pk_mul_f32 %s, %s, %s op_sel_hi:[1,0]' % (vr(GP, 2), vr(R, 2), vr(vWt, 2)))
            else:
                a('v_pk_fma_f32 %s, %s, %s, %s %s' % (vr(GP, 2), vr(R + 2 * w, 2), vr(vWt + (w & 2), 2), vr(GP, 2), sel))
            continue
        for c in range(2):
            if w == 0:
                a('v_mul_f32 v%d, v%d, v%d' % (GP + c, vWt, R + c))
            else:
                a('v_fmac_f32 v%d, v%d, v%d' % (GP + c, vWt + w, R + 2 * w + c))
    xor3(GP + 3, GP + 3, GP, GP + 1)
    a('s_cbranch_scc1 L_pslow')
    a('buffer_store_dwordx4 %s, v%d, %s, s%d offen %s' % (vr(GP, 4), vT16, sr(rWS, 4), sPub, pflag))
    a.label('L_pback')
    stamp()
    Gq = vQ
    GO = vTmp
    C = vQ + 16
    Mx = C + 4
    K = C + 12
    A0, A1, Wt = C + 8, C + 9, C + 10
    if pm:
        sM = 60
        for i in range(4):
            a('v_mov_b32 v%d, 0' % (GO + i))
        for jj in range(4):
            a('buffer_load_dwordx4 %s, v%d, %s, s%d offen %s' % (vr(Gq + 4 * jj, 4), vPo, sr(rWS, 4), sGa + jj, pld))
        a.label('L_pg')
        a.wait_vm0()
        if pst:
            a('s_memrealtime %s' % sr(sST + 6, 2))
        for jj in range(4):
            xor3(K + jj, Gq + 4 * jj, Gq + 4 * jj + 1, Gq + 4 * jj + 2)
        for jj in range(4):
            xor3(K + jj, K + jj, Gq + 4 * jj + 3, vTag)
        a('v_max3_f32 v%d, v%d, v%d, v%d' % (Mx, Gq + 2, Gq + 6, Gq + 10))
        a('v_or3_b32 v%d, v%d, v%d, v%d' % (C + 6, K, K + 1, K + 2))
        a('v_max_f32 v%d, v%d, v%d' % (Mx, Mx, Gq + 14))
        a('v_or_b32 v%d, v%d, v%d' % (C + 6, C + 6, K + 3))
        a('v_cmp_ne_u32 vcc, 0, v%d' % (C + 6))
        a('v_max_f32_dpp v%d, v%d, v%d row_ror:8 row_mask:0xf bank_mask:0xf' % (Mx, Mx, Mx))
        a('v_mov_b32 v%d, v%d' % (C + 5, Mx))
        a('s_cbranch_vccnz L_pretry')
        a.label('L_pcont')
        if om == 3:
            a('s_cmp_lg_u32 s%d, %d' % (sW, ow))
            a('s_cbranch_scc1 L_noe')
            a('buffer_load_dwordx4 %s, v%d, %s, s%d offen sc1' % (vr(vS, 4), vOo if olay == 'prod' else vT16, sr(rWS, 4), sGa + 5))
            a.label('L_noe')
        a('v_permlane16_swap_b32 v%d, v%d' % (Mx, C + 5))
        a('v_max_f32 v%d, v%d, v%d' % (Mx, Mx, C + 5))
        a('v_mov_b32 v%d, v%d' % (C + 5, Mx))
        a('v_permlane32_swap_b32 v%d, v%d' % (Mx, C + 5))
        a('v_max_f32 v%d, v%d, v%d' % (Mx, Mx, C + 5))
        for jj in range(4):
            a('v_sub_f32 v%d, v%d, v%d' % (C + jj, Gq + 4 * jj + 2, Mx))
        for jj in range(4):
            a('v_exp_f32 v%d, v%d' % (C + jj, C + jj))
        a('v_pk_mul_f32 %s, %s, %s op_sel_hi:[1,0]' % (vr(A0, 2), vr(Gq, 2), vr(C, 2)))
        a('v_add_f32 v%d, v%d, v%d' % (Wt, C, C + 1))
        a('v_pk_fma_f32 %s, %s, %s, %s op_sel:[0,1,0] op_sel_hi:[1,1,1]' % (vr(A0, 2), vr(Gq + 4, 2), vr(C, 2), vr(A0, 2)))
        a('v_add_f32 v%d, v%d, v%d' % (Wt, Wt, C + 2))
        a('v_pk_fma_f32 %s, %s, %s, %s op_sel_hi:[1,0,1]' % (vr(A0, 2), vr(Gq + 8, 2), vr(C + 2, 2), vr(A0, 2)))
        a('v_add_f32 v%d, v%d, v%d' % (Wt, Wt, C + 3))
        a('v_pk_fma_f32 %s, %s, %s, %s op_sel:[0,1,0] op_sel_hi:[1,1,1]' % (vr(A0, 2), vr(Gq + 12, 2), vr(C + 2, 2), vr(A0, 2)))
        allred([Wt, A0, A1], 'add_f32', [C, C + 1, C + 2], bits=(3, 4, 5))
        a('v_rcp_f32 v%d, v%d' % (Wt, Wt))
        a('v_pk_mul_f32 %s, %s, %s op_sel_hi:[1,0]' % (vr(A0, 2), vr(A0, 2), vr(Wt, 2)))
        a('v_cvt_pk_bf16_f32 v%d, v%d, v%d' % (A0, A0, A1))
        for k in range(8):
            for c in range(2):
                a('v_dot2c_f32_bf16_dpp v%d, v%d, v%d row_newbcast:%d row_mask:0xf bank_mask:0xf' % (GO + c + 2 * (k & 1), A0, vWOp + 8 * c + k, k))
        a('v_pk_add_f32 %s, %s, %s' % (vr(GO, 2), vr(GO, 2), vr(GO + 2, 2)))

        def pretry():
            a.label('L_pretry')
            a('s_add_u32 s%d, s%d, 1' % (sCnt, sCnt))
            a('s_cmp_ge_u32 s%d, %d' % (sCnt, SPIN))
            a('s_cbranch_scc1 L_pcont')
            if pst:
                a('s_memrealtime %s' % sr(sST + 4, 2))
            if pm == 1:
                a('s_mov_b64 exec, vcc')
            for jj in range(4):
                if pm == 2:
                    a('v_cmp_ne_u32 vcc, 0, v%d' % (K + jj))
                    a('s_mov_b64 exec, vcc')
                a('buffer_load_dwordx4 %s, v%d, %s, s%d offen %s' % (vr(Gq + 4 * jj, 4), vPo, sr(rWS, 4), sGa + jj, pld))
                if pm == 2:
                    a('s_mov_b64 exec, -1')
            a('s_mov_b64 exec, -1')
            a('s_branch L_pg')
        ool.append(pretry)
    else:
        a.label('L_pg')
        if pst:
            a('s_memrealtime %s' % sr(sST + 4, 2))
        for jj in range(4):
            a('buffer_load_dwordx4 %s, v%d, %s, s%d offen %s' % (vr(Gq + 4 * jj, 4), vPo, sr(rWS, 4), sGa + jj, pld))
        for i in range(4):
            a('v_mov_b32 v%d, 0' % (GO + i))
        a.wait_vm0()
        if pst:
            a('s_memrealtime %s' % sr(sST + 6, 2))
        a('v_max3_f32 v%d, v%d, v%d, v%d' % (Mx, Gq + 2, Gq + 6, Gq + 10))
        a('v_max_f32 v%d, v%d, v%d' % (Mx, Mx, Gq + 14))
        for jj in range(2):
            xor3(K + jj, Gq + 4 * jj, Gq + 4 * jj + 1, Gq + 4 * jj + 2)
        a('v_max_f32_dpp v%d, v%d, v%d row_ror:8 row_mask:0xf bank_mask:0xf' % (Mx, Mx, Mx))
        a('v_mov_b32 v%d, v%d' % (C + 5, Mx))
        for jj in range(2, 4):
            xor3(K + jj, Gq + 4 * jj, Gq + 4 * jj + 1, Gq + 4 * jj + 2)
        a('v_permlane16_swap_b32 v%d, v%d' % (Mx, C + 5))
        a('v_max_f32 v%d, v%d, v%d' % (Mx, Mx, C + 5))
        a('v_mov_b32 v%d, v%d' % (C + 5, Mx))
        for jj in range(2):
            xor3(K + jj, K + jj, Gq + 4 * jj + 3, vTag)
        a('v_permlane32_swap_b32 v%d, v%d' % (Mx, C + 5))
        a('v_max_f32 v%d, v%d, v%d' % (Mx, Mx, C + 5))
        for jj in range(4):
            a('v_sub_f32 v%d, v%d, v%d' % (C + jj, Gq + 4 * jj + 2, Mx))
        for jj in range(4):
            a('v_exp_f32 v%d, v%d' % (C + jj, C + jj))
        a('v_mul_f32 v%d, v%d, v%d' % (A0, C, Gq))
        a('v_mul_f32 v%d, v%d, v%d' % (A1, C, Gq + 1))
        a('v_add_f32 v%d, v%d, v%d' % (Wt, C, C + 1))
        for jj in range(1, 4):
            a('v_fmac_f32 v%d, v%d, v%d' % (A0, C + jj, Gq + 4 * jj))
            a('v_fmac_f32 v%d, v%d, v%d' % (A1, C + jj, Gq + 4 * jj + 1))
            if jj > 1:
                a('v_add_f32 v%d, v%d, v%d' % (Wt, Wt, C + jj))
        allred([Wt, A0, A1], 'add_f32', [C, C + 1, C + 2], bits=(3, 4, 5))
        a('v_rcp_f32 v%d, v%d' % (Wt, Wt))
        for jj in range(2, 4):
            xor3(K + jj, K + jj, Gq + 4 * jj + 3, vTag)
        a('v_mul_f32 v%d, v%d, v%d' % (A0, A0, Wt))
        a('v_mul_f32 v%d, v%d, v%d' % (A1, A1, Wt))
        a('v_cvt_pk_bf16_f32 v%d, v%d, v%d' % (A0, A0, A1))
        a('v_or3_b32 v%d, v%d, v%d, v%d' % (K, K, K + 1, K + 2))
        a('v_or_b32 v%d, v%d, v%d' % (K, K, K + 3))
        for k in range(8):
            for c in range(2):
                a('v_dot2c_f32_bf16_dpp v%d, v%d, v%d row_newbcast:%d row_mask:0xf bank_mask:0xf' % (GO + c + 2 * (k & 1), A0, vWOp + 8 * c + k, k))
        a('v_cmp_ne_u32 vcc, 0, v%d' % K)
        a('s_add_u32 s%d, s%d, 1' % (sCnt, sCnt))
        a('v_add_f32 v%d, v%d, v%d' % (GO, GO, GO + 2))
        a('v_add_f32 v%d, v%d, v%d' % (GO + 1, GO + 1, GO + 3))
        a('s_cbranch_vccz L_pok')
        if sleep:
            a('s_sleep %d' % sleep)
        a('s_cmp_lt_u32 s%d, %d' % (sCnt, SPIN))
        a('s_cbranch_scc1 L_pg')
    a.label('L_pok')
    a('ds_write_b64 v%d, %s' % (vR2w, vr(GO, 2)))
    stamp()
    a.wait_lg()
    a('s_barrier')
    a('s_cmp_lg_u32 s%d, 0' % sW)
    a('s_cbranch_scc1 %s' % ('L_w1' if ow else 'L_clean' if clean else 'L_fin'))
    lt = [a('ds_read_b64 %s, v%d offset:%d' % (vr(R + 2 * w, 2), vR2w, w * 512)) for w in range(4)]
    a('s_mov_b32 s%d, 0' % sCnt)
    a.wait_lg(lt[1])
    a('v_pk_add_f32 %s, %s, %s' % (vr(R, 2), vr(R, 2), vr(R + 2, 2)))
    a.wait_lg(lt[3])
    a('v_pk_add_f32 %s, %s, %s' % (vr(R + 4, 2), vr(R + 4, 2), vr(R + 6, 2)))
    a('v_pk_add_f32 %s, %s, %s' % (vr(GO, 2), vr(R, 2), vr(R + 4, 2)))
    vOst, vOld = (vT16, vOo) if olay == 'prod' else (vOo, vT16)
    if oat:
        a('v_mov_b32 v%d, v%d' % (GO + 2, GO + 1))
        a('v_xor_b32 v%d, v%d, v%d' % (GO + 1, GO, vTag))
        a('v_xor_b32 v%d, v%d, v%d' % (GO + 3, GO + 2, vTag))
        a('buffer_atomic_swap_x2 %s, v%d, %s, s%d offen %s' % (vr(GO, 2), vOst, sr(rWS, 4), sGa + 4, oflag))
        a('buffer_atomic_swap_x2 %s, v%d, %s, s%d offen offset:8 %s' % (vr(GO + 2, 2), vOst, sr(rWS, 4), sGa + 4, oflag))
    else:
        xor3(GO + 2, GO, GO + 1, vTag)
        a('buffer_store_dwordx4 %s, v%d, %s, s%d offen %s' % (vr(GO, 4), vOst, sr(rWS, 4), sGa + 4, oflag))
    if clean == 1:
        a('buffer_store_dwordx4 %s, v%d, %s, s%d offen sc1' % (vr(GP, 4), vT16, sr(rWS, 4), sPub))
    stamp()
    if ow:
        a('s_branch L_fin')
        a.label('L_w1')
        a('s_cmp_lg_u32 s%d, %d' % (sW, ow))
        a('s_cbranch_scc1 L_fin')
        a('s_mov_b32 s%d, 0' % sCnt)
    a('s_lshl_b32 s%d, s%d, 2' % (sT1, sP))
    a('v_mov_b32 v%d, s%d' % (Gq + 8, sT1))
    def ofin(B):
        if oat:
            assert B == Gq
            xor3(C + 4, B, B + 1, vTag)
            xor3(C + 5, B + 2, B + 3, vTag)
            a('v_mov_b32 v%d, v%d' % (B + 1, B + 2))
            a('v_or_b32 v%d, v%d, v%d' % (C + 4, C + 4, C + 5))
            a('v_cmp_ne_u32 vcc, 0, v%d' % (C + 4))
        else:
            xor3(C + 4, B, B + 1, B + 2)
            a('v_cmp_ne_u32 vcc, v%d, v%d' % (C + 4, vTag))
        if B != Gq:
            for c in range(2):
                a('v_add_f32_dpp v%d, v%d, v%d row_ror:1 row_mask:0xf bank_mask:0xf' % (Gq + c, B + c, B + c))
            allred([Gq, Gq + 1], 'add_f32', [C, C + 1], bits=(1, 2, 3, 4, 5))
        else:
            allred([Gq, Gq + 1], 'add_f32', [C, C + 1])
        for c in range(2):
            rnd(Gq + c, Gq + c)
        for c in range(2):
            a('v_add_f32 v%d, v%d, v%d' % (Gq + c, Gq + c, vXu + c))
        for c in range(2):
            rnd(Gq + c, Gq + c)
        for c in range(2):
            a('v_add_f32 v%d, v%d, v%d' % (Gq + c, Gq + c, vY + c))
        a('v_cvt_pk_bf16_f32 v%d, v%d, v%d' % (Gq, Gq, Gq + 1))
    if om:
        B = vS
        a('buffer_load_dwordx4 %s, v%d, %s, s%d offen sc1' % (vr(B, 4), vOld, sr(rWS, 4), sGa + 5))
        a.label('L_og')
        a('s_waitcnt vmcnt(%d)' % (1 if om == 3 else 0))
        if pst:
            a('s_memrealtime %s' % sr(sST + 10, 2))
        xor3(C + 4, B, B + 1, B + 2)
        for c in range(2):
            a('v_add_f32_dpp v%d, v%d, v%d row_ror:1 row_mask:0xf bank_mask:0xf' % (Gq + c, B + c, B + c))
        a('v_cmp_ne_u32 vcc, v%d, v%d' % (C + 4, vTag))
        allred([Gq, Gq + 1], 'add_f32', [C, C + 1], bits=(1,))
        a('s_cbranch_vccnz L_oretry')
        a.label('L_ocont')
        allred([Gq, Gq + 1], 'add_f32', [C, C + 1], bits=(2, 3, 4, 5))
        for c in range(2):
            rnd(Gq + c, Gq + c)
        a('v_pk_add_f32 %s, %s, %s' % (vr(Gq, 2), vr(Gq, 2), vr(vXu, 2)))
        for c in range(2):
            rnd(Gq + c, Gq + c)
        a('v_pk_add_f32 %s, %s, %s' % (vr(Gq, 2), vr(Gq, 2), vr(vY, 2)))
        a('v_cvt_pk_bf16_f32 v%d, v%d, v%d' % (Gq, Gq, Gq + 1))

        def oretry():
            a.label('L_oretry')
            a('s_add_u32 s%d, s%d, 1' % (sCnt, sCnt))
            a('s_cmp_ge_u32 s%d, %d' % (sCnt, SPIN))
            a('s_cbranch_scc1 L_ocont')
            if pst:
                a('s_memrealtime %s' % sr(sST + 8, 2))
            if om in (1, 3):
                a('s_mov_b64 exec, vcc')
            if sleep:
                a('s_sleep %d' % sleep)
            a('buffer_load_dwordx4 %s, v%d, %s, s%d offen sc1' % (vr(B, 4), vOld, sr(rWS, 4), sGa + 5))
            a('s_mov_b64 exec, -1')
            a('s_branch L_og')
        ool.append(oretry)
    elif opoll == 1:
        a.label('L_og')
        if pst:
            a('s_memrealtime %s' % sr(sST + 8, 2))
        a('buffer_load_dwordx4 %s, v%d, %s, s%d offen sc1' % (vr(Gq, 4), vOld, sr(rWS, 4), sGa + 5))
        a.wait_vm0()
        if pst:
            a('s_memrealtime %s' % sr(sST + 10, 2))
        ofin(Gq)
        a('s_add_u32 s%d, s%d, 1' % (sCnt, sCnt))
        a('s_cbranch_vccz L_ook')
        if sleep:
            a('s_sleep %d' % sleep)
        a('s_cmp_lt_u32 s%d, %d' % (sCnt, SPIN))
        a('s_cbranch_scc1 L_og')
    else:
        OB = vS
        assert opoll * 4 <= 64
        for k in range(1, opoll):
            a('v_mov_b32 v%d, 0' % (OB + 4 * k))
            a('v_mov_b32 v%d, 0' % (OB + 4 * k + 1))
            a('v_not_b32 v%d, v%d' % (OB + 4 * k + 2, vTag))
        a.label('L_og')
        for k in range(opoll):
            a('buffer_load_dwordx4 %s, v%d, %s, s%d offen sc1' % (vr(OB + 4 * k, 4), vOld, sr(rWS, 4), sGa + 5))
            a('s_waitcnt vmcnt(%d)' % (opoll - 1))
            ofin(OB + 4 * ((k + 1) % opoll))
            a('s_cbranch_vccz L_ook')
        a('s_add_u32 s%d, s%d, 1' % (sCnt, sCnt))
        a('s_cmp_lt_u32 s%d, %d' % (sCnt, SPIN))
        a('s_cbranch_scc1 L_og')
    a.label('L_ook')
    a('s_mov_b64 exec, 1')
    a('global_store_dword v%d, v%d, %s' % (Gq + 8, Gq, sr(pOUT, 2)))
    a('s_cmp_lg_u32 s2, 0')
    a('s_cbranch_scc1 L_fin')
    a('buffer_store_dword v%d, off, %s, 0 sc1' % (vTag, sr(rWS, 4)))
    a.label('L_fin')
    if dbg:
        a('s_memrealtime s[78:79]')
        a.wait_lg()
        a('s_mov_b64 exec, 1')
        a('v_mov_b32 v%d, 0' % vS)
        for i in range(nst[0]):
            if i == 10:
                continue
            a('v_mov_b32 v%d, s%d' % (vS + 1, sST + 2 * i))
            a('global_atomic_umax v%d, v%d, s[26:27] offset:%d' % (vS, vS + 1, 4 * i))
        a('v_mov_b32 v%d, s78' % (vS + 1))
        a('global_atomic_umax v%d, v%d, s[26:27] offset:%d' % (vS, vS + 1, 4 * 11))
        for k, i in enumerate((0, 2, 7)):
            a('s_not_b32 s78, s%d' % (sST + 2 * i))
            a('v_mov_b32 v%d, s78' % (vS + 1))
            a('global_atomic_umax v%d, v%d, s[26:27] offset:%d' % (vS, vS + 1, 4 * (12 + k)))
    elif stamps:
        a('s_memrealtime s[78:79]')
        a.wait_lg()
        a('s_waitcnt vmcnt(0)')
        a('s_mov_b64 exec, 1')
        a('s_getreg_b32 s%d, hwreg(HW_REG_XCC_ID)' % sT2)
        for i in range(11):
            a('v_mov_b32 v%d, s%d' % (vS + i, sST + 2 * i if i < nst[0] else sST))
        a('v_mov_b32 v%d, s78' % (vS + 11))
        a('v_mov_b32 v%d, s%d' % (vS + 12, sCnt))
        a('v_mov_b32 v%d, s%d' % (vS + 13, sT2))
        a('v_mov_b32 v%d, s%d' % (vS + 14, sMode))
        a('v_mov_b32 v%d, s15' % (vS + 15))
        a('s_lshl_b32 s%d, s2, 2' % sT1)
        a('s_add_u32 s%d, s%d, s%d' % (sT1, sT1, sW))
        a('s_lshl_b32 s%d, s%d, 6' % (sT1, sT1))
        a('s_add_u32 s%d, s%d, 0x%x' % (sT1, sT1, WS_STAMP))
        for i in range(4):
            a('buffer_store_dwordx4 %s, off, %s, s%d offset:%d' % (vr(vS + 4 * i, 4), sr(rWS, 4), sT1, 16 * i))
    a('s_endpgm')
    a.label('L_qretry')
    a.cond += 1
    a('s_mov_b32 s%d, 0' % sCnt)
    a.label('L_qr')
    q_loads()
    a('s_waitcnt vmcnt(0)')
    q_check()
    a('s_cbranch_vccz L_qok')
    a('s_add_u32 s%d, s%d, 1' % (sCnt, sCnt))
    a('s_cmp_lt_u32 s%d, %d' % (sCnt, SPIN))
    a('s_cbranch_scc1 L_qr')
    a('s_branch L_qok')
    if clean:
        a.label('L_clean')
        if clean == 1:
            a('buffer_store_dwordx4 %s, v%d, %s, s%d offen sc1' % (vr(GP, 4), vT16, sr(rWS, 4), sPub))
        else:
            a('s_cmp_lg_u32 s%d, 1' % sW)
            a('s_cbranch_scc1 L_fin')
            if clean == 2:
                a('s_cmp_lg_u32 s%d, 0' % sC)
                a('s_cbranch_scc1 L_fin')
            a('buffer_wbl2 sc1')
        a('s_branch L_fin')
    for f in ool:
        f()
    a.label('L_pslow')
    a('buffer_store_dwordx4 %s, v%d, %s, s%d offen sc1' % (vr(GP, 4), vT16, sr(rWS, 4), sPub))
    a('s_branch L_pback')
    a.cond -= 1
    a.label('L_codeend')
    a('s_endpgm')
    a.raw('.section .rodata,"a"')
    a.raw('.p2align 6')
    a.raw('.amdhsa_kernel ' + KN)
    for l in ('.amdhsa_next_free_vgpr 512', '.amdhsa_next_free_sgpr 102', '.amdhsa_accum_offset 256',
              '.amdhsa_group_segment_fixed_size 0', '.amdhsa_kernarg_size 104', '.amdhsa_user_sgpr_count 2',
              '.amdhsa_user_sgpr_kernarg_segment_ptr 1', '.amdhsa_system_sgpr_workgroup_id_x 1',
              '.amdhsa_float_denorm_mode_32 3'):
        a.raw('  ' + l)
    a.raw('.end_amdhsa_kernel')
    if verbose:
        print('late', late, 'N', N, 'vgpr', va.next, file=sys.stderr)
    return a.text()


if __name__ == '__main__':
    out = sys.argv[1]
    kw = eval('dict(%s)' % (sys.argv[2] if len(sys.argv) > 2 else ''))
    open(out, 'w').write(gen(verbose=True, **kw))
```

```python
import sys, math, struct
from asmlib import *

KN = "parallel_sum__gqa_block_cached__mixer_token_mlp__decode_kernel"
REF = "parallel_sum__gqa_block_cached__mixer_token_mlp__decode.s.ref"


def f32(x):
    return '0x%08x' % struct.unpack('<I', struct.pack('<f', x))[0]


WS_EPOCH = 0
WS_BRD = 0x8000
WS_Q = 0x10000
WS_PART = 0x100000
WS_OUTP = 0x200000
WS_STAMP = 0x300000
WS_SIZE = 0x400000
L_K = 0
L_WQ = 131072
L_RED = L_WQ
L_RED2 = L_RED + 9216
L_XN = 147456
L_QL = L_XN + 1024
L_ML = L_QL + 1024
L_YP = L_ML + 128
L_XF = L_YP + 32
L_CT = L_XF + 32
LDS_BYTES = 150016
OST = 1152
SPIN = 4000
LOG2E = 1.4426950408889634


def gen(W0=2, W=2, sub=1, mapping='mod', stamps=False, nv_pre=4, qpos='V0b', d1=1, d2=1, wo_pos='K3b', prefetch=True,
        tailpf=True, sleep=0, verbose=False, PST=4096, pflag='', pld='sc1', skip=(), dbg=False, clean=0, force=None, wqskew=0, gran=4, bal=0, Wlo=3, pub=2, chk=2, theta=0, bstart=None, bend=None, thrmask=None,
        pdpos=None, olay='prod', CST=1024, opoll=1, pexit=0, ts=None,
        ctl=0, NC=16, CP=2, Wl=(1,), dth=(2,), cstart=None, cend=None, CSTR=256, cforce=None, cflag='sc0 sc1', WSB=None, cpts=None, clat=None, cop='add', wsch=None, qflag='sc1', qkpair=0, warm=0, warmpos=None, vwarm=0, OUTP=None, qld='sc1', tld='sc1', pst=0, oat=0, oflag='sc1', pm=0, om=0, ow=0, red2=0, tflag='sc1', oflg='', polK=0, polV=0, wol=0):
    a = Asm()
    WS_OUTP = OUTP or globals()['WS_OUTP']
    hdr = [l for l in open(REF).read().split('\n') if l.startswith(';') and '@launch' not in l]
    for l in hdr:
        a.raw(l)
    a.raw('; @launch grid=(256,1,1) block=(256,1,1) lds=%d' % LDS_BYTES)
    a.raw('.amdgcn_target "amdgcn-amd-amdhsa--gfx950"')
    a.raw('.text')
    a.raw('.globl ' + KN)
    a.raw('.p2align 8')
    a.raw('.type %s,@function' % KN)
    a.label(KN)

    sW = 3
    pX, pK, pV, pWQ, pWO, pW1, pB1, pW2, pB2, pOUT, pWS = 4, 6, 8, 10, 12, 16, 18, 20, 22, 24, 28
    rK, rV, rWQ, rWO, rWS, rW1, rB1, rW2 = 32, 36, 40, 44, 48, 52, 56, 60
    sG, sC, sP, sJ = 64, 65, 66, 67
    sKL = 68
    sT0, sT1, sT2 = 69, 70, 71
    sOff = 72
    sCnt = 73
    sQg, sPub = 74, 75
    sPC = 76
    sXcc, sMode = 30, 31
    sC0, sC1 = 78, 79
    sST = 80
    sThr = 14
    sCA, sCD = 16, 18
    sTagS = 14
    nst = [0]

    def stamp(mid=False):
        if mid and ts:
            return
        if stamps:
            assert nst[0] < 11
            a('s_memrealtime %s' % sr(sST + 2 * nst[0], 2))
            nst[0] += 1

    va = VAlloc(1)
    vL = va(); vTag = va(); vT16 = va(); vL4 = va()
    vKo = va(4); vKa = va(4); vVo = va(2); vSel = va(4)
    vM = va(); vLs = va(); vY = va(2); vXp = va(); vB2 = va(); vJunk = va(); vTmp = va(8, 4)
    vZ = va(32, 4)
    vQ = va(32, 4)
    vKf = va(32, 4)
    vS = va(64, 4)
    vAS = va(8, 4)
    vO = va(8, 4)
    vWt = va(8, 4)
    vWOr = va(16, 4)
    vBv = va(4, 4); vBst = vBv + 1; vBld = vBv + 2; vBt = vBv + 3; vBr = va(2)
    vX = vZ; vXf = vZ + 4; vW1 = vZ + 12; vB1 = vZ + 16; vW2 = vZ + 20; vH = vZ + 24
    vWOp = vZ
    T = vKf

    def rnd(d, s):
        a('v_cvt_pk_bf16_f32 v%d, 0, v%d' % (d, s))

    def allred(regs, op, tmps, bits=(0, 1, 2, 3, 4, 5)):
        for b in bits:
            if b < 4:
                for r in regs:
                    a('v_%s_dpp v%d, v%d, v%d row_ror:%d row_mask:0xf bank_mask:0xf' % (op, r, r, r, 1 << b))
            else:
                for r, t in zip(regs, tmps):
                    a('v_mov_b32 v%d, v%d' % (t, r))
                for r, t in zip(regs, tmps):
                    a('v_permlane%d_swap_b32 v%d, v%d' % (16 if b == 4 else 32, r, t))
                for r, t in zip(regs, tmps):
                    a('v_%s v%d, v%d, v%d' % (op, r, r, t))

    def xor3(d, x, y, z):
        a('v_bitop3_b32 v%d, v%d, v%d, v%d bitop3:0x96' % (d, x, y, z))

    a('s_cmp_lt_u32 s2, 256')
    a('s_cbranch_scc1 L_go')
    a('s_endpgm')
    a.label('L_go')
    stamp()
    a('s_load_dwordx16 s[4:19], s[0:1], 0')
    a('s_load_dwordx8 s[20:27], s[0:1], 64')
    a('s_load_dwordx2 s[28:29], s[0:1], 96')
    a('v_lshrrev_b32 v%d, 6, v0' % vTmp)
    a('v_and_b32 v%d, 63, v0' % vL)
    a('v_readfirstlane_b32 s%d, v%d' % (sW, vTmp))
    a('s_getpc_b64 %s' % sr(sPC, 2))
    a.label('L_pc')
    if prefetch:
        a('s_lshr_b32 s%d, s2, 3' % sT0)
        a('s_and_b32 s%d, s%d, 3' % (sT0, sT0))
        a('s_lshl_b32 s%d, s%d, 2' % (sT0, sT0))
        a('s_add_u32 s%d, s%d, s%d' % (sT0, sT0, sW))
        a('s_lshl_b32 s%d, s%d, 10' % (sT0, sT0))
        a('v_and_b32 v%d, 7, v0' % (vTmp + 1))
        a('v_lshlrev_b32 v%d, 7, v%d' % (vTmp + 1, vTmp + 1))
        a('v_add_u32 v%d, s%d, v%d' % (vTmp + 1, sT0, vTmp + 1))
        a('v_min_u32 v%d, L_codeend-L_pc-4, v%d' % (vTmp + 1, vTmp + 1))
        a('global_load_dword v%d, v%d, %s' % (vJunk, vTmp + 1, sr(sPC, 2)))
    a('s_and_b32 s%d, s2, 7' % sG)
    a('s_lshr_b32 s%d, s2, 3' % sC)
    a('s_lshl_b32 s%d, s%d, 5' % (sP, sG))
    a('s_add_u32 s%d, s%d, s%d' % (sP, sP, sC))
    a('s_lshr_b32 s%d, s%d, 3' % (sT1, sC))
    a('s_lshl_b32 s%d, s%d, 2' % (sT1, sT1))
    a('s_add_u32 s%d, s%d, s%d' % (sT1, sT1, sW))
    a('s_lshl_b32 s%d, s%d, 18' % (sT1, sT1))
    a('s_lshl_b32 s%d, s%d, 10' % (sT2, sG))
    a('s_add_u32 s%d, s%d, s%d' % (sT1, sT1, sT2))
    a('s_and_b32 s%d, s%d, 7' % (sT2, sC))
    a('s_lshl_b32 s%d, s%d, 7' % (sT2, sT2))
    a('s_add_u32 s%d, s%d, s%d' % (sT1, sT1, sT2))
    sKb = sC
    if mapping == 'mod':
        a('s_mov_b32 s%d, s%d' % (sJ, sP))
    elif mapping == 'stk':
        a('s_lshr_b32 s%d, s2, 6' % sJ)
        a('s_and_b32 s%d, s%d, 7' % (sT0, sC))
        a('s_lshr_b32 s%d, s2, 2' % sKb)
        a('s_xor_b32 s%d, s%d, s%d' % (sKb, sKb, sJ))
        a('s_xor_b32 s%d, s%d, %d' % (sKb, sKb, polK))
        a('s_and_b32 s%d, s%d, 1' % (sKb, sKb))
        a('s_lshl_b32 s%d, s%d, 13' % (sKb, sKb))
        a('s_and_b32 s%d, s2, 1' % sT2)
        a('s_lshl_b32 s%d, s%d, 14' % (sT2, sT2))
        a('s_or_b32 s%d, s%d, s%d' % (sKb, sKb, sT2))
        a('s_and_b32 s%d, s2, 2' % sT2)
        a('s_lshl_b32 s%d, s%d, 11' % (sT2, sT2))
        a('s_or_b32 s%d, s%d, s%d' % (sKb, sKb, sT2))
        a('s_lshl_b32 s%d, s%d, 3' % (sJ, sJ))
        a('s_add_u32 s%d, s%d, s%d' % (sJ, sJ, sG))
        a('s_mov_b32 s%d, s%d' % (sG, sT0))
        a('s_lshl_b32 s%d, s%d, 5' % (sT2, sG))
        a('s_add_u32 s%d, s%d, s%d' % (sJ, sJ, sT2))
    else:
        a('s_lshr_b32 s%d, s2, 5' % sG)
        a('s_and_b32 s%d, s2, 31' % sC)
        a('s_mov_b32 s%d, s2' % sJ)
    i15, ks, bsw, vWq, l16, zero = vTmp + 2, vTmp + 3, vTmp + 4, vTmp + 5, vTmp + 6, vTmp + 7
    a('v_and_b32 v%d, 15, v%d' % (i15, vL))
    a('v_lshrrev_b32 v%d, 4, v%d' % (ks, vL))
    a('v_xor_b32 v%d, v%d, v%d' % (bsw, i15, ks))
    a('v_lshlrev_b32 v%d, 4, v%d' % (bsw, bsw))
    a('v_lshl_add_u32 v%d, v%d, 8, v%d' % (vKo, ks, bsw))
    for j in range(1, 4):
        a('v_xor_b32 v%d, 0x%x, v%d' % (vKo + j, j << 6, vKo))
    a('v_lshrrev_b32 v%d, 3, v%d' % (vWq, vL))
    a('v_lshlrev_b32 v%d, 13, v%d' % (vWq, vWq))
    a('v_and_b32 v%d, 7, v%d' % (l16, vL))
    a('v_lshl_add_u32 v%d, v%d, 4, v%d' % (vWq, l16, vWq))
    a('v_lshlrev_b32 v%d, 4, v%d' % (l16, vL))
    a('v_mov_b32 v%d, 0' % zero)
    a('s_lshl_b32 s%d, s%d, 18' % (sT0, sJ))
    a('s_lshl_b32 s%d, s%d, %d' % (sT2, sW, 12 if gran == 4 else 13))
    a('s_add_u32 s%d, s%d, s%d' % (sT0, sT0, sT2))
    KVN = 0x3d000 if gran == 4 else 0x3a000
    if mapping == 'stk':
        KVN = 0x1e8000
        a('s_lshr_b32 s%d, s%d, 3' % (sT0, sJ))
        a('s_lshl_b32 s%d, s%d, 21' % (sT0, sT0))
        a('s_lshl_b32 s%d, s%d, 15' % (sT2, sW))
        a('s_add_u32 s%d, s%d, s%d' % (sT0, sT0, sT2))

    def setoff(tl, half, isv):
        if mapping == 'stk':
            u = 2 * tl + half
            xm = (((u >> 2) & 1) << 14) | ((u >> 3) << 12) | (((polK ^ polV) << 13) if isv else 0)
            a('s_xor_b32 s%d, s%d, 0x%x' % (sOff, sKb, xm + u * 131072))
        else:
            a('s_mov_b32 s%d, 0x%x' % (sOff, uoff(tl, half)))
    uoff = (lambda tl, half: (2 * tl + half) * 16384) if gran == 4 else (lambda tl, half: tl * 32768 + half * 4096)
    a('s_lshl_b32 s%d, s%d, 15' % (sKL, sW))
    a('s_lshl_b32 s%d, s%d, 12' % (sT2, sW))
    a('s_add_u32 m0, s%d, %d' % (sT2, L_WQ))
    a('s_mov_b32 s%d, 0x%x' % (rWQ + 2, 31 * 8192 + 128))
    a('s_mov_b32 s%d, 0x20000' % (rWQ + 3))
    a('s_mov_b32 s%d, 0x%x' % (rK + 2, KVN))
    a('s_mov_b32 s%d, 0x20000' % (rK + 3))
    a.wait_lg()
    stamp()
    tX = a('global_load_dwordx4 %s, v%d, %s' % (vr(vX, 4), l16, sr(pX, 2)))
    if tld == 's':
        a('s_load_dword s%d, %s, 0' % (sTagS, sr(pWS, 2)))
        tE = tX
    else:
        tE = a('global_load_dword v%d, v%d, %s %s' % (vTag, zero, sr(pWS, 2), tld))
    a('s_add_u32 s%d, s%d, s%d' % (rWQ, pWQ, sT1))
    a('s_addc_u32 s%d, s%d, 0' % (rWQ + 1, pWQ + 1))
    a('s_add_u32 s%d, s%d, s%d' % (rK, pK, sT0))
    a('s_addc_u32 s%d, s%d, 0' % (rK + 1, pK + 1))

    vtok = {}
    tok = {}

    def parts(s):
        n = 4 // sub
        return range(s * n, (s + 1) * n)

    def issue(name, s):
        if name in skip:
            t = a('global_load_dword v%d, v%d, %s' % (vJunk, vL, sr(pWQ, 2)))
        elif name == 'WQ' and wqskew:
            a('s_and_b32 s%d, s2, 7' % sOff)
            a('s_lshl_b32 s%d, 1, s%d' % (sOff, sOff))
            a('s_and_b32 s%d, s%d, %d' % (sMode, sOff, wqskew))
            a('s_cbranch_scc0 L_nowq')
            a.cond += 1
            a('s_mov_b32 s%d, 0x%x' % (rWQ + 2, 31 * 8192 + 128 + 1024))
            for rep in range(2):
                for j in parts(s):
                    a('s_mov_b32 s%d, 0x%x' % (sOff, j * (65536 - 1024) + rep * 1024))
                    a('buffer_load_dwordx4 v%d, %s, %s offen offset:%d nt lds' % (vWq, sr(rWQ, 4), 's%d' % sOff, j * 1024))
            a.cond -= 1
            a.label('L_nowq')
            t = a('global_load_dword v%d, v%d, %s' % (vJunk, vL, sr(pX, 2)))
        elif name == 'WQ':
            for j in parts(s):
                if j:
                    a('s_mov_b32 s%d, 0x%x' % (sOff, j * (65536 - 1024)))
                t = a('buffer_load_dwordx4 v%d, %s, %s offen offset:%d nt lds' % (vWq, sr(rWQ, 4), 's%d' % sOff if j else '0', j * 1024))
        elif name == 'WO':
            for q in (parts(s) if isinstance(s, int) else s):
                a('s_mov_b32 s%d, %d' % (sOff, q * 4096))
                for r in range(4):
                    t = a('buffer_load_dword v%d, v%d, %s, s%d offen offset:%d nt' % (vWOr + q * 4 + r, vL4, sr(rWO, 4), sOff, r * 1024))
        elif name[0] == 'K':
            tl, half = int(name[1]), 'ab'.index(name[2])
            a('s_add_u32 m0, s%d, %d' % (sKL, (tl % 4) * 8192 + half * 4096))
            setoff(tl, half, 0)
            for j in parts(s):
                t = a('buffer_load_dwordx4 v%d, %s, s%d offen offset:%d nt lds' % (vKo + j, sr(rK, 4), sOff, j * 1024))
        else:
            tl, half = int(name[1]), 'ab'.index(name[2])
            setoff(tl, half, 1)
            for r in parts(s):
                t = a('buffer_load_dwordx4 %s, v%d, %s, s%d offen offset:%d nt' % (ar(tl * 32 + half * 16 + r * 4, 4), vVo, sr(rV, 4), sOff, r * 256))
                vtok[(tl, half, r)] = t
        tok[name] = t
        return t

    names = ['WQ']
    for t in range(4):
        names += ['K%da' % t, 'K%db' % t]
    for t in range(nv_pre):
        names += ['V%da' % t, 'V%db' % t]
    for t in range(4, 8):
        names += ['K%da' % t, 'K%db' % t]
    for t in range(nv_pre, 8):
        names += ['V%da' % t, 'V%db' % t]
    if not wol:
        names.insert(names.index(wo_pos) + 1, 'WO')
    seq = [(n, s) for n in names for s in range(sub)]
    Wn = W
    last = {n: i for i, (n, s) in enumerate(seq)}
    first = {}
    for i, (n, s) in enumerate(seq):
        first.setdefault(n, i)
    N = len(seq)

    def Wf(i):
        if not wsch:
            return Wn
        u = i / sub
        if u <= wsch[0][0]:
            return wsch[0][1]
        for (u0, w0), (u1, w1) in zip(wsch, wsch[1:]):
            if u <= u1:
                return int(round(w0 + (w1 - w0) * (u - u0) / (u1 - u0)))
        return wsch[-1][1]

    def rdy(j):
        i = j
        while i - Wf(i) < j:
            i += 1
        return i

    def ready(n):
        return rdy(last[n])

    vTr, vXb, vXw, vQw, vQf = vWt, vWt + 1, vWt + 2, vWt + 3, vWt + 4
    small = {}

    def setup():
        a('s_getreg_b32 s%d, hwreg(HW_REG_XCC_ID, 0, 4)' % sXcc)
        a('s_mov_b32 s%d, 0x%x' % (rV + 2, KVN))
        a('s_mov_b32 s%d, 0x20000' % (rV + 3))
        a('s_add_u32 s%d, s%d, s%d' % (rV, pV, sT0))
        a('s_addc_u32 s%d, s%d, 0' % (rV + 1, pV + 1))
        a('v_lshlrev_b32 v%d, 4, v0' % vT16)
        a('v_lshlrev_b32 v%d, 2, v%d' % (vL4, vL))
        for r, p in ((rW1, pW1), (rB1, pB1), (rW2, pW2)):
            a('s_mov_b32 s%d, s%d' % (r, p))
            a('s_mov_b32 s%d, s%d' % (r + 1, p + 1))
            a('s_mov_b32 s%d, 3584' % (r + 2))
            a('s_mov_b32 s%d, 0x20000' % (r + 3))
        a('s_lshl_b32 s%d, s%d, 2' % (sT1, sP))
        a('v_mov_b32 v%d, s%d' % (vXp, sT1))
        for r, v in ((rW1, vW1), (rB1, vB1), (rW2, vW2)):
            a('buffer_load_dwordx4 %s, v%d, %s, 0 offen' % (vr(v, 4), vT16, sr(r, 4)))
        a('global_load_ushort v%d, v%d, %s' % (vB2, zero, sr(pB2, 2)))
        small['t'] = a('global_load_dword v%d, v%d, %s' % (vXp, vXp, sr(pX, 2)))
        a('s_mov_b32 s%d, s%d' % (rWS, pWS))
        a('s_mov_b32 s%d, s%d' % (rWS + 1, pWS + 1))
        a('s_mov_b32 s%d, 0x%x' % (rWS + 2, WS_SIZE))
        a('s_mov_b32 s%d, 0x20000' % (rWS + 3))
        a('s_and_b32 s%d, s%d, 0xfc' % (sT1, sJ))
        a('s_add_u32 s%d, s%d, s%d' % (sT1, sT1, sW))
        a('s_lshl_b32 s%d, s%d, 14' % (sT1, sT1))
        a('s_and_b32 s%d, s%d, 3' % (sT2, sJ))
        a('s_lshl_b32 s%d, s%d, 8' % (sT2, sT2))
        a('s_add_u32 s%d, s%d, s%d' % (sT1, sT1, sT2))
        a('s_add_u32 s%d, s%d, s%d' % (rWO, pWO, sT1))
        a('s_addc_u32 s%d, s%d, 0' % (rWO + 1, pWO + 1))
        a('s_mov_b32 s%d, %d' % (rWO + 2, 15 * 1024 + 256))
        a('s_mov_b32 s%d, 0x20000' % (rWO + 3))
        a('v_lshlrev_b32 v%d, 4, v%d' % (vVo, i15))
        a('v_lshl_add_u32 v%d, v%d, 10, v%d' % (vVo, ks, vVo))
        a('v_lshl_add_u32 v%d, v%d, 8, v%d' % (vKa, i15, bsw))
        a('v_add_u32 v%d, s%d, v%d' % (vKa, sKL, vKa))
        for j in range(1, 4):
            a('v_xor_b32 v%d, 0x%x, v%d' % (vKa + j, j << 6, vKa))
        e = vTmp
        a('v_and_b32 v%d, 3, v%d' % (e, vL))
        a('v_bfe_u32 v%d, v%d, 2, 2' % (vTmp + 1, vL))
        a('s_lshl_b32 s%d, s%d, 5' % (sT1, sW))
        a('s_add_u32 s%d, s%d, %d' % (sT1, sT1, L_WQ))
        a('v_lshlrev_b32 v%d, 3, v%d' % (vTr, e))
        a('v_lshl_add_u32 v%d, v%d, 7, v%d' % (vTr, vTmp + 1, vTr))
        a('v_lshl_add_u32 v%d, v%d, 10, v%d' % (vTr, ks, vTr))
        a('v_add_u32 v%d, s%d, v%d' % (vTr, sT1, vTr))
        a('s_lshr_b32 s%d, s%d, 3' % (sT1, sP))
        a('s_and_b32 s%d, s%d, 3' % (sT1, sT1))
        a('s_lshl_b32 s%d, s%d, 8' % (sT2, sT1))
        a('s_add_u32 s%d, s%d, %d' % (sT2, sT2, L_XN))
        a('v_lshlrev_b32 v%d, 4, v%d' % (vXb, ks))
        a('v_add_u32 v%d, s%d, v%d' % (vXb, sT2, vXb))
        a('v_add_u32 v%d, %d, v%d' % (vXw, L_XN, l16))
        a('s_lshr_b32 s%d, s%d, 5' % (sT2, sP))
        a('s_lshl_b32 s%d, s%d, 2' % (sT2, sT2))
        a('s_add_u32 s%d, s%d, s%d' % (sT2, sT2, sT1))
        a('s_lshl_b32 s%d, s%d, 12' % (sPub, sT2))
        a('s_and_b32 s%d, s%d, 7' % (sT2, sP))
        a('s_lshl_b32 s%d, s%d, 2' % (sT2, sT2))
        a('s_add_u32 s%d, s%d, s%d' % (sT2, sT2, sW))
        a('s_lshl_b32 s%d, s%d, 7' % (sT2, sT2))
        a('s_add_u32 s%d, s%d, s%d' % (sPub, sPub, sT2))
        a('s_add_u32 s%d, s%d, 0x%x' % (sPub, sPub, WS_Q))
        a('v_and_b32 v%d, 1, v%d' % (vQw, vL))
        a('v_lshl_add_u32 v%d, v%d, 1, v%d' % (vQw, ks, vQw))
        a('v_lshlrev_b32 v%d, 4, v%d' % (vQw, vQw))
        a('v_lshlrev_b32 v%d, 8, v%d' % (vQf, vTmp + 1))
        a('v_lshl_add_u32 v%d, v%d, 4, v%d' % (vQf, ks, vQf))
        a('v_add_u32 v%d, %d, v%d' % (vQf, L_QL, vQf))
        a('s_lshl_b32 s%d, s%d, 14' % (sQg, sG))
        a('s_add_u32 s%d, s%d, 0x%x' % (sQg, sQg, WS_Q))
        if bal:
            a('s_lshl_b32 s%d, s%d, 10' % (sT1, sC))
            a('s_add_u32 s%d, s%d, 0x%x' % (sT1, sT1, WS_BRD))
            a('v_and_b32 v%d, 7, v%d' % (vBld, vL))
            a('v_lshlrev_b32 v%d, 7, v%d' % (vBld, vBld))
            a('v_add_u32 v%d, s%d, v%d' % (vBld, sT1, vBld))
            a('s_lshl_b32 s%d, s%d, 7' % (sT2, sG))
            a('s_add_u32 s%d, s%d, s%d' % (sT1, sT1, sT2))
            a('v_add_u32 v%d, s%d, v%d' % (vBst, sT1, vT16))
            a('v_mov_b32 v%d, 0x7ffffff0' % vBv)
            a('v_cmp_gt_u32 vcc, 8, v0')
            a('v_cndmask_b32 v%d, v%d, v%d, vcc' % (vBst, vBv, vBst))
        if ctl in (2, 3):
            if ctl == 2:
                a('s_lshl_b32 s%d, s%d, 2' % (sT1, sC))
                a('s_add_u32 s%d, s%d, s%d' % (sT1, sT1, sW))
                a('s_lshr_b32 s%d, s%d, %d' % (sT2, sT1, NC.bit_length() - 1))
            else:
                a('v_mov_b32 v%d, %d' % (vBv + 3, L_CT))
                a('ds_write_b32 v%d, v%d' % (vBv + 3, zero))
                a('s_mov_b32 s%d, s%d' % (sT1, sC))
                a('s_lshr_b32 s%d, s%d, %d' % (sT2, sT1, NC.bit_length() - 1))
                a('s_or_b32 s%d, s%d, s%d' % (sT2, sT2, sW))
            a('s_and_b32 s%d, s%d, %d' % (sT1, sT1, NC - 1))
            a('s_mul_i32 s%d, s%d, %d' % (sT1, sT1, CSTR))
            a('s_add_u32 s%d, s%d, 0x%x' % (sT1, sT1, WSB or WS_BRD))
            a('s_add_u32 s%d, s%d, s%d' % (sCA, pWS, sT1))
            a('s_addc_u32 s%d, s%d, 0' % (sCA + 1, pWS + 1))
            a('s_or_b32 s%d, s%d, s%d' % (sT2, sT2, sG))
            a('s_cbranch_scc1 L_noinit')
            a('s_mov_b32 s%d, 0' % sCD)
            a('s_atomic_swap s%d, %s, 0' % (sCD, sr(sCA, 2)))
            a.label('L_noinit')
        elif ctl:
            a('s_and_b32 s%d, s%d, %d' % (sT1, sC, NC - 1))
            a('s_mul_i32 s%d, s%d, %d' % (sT1, sT1, CSTR))
            a('s_add_u32 s%d, s%d, 0x%x' % (sT1, sT1, WSB or WS_BRD))
            a('v_mov_b32 v%d, s%d' % (vBv + 1, sT1))
            a('v_mov_b32 v%d, 0x7ff00000' % vBv)
            a('v_cmp_eq_u32 vcc, 0, v%d' % vL)
            a('v_cndmask_b32 v%d, v%d, v%d, vcc' % (vBv, vBv, vBv + 1))
            a('s_or_b32 s%d, s%d, s%d' % (sT1, sG, sW))
            a('s_lshr_b32 s%d, s%d, %d' % (sT2, sC, NC.bit_length() - 1))
            a('s_or_b32 s%d, s%d, s%d' % (sT1, sT1, sT2))
            a('s_cselect_b32 s%d, 0x7ff00000, 0' % sT1)
            a('v_or_b32 v%d, s%d, v%d' % (vBv + 1, sT1, vBv))
            a('buffer_store_dword v%d, v%d, %s, 0 offen sc1' % (zero, vBv + 1, sr(rWS, 4)))
            a('v_mov_b32 v%d, %d' % (vBv + 3, L_CT))
            a('ds_write_b32 v%d, v%d' % (vBv + 3, zero))
        a('s_mov_b32 s%d, 0x0c0c0c0c' % sC0)
        for k, (ev0, lo) in enumerate(((0, 0x0100), (2, 0x0100), (0, 0x0302), (2, 0x0302))):
            a('v_mov_b32 v%d, s%d' % (vSel + k, sC0))
            a('v_mov_b32 v%d, 0x%08x' % (vTmp + 1, 0x0c0c0000 | lo))
            a('v_cmp_eq_u32 vcc, %d, v%d' % (ev0, e))
            a('v_cndmask_b32 v%d, v%d, v%d, vcc' % (vSel + k, vSel + k, vTmp + 1))
            a('v_mov_b32 v%d, 0x%08x' % (vTmp + 1, (lo << 16) | 0x0c0c))
            a('v_cmp_eq_u32 vcc, %d, v%d' % (ev0 + 1, e))
            a('v_cndmask_b32 v%d, v%d, v%d, vcc' % (vSel + k, vSel + k, vTmp + 1))

        if vwarm:
            a('buffer_load_dword v%d, v%d, %s, 0 offen' % (vJunk, zero, sr(rV, 4)))
            a('buffer_load_dword v%d, v%d, %s, 0 offen' % (vJunk, zero, sr(rWO, 4)))
            a('buffer_load_dword v%d, v%d, %s, s%d offen sc1' % (vJunk, zero, sr(rWS, 4), sQg))

    def unpack(dst, src, n):
        for i in range(n):
            a('v_lshlrev_b32 v%d, 16, v%d' % (dst + 2 * i, src + i))
            a('v_and_b32 v%d, 0xffff0000, v%d' % (dst + 2 * i + 1, src + i))

    def ln_stats(xf, t):
        s, tm = t + 8, t + 9
        a('v_add_f32 v%d, v%d, v%d' % (t, xf, xf + 1))
        a('v_add_f32 v%d, v%d, v%d' % (t + 1, xf + 2, xf + 3))
        a('v_add_f32 v%d, v%d, v%d' % (t + 2, xf + 4, xf + 5))
        a('v_add_f32 v%d, v%d, v%d' % (t + 3, xf + 6, xf + 7))
        a('v_add_f32 v%d, v%d, v%d' % (t, t, t + 1))
        a('v_add_f32 v%d, v%d, v%d' % (t + 2, t + 2, t + 3))
        a('v_add_f32 v%d, v%d, v%d' % (s, t, t + 2))
        allred([s], 'add_f32', [tm])
        a('v_mul_f32 v%d, %s, v%d' % (s, f32(1 / 512), s))
        for i in range(8):
            a('v_sub_f32 v%d, v%d, v%d' % (t + i, xf + i, s))
        rnd(s, s)
        a('v_mul_f32 v%d, v%d, v%d' % (t, t, t))
        a('v_mul_f32 v%d, v%d, v%d' % (t + 1, t + 1, t + 1))
        for i in range(2, 8):
            a('v_fmac_f32 v%d, v%d, v%d' % (t + (i & 1), t + i, t + i))
        a('v_add_f32 v%d, v%d, v%d' % (t, t, t + 1))
        allred([t], 'add_f32', [tm])
        a('v_mul_f32 v%d, %s, v%d' % (t, f32(1 / 512), t))
        rnd(t, t)
        a('v_add_f32 v%d, %s, v%d' % (t, f32(1e-5), t))
        rnd(t, t)
        a('v_sqrt_f32 v%d, v%d' % (t, t))
        rnd(t, t)
        a('v_rcp_f32 v%d, v%d' % (t, t))
        return s, t

    def ln1():
        if wqskew:
            n = a.vm - tE
            a('s_cmp_eq_u32 s%d, 0' % sMode)
            a('s_cbranch_scc1 L_w1')
            a('s_waitcnt vmcnt(%d)' % (n + 8))
            a('s_branch L_w2')
            a.label('L_w1')
            a('s_waitcnt vmcnt(%d)' % n)
            a.label('L_w2')
            a.vm_done = tE
        a.wait_vm(tE)
        if tld == 's':
            a.wait_lg()
            a('v_mov_b32 v%d, s%d' % (vTag, sTagS))
        a('s_mov_b32 s%d, 1664525' % sC0)
        a('v_mul_lo_u32 v%d, v%d, s%d' % (vTag, vTag, sC0))
        a('v_add_u32 v%d, 1013904223, v%d' % (vTag, vTag))
        if bal:
            a('v_and_b32 v%d, 0xffffff00, v%d' % (vBt, vTag))
        unpack(vXf, vX, 4)
        mb, rc = ln_stats(vXf, T)
        for i in range(8):
            a('v_sub_f32 v%d, v%d, v%d' % (vXf + i, vXf + i, mb))
        for i in range(8):
            rnd(vXf + i, vXf + i)
        for i in range(8):
            a('v_mul_f32 v%d, v%d, v%d' % (vXf + i, vXf + i, rc))
        for i in range(4):
            a('v_cvt_pk_bf16_f32 v%d, v%d, v%d' % (vX + i, vXf + 2 * i, vXf + 2 * i + 1))
        a('ds_write_b128 v%d, %s' % (vXw, vr(vX, 4)))

    def qpart():
        a.wait_vm(tok['WQ'])
        a.wait_lg()
        stamp(True)
        a('s_barrier')
        for t in range(4):
            a('ds_read_b128 %s, v%d offset:%d' % (vr(vKf + 16 + 4 * t, 4), vXb, t * 64))
        lt = []
        for t in range(4):
            a('ds_read_b64_tr_b16 %s, v%d offset:%d' % (vr(vKf + 4 * t, 2), vTr, t * 4096))
            lt.append(a('ds_read_b64_tr_b16 %s, v%d offset:%d' % (vr(vKf + 4 * t + 2, 2), vTr, t * 4096 + 512)))
        a('s_mov_b32 vcc_lo, 0xaaaaaaaa')
        a('s_mov_b32 vcc_hi, 0xaaaaaaaa')
        for t in range(4):
            a.wait_lg(lt[t])
            a('v_mfma_f32_16x16x32_bf16 %s, %s, %s, %s' % (vr(vAS, 4), vr(vKf + 4 * t, 4), vr(vKf + 16 + 4 * t, 4), '0' if t == 0 else vr(vAS, 4)))
        G = vAS + 4
        a('v_cndmask_b32 v%d, v%d, v%d, vcc' % (G, vAS, vAS + 2))
        a('v_cndmask_b32 v%d, v%d, v%d, vcc' % (G + 1, vAS + 1, vAS + 3))
        a('v_mov_b32 v%d, s%d' % (G + 3, sXcc))
        xor3(G + 2, G, G + 1, vTag)
        a('v_xor_b32 v%d, v%d, v%d' % (G + 2, G + 2, G + 3))
        a('s_mov_b32 exec_lo, 0x00030003')
        a('s_mov_b32 exec_hi, 0x00030003')
        a('buffer_store_dwordx4 %s, v%d, %s, s%d offen %s' % (vr(G, 4), vQw, sr(rWS, 4), sPub, qflag))
        a('s_mov_b64 exec, -1')
        stamp(True)

    def ln2():
        a.wait_vm(small['t'])
        unpack(vXf, vX, 4)
        a('s_lshl_b32 s%d, s%d, 2' % (sT1, sP))
        a('s_add_u32 s%d, s%d, %d' % (sT1, sT1, L_XN))
        a('v_mov_b32 v%d, s%d' % (vH, sT1))
        a('ds_read_b32 v%d, v%d' % (vH + 2, vH))
        mb, rc = ln_stats(vXf, T)
        a.wait_lg()
        unpack(vH, vH + 2, 1)
        for i in range(2):
            a('v_sub_f32 v%d, v%d, v%d' % (vH + i, vH + i, mb))
        for i in range(2):
            rnd(vH + i, vH + i)
        for i in range(2):
            a('v_mul_f32 v%d, v%d, v%d' % (vH + i, vH + i, rc))
        for i in range(2):
            rnd(vH + i, vH + i)
        a('v_mov_b32 v%d, 0' % vY)
        a('v_mov_b32 v%d, 0' % (vY + 1))

    c0 = -2.0 * math.sqrt(2.0 / math.pi) * LOG2E
    c1 = c0 * 0.044715

    def gelu_chunk(k):
        wf, bf_, u, tt = T, T + 2, T + 4, T + 8
        unpack(wf, vW1 + k, 1)
        unpack(bf_, vB1 + k, 1)
        a('s_mov_b32 s%d, %s' % (sC0, f32(c0)))
        a('v_mov_b32 v%d, %s' % (T + 12, f32(c1)))
        for c in range(2):
            for i in range(2):
                a('v_mul_f32 v%d, v%d, v%d' % (u + 2 * c + i, vH + c, wf + i))
        for i in range(4):
            rnd(u + i, u + i)
        for i in range(4):
            a('v_add_f32 v%d, v%d, v%d' % (u + i, u + i, bf_ + (i & 1)))
        for i in range(4):
            rnd(u + i, u + i)
        for i in range(4):
            a('v_mul_f32 v%d, v%d, v%d' % (tt + i, u + i, u + i))
        for i in range(4):
            a('v_fma_f32 v%d, v%d, v%d, s%d' % (tt + i, tt + i, T + 12, sC0))
        for i in range(4):
            a('v_mul_f32 v%d, v%d, v%d' % (tt + i, tt + i, u + i))
        for i in range(4):
            a('v_exp_f32 v%d, v%d' % (tt + i, tt + i))
        for i in range(4):
            a('v_add_f32 v%d, 1.0, v%d' % (tt + i, tt + i))
        for i in range(4):
            a('v_rcp_f32 v%d, v%d' % (tt + i, tt + i))
        for i in range(4):
            a('v_mul_f32 v%d, v%d, v%d' % (u + i, u + i, tt + i))
        for c in range(2):
            a('v_cvt_pk_bf16_f32 v%d, v%d, v%d' % (tt + c, u + 2 * c, u + 2 * c + 1))
        for c in range(2):
            a('v_dot2c_f32_bf16 v%d, v%d, v%d' % (vY + c, tt + c, vW2 + k))

    def y_finish():
        allred([vY, vY + 1], 'add_f32', [T, T + 1])
        a('s_lshl_b32 s%d, s%d, 3' % (sT1, sW))
        a('s_add_u32 s%d, s%d, %d' % (sT1, sT1, L_YP))
        a('v_mov_b32 v%d, s%d' % (T, sT1))
        a('s_mov_b64 exec, 1')
        a('ds_write_b64 v%d, %s' % (T, vr(vY, 2)))
        a('s_mov_b64 exec, -1')

    QG = vQ + 16

    def q_loads(fl='sc1'):
        for k in range(4):
            if k:
                a('s_add_u32 s%d, s%d, %d' % (sOff, sQg, k * 4096))
            tk = a('buffer_load_dwordx4 %s, v%d, %s, s%d offen %s' % (vr(QG + 4 * k, 4), vT16, sr(rWS, 4), sOff if k else sQg, fl))
        tok['QG'] = tk

    def q_check():
        for k in range(4):
            xor3(T + k, QG + 4 * k, QG + 4 * k + 1, QG + 4 * k + 2)
        for k in range(4):
            xor3(T + k, T + k, QG + 4 * k + 3, vTag)
        a('v_or3_b32 v%d, v%d, v%d, v%d' % (vTmp, T, T + 1, T + 2))
        a('v_or_b32 v%d, v%d, v%d' % (vTmp, vTmp, T + 3))
        a('v_cmp_ne_u32 vcc, 0, v%d' % vTmp)

    def q_issue():
        q_loads(qld)
        stamp(True)

    def q_take():
        a.wait_vm(tok['QG'])
        q_check()
        a('s_cbranch_vccnz L_qretry')
        a.label('L_qok')
        for c in range(2):
            a('v_add_f32 v%d, v%d, v%d' % (QG + c, QG + c, QG + 4 + c))
            a('v_add_f32 v%d, v%d, v%d' % (QG + 8 + c, QG + 8 + c, QG + 12 + c))
        for c in range(2):
            a('v_add_f32 v%d, v%d, v%d' % (QG + c, QG + c, QG + 8 + c))
        a('v_cvt_pk_bf16_f32 v%d, v%d, v%d' % (QG, QG, QG + 1))
        a('v_lshlrev_b32 v%d, 2, v0' % (QG + 1))
        a('v_add_u32 v%d, %d, v%d' % (QG + 1, L_QL, QG + 1))
        a('ds_write_b32 v%d, v%d' % (QG + 1, QG))
        for k in range(4):
            a('v_xor_b32 v%d, s%d, v%d' % (T + k, sXcc, QG + 4 * k + 3))
        a('v_or3_b32 v%d, v%d, v%d, v%d' % (T, T, T + 1, T + 2))
        a('v_or_b32 v%d, v%d, v%d' % (T, T, T + 3))
        a('v_cmp_ne_u32 vcc, 0, v%d' % T)
        a('s_lshl_b32 s%d, s%d, 2' % (sT1, sW))
        a('s_add_u32 s%d, s%d, %d' % (sT1, sT1, L_XF))
        a('s_or_b32 s%d, vcc_lo, vcc_hi' % sT2)
        a('v_mov_b32 v%d, s%d' % (T, sT1))
        a('v_mov_b32 v%d, s%d' % (T + 1, sT2))
        a('ds_write_b32 v%d, v%d' % (T, T + 1))

    def q_mode():
        a.wait_lg(tok['XF'])
        a('v_or3_b32 v%d, v%d, v%d, v%d' % (vTmp + 4, vTmp + 4, vTmp + 5, vTmp + 6))
        a('v_or_b32 v%d, v%d, v%d' % (vTmp + 4, vTmp + 4, vTmp + 7))
        a('v_readfirstlane_b32 s%d, v%d' % (sMode, vTmp + 4))
        if mapping != 'mod':
            a('s_mov_b32 s%d, 1' % sMode)
        if force is not None:
            a('s_mov_b32 s%d, %d' % (sMode, force))

    def q_frag():
        a('v_mov_b32 v%d, %d' % (vTmp, L_XF))
        a.wait_lg()
        a('s_barrier')
        tok['XF'] = a('ds_read_b128 %s, v%d' % (vr(vTmp + 4, 4), vTmp))
        for t in range(4):
            a('ds_read_b128 %s, v%d offset:%d' % (vr(vQ + 4 * t, 4), vQf, t * 64))
        stamp(True)

    SCALE = float(struct.unpack('<f', struct.pack('<f', 128 ** -0.5))[0])

    def qk(t):
        a.wait_vm(tok['K%db' % t])
        lt = {}
        for g in range(2):
            for k in range(4):
                lt[g, k] = a('ds_read_b128 %s, v%d offset:%d' % (vr(vKf + g * 16 + k * 4, 4), vKa + k, (t % 4) * 8192 + g * 4096))
        for g in range(2):
            for k in range(4):
                a.wait_lg(lt[g, k])
                a('v_mfma_f32_16x16x32_bf16 %s, %s, %s, %s' % (vr(vAS + 4 * g, 4), vr(vKf + g * 16 + k * 4, 4), vr(vQ + k * 4, 4), '0' if k == 0 else vr(vAS + 4 * g, 4)))
        S = vS + t * 8
        a('s_mov_b32 s%d, %s' % (sC0, f32(SCALE)))
        for i in range(8):
            rnd(S + i, vAS + i)
        for i in range(8):
            a('v_mul_f32 v%d, s%d, v%d' % (S + i, sC0, S + i))
        for i in range(8):
            rnd(S + i, S + i)
        if t == 0:
            a('v_max3_f32 v%d, v%d, v%d, v%d' % (vM, S, S + 1, S + 2))
            a('v_max3_f32 v%d, v%d, v%d, v%d' % (vM, vM, S + 3, S + 4))
            a('v_max3_f32 v%d, v%d, v%d, v%d' % (vM, vM, S + 5, S + 6))
            a('v_max_f32 v%d, v%d, v%d' % (vM, vM, S + 7))
        else:
            for i in range(4):
                a('v_max3_f32 v%d, v%d, v%d, v%d' % (vM, vM, S + 2 * i, S + 2 * i + 1))
        if t == 7:
            stamp(True)

    def sm_max():
        allred([vM], 'max_f32', [vTmp], bits=(4, 5))
        a('v_mul_f32 v%d, %s, v%d' % (vM, f32(LOG2E), vM))
        a('v_mov_b32 v%d, 0' % vLs)
        a('v_mov_b32 v%d, 0' % (vTmp + 1))

    def sm_exp(t):
        S = vS + t * 8
        a('s_mov_b32 s%d, %s' % (sC0, f32(LOG2E)))
        for i in range(8):
            a('v_fma_f32 v%d, v%d, s%d, -v%d' % (S + i, S + i, sC0, vM))
        for i in range(8):
            a('v_exp_f32 v%d, v%d' % (S + i, S + i))
        for i in range(4):
            a('v_add_f32 v%d, v%d, v%d' % (vLs, vLs, S + 2 * i))
            a('v_add_f32 v%d, v%d, v%d' % (vTmp + 1, vTmp + 1, S + 2 * i + 1))
        for i in range(4):
            a('v_cvt_pk_bf16_f32 v%d, v%d, v%d' % (S + i, S + 2 * i, S + 2 * i + 1))

    def sm_fin():
        a('v_add_f32 v%d, v%d, v%d' % (vLs, vLs, vTmp + 1))
        allred([vLs], 'add_f32', [vTmp], bits=(4, 5))
        a('s_lshl_b32 s%d, s%d, 3' % (sT1, sW))
        a('s_add_u32 s%d, s%d, %d' % (sT1, sT1, L_ML))
        a('v_lshlrev_b32 v%d, 3, v%d' % (vTmp, vL))
        a('v_add_u32 v%d, s%d, v%d' % (vTmp, sT1, vTmp))
        a('s_mov_b64 exec, 0x1111')
        a('ds_write_b64 v%d, %s' % (vTmp, vr(vM, 2)))
        a('s_mov_b64 exec, -1')

    def p_prep(t):
        P = vKf + (t & 1) * 16
        S = vS + t * 8
        for g in range(2):
            for r in range(4):
                pk = S + g * 2 + (r >> 1)
                sl = vSel + (r & 1) * 2
                a('v_perm_b32 v%d, v%d, v%d, v%d' % (P + g * 8 + r * 2, pk, pk, sl))
                a('v_perm_b32 v%d, v%d, v%d, v%d' % (P + g * 8 + r * 2 + 1, pk, pk, sl + 1))

    def pv(t, fine=False):
        P = vKf + (t & 1) * 16
        if not fine:
            a.wait_vm(tok['V%db' % t])
        for g in range(2):
            for r in range(4):
                if fine:
                    a.wait_vm(vtok[(t, g, r)])
                for hf in range(2):
                    fst = (t == 0 and g == 0 and r == 0)
                    a('v_mfma_f32_16x16x16_bf16 %s, %s, %s, %s' % (vr(vO + 4 * hf, 4), vr(P + g * 8 + r * 2, 2), ar(t * 32 + g * 16 + r * 4 + hf * 2, 2), '0' if fst else vr(vO + 4 * hf, 4)))

    def wo_pair(w=True):
        if w:
            a.wait_vm(tok['WO'])
        a('s_mov_b32 s%d, 0x05040100' % sC0)
        a('s_mov_b32 s%d, 0x07060302' % sC1)
        for k in range(8):
            a('v_perm_b32 v%d, v%d, v%d, s%d' % (vWOp + k, vWOr + 2 * k + 1, vWOr + 2 * k, sC0))
            a('v_perm_b32 v%d, v%d, v%d, s%d' % (vWOp + 8 + k, vWOr + 2 * k + 1, vWOr + 2 * k, sC1))

    vTB = vZ + 16 if wol else vWOr
    vRw, vRr, vPo, vOo = vTB, vTB + 1, vTB + 2, vTB + 3
    vR2w, vR2r = vTB + 4, vTB + 5
    sGa = 52

    def tail_setup():
        if tailpf:
            a('v_and_b32 v%d, 31, v0' % vTmp)
            a('v_lshlrev_b32 v%d, 7, v%d' % (vTmp, vTmp))
            a('v_add_u32 v%d, L_tail-L_pc, v%d' % (vTmp, vTmp))
            a('v_min_u32 v%d, L_codeend-L_pc-4, v%d' % (vTmp, vTmp))
            a('global_load_dword v%d, v%d, %s' % (vJunk, vTmp, sr(sPC, 2)))
        a('s_mul_i32 s%d, s%d, %d' % (sT1, sW, 2304 if red2 else 2048))
        a('s_add_u32 s%d, s%d, %d' % (sT1, sT1, L_RED))
        a('v_lshlrev_b32 v%d, %d, v%d' % (vRw, 4 if red2 else 5, vL))
        a('v_add_u32 v%d, s%d, v%d' % (vRw, sT1, vRw))
        a('v_lshlrev_b32 v%d, 3, v0' % vRr)
        a('v_add_u32 v%d, %d, v%d' % (vR2w, L_RED2, vRr))
        if red2:
            a('v_and_b32 v%d, 8, v%d' % (vRr, vRr))
            a('v_lshrrev_b32 v%d, 2, v0' % vPo)
            a('v_lshl_add_u32 v%d, v%d, 4, v%d' % (vRr, vPo, vRr))
            a('v_bfe_u32 v%d, v0, 1, 1' % vPo)
            a('v_mul_u32_u24 v%d, 1152, v%d' % (vPo, vPo))
            a('v_add_u32 v%d, v%d, v%d' % (vRr, vPo, vRr))
        a('v_add_u32 v%d, %d, v%d' % (vRr, L_RED, vRr))
        a('v_lshrrev_b32 v%d, 3, v%d' % (vPo, vL))
        a('v_mul_u32_u24 v%d, %d, v%d' % (vPo, PST, vPo))
        a('v_and_b32 v%d, 7, v%d' % (vOo, vL))
        a('v_lshl_add_u32 v%d, v%d, 4, v%d' % (vPo, vOo, vPo))
        if olay == 'prod':
            a('v_mul_u32_u24 v%d, %d, v%d' % (vOo, OST, vL))
        else:
            a('v_mul_u32_u24 v%d, %d, v%d' % (vOo, CST, vL))
        a('s_mul_i32 s%d, s%d, %d' % (sPub, sJ, PST))
        a('s_add_u32 s%d, s%d, 0x%x' % (sPub, sPub, WS_PART))
        a('s_and_b32 s%d, s%d, 0xe0' % (sT1, sJ))
        a('s_mul_i32 s%d, s%d, %d' % (sT1, sT1, PST))
        a('s_and_b32 s%d, s%d, 0x1c' % (sT2, sJ))
        a('s_add_u32 s%d, s%d, s%d' % (sT2, sT2, sW))
        a('s_lshl_b32 s%d, s%d, 7' % (sT2, sT2))
        a('s_add_u32 s%d, s%d, s%d' % (sT1, sT1, sT2))
        for jj in range(4):
            a('s_add_u32 s%d, s%d, 0x%x' % (sGa + jj, sT1, WS_PART + jj * 8 * PST))
        if olay == 'prod':
            a('s_and_b32 s%d, s%d, 3' % (sT1, sJ))
            a('s_lshl_b32 s%d, s%d, 6' % (sT1, sT1))
            a('s_lshr_b32 s%d, s%d, 2' % (sT2, sJ))
            a('s_add_u32 s%d, s%d, s%d' % (sT1, sT1, sT2))
            a('s_mul_i32 s%d, s%d, %d' % (sT1, sT1, OST))
            a('s_add_u32 s%d, s%d, 0x%x' % (sGa + 4, sT1, WS_OUTP))
            a('s_and_b32 s%d, s%d, 0xc0' % (sT1, sP))
            a('s_mul_i32 s%d, s%d, %d' % (sT1, sT1, OST))
            a('s_and_b32 s%d, s%d, 63' % (sT2, sP))
            a('s_lshl_b32 s%d, s%d, 4' % (sT2, sT2))
            a('s_add_u32 s%d, s%d, s%d' % (sT1, sT1, sT2))
            a('s_add_u32 s%d, s%d, 0x%x' % (sGa + 5, sT1, WS_OUTP))
        else:
            a('s_and_b32 s%d, s%d, 3' % (sT1, sJ))
            a('s_mul_i32 s%d, s%d, %d' % (sT1, sT1, 64 * CST))
            a('s_lshr_b32 s%d, s%d, 2' % (sT2, sJ))
            a('s_lshl_b32 s%d, s%d, 4' % (sT2, sT2))
            a('s_add_u32 s%d, s%d, s%d' % (sT1, sT1, sT2))
            a('s_add_u32 s%d, s%d, 0x%x' % (sGa + 4, sT1, WS_OUTP))
            a('s_mul_i32 s%d, s%d, %d' % (sT1, sP, CST))
            a('s_add_u32 s%d, s%d, 0x%x' % (sGa + 5, sT1, WS_OUTP))

    def warmup():
        vOst, vOld = (vT16, vOo) if olay == 'prod' else (vOo, vT16)
        if warm & 1:
            for jj in range(4):
                a('buffer_load_dword v%d, v%d, %s, s%d offen sc1' % (vJunk, vPo, sr(rWS, 4), sGa + jj))
            a('buffer_load_dword v%d, v%d, %s, s%d offen sc1' % (vJunk, vT16, sr(rWS, 4), sPub))
        if warm & 2:
            a('buffer_load_dword v%d, v%d, %s, s%d offen sc1' % (vJunk, vOld, sr(rWS, 4), sGa + 5))
            a('buffer_load_dword v%d, v%d, %s, s%d offen sc1' % (vJunk, vL4, sr(rWS, 4), sGa + 4))
        if warm & 8:
            a('v_lshrrev_b32 v%d, 4, v%d' % (vBv, vL))
            a('v_mul_u32_u24 v%d, %d, v%d' % (vBv, 21 * OST, vBv))
            a('buffer_load_dword v%d, v%d, %s, s%d offen sc1' % (vJunk, vBv, sr(rWS, 4), sGa + 5))
            a('buffer_load_dword v%d, off, %s, s%d sc1' % (vJunk, sr(rWS, 4), sGa + 4))
        if warm & 16:
            a('v_lshrrev_b32 v%d, 4, v%d' % (vBv, vL))
            a('v_mul_u32_u24 v%d, %d, v%d' % (vBv, 10 * PST, vBv))
            a('buffer_load_dword v%d, v%d, %s, s%d offen sc1' % (vJunk, vBv, sr(rWS, 4), sGa))
        if warm & 4:
            a('global_load_dword v%d, v%d, %s sc1' % (vJunk, vL4, sr(pOUT, 2)))

    def predirty():
        D = vTmp + 4
        a('s_cmp_lg_u32 s%d, 0' % sMode)
        a('s_cbranch_scc1 L_nopd')
        a.cond += 1
        for i in range(3):
            a('v_mov_b32 v%d, 0' % (D + i))
        a('v_not_b32 v%d, v%d' % (D + 3, vTag))
        a('buffer_store_dwordx4 %s, v%d, %s, s%d offen %s' % (vr(D, 4), vT16, sr(rWS, 4), sPub, pflag))
        a('s_nop 1')
        a.cond -= 1
        a.label('L_nopd')

    btok = {}

    def b_pub(k):
        a('v_add_u32 v%d, %d, v%d' % (vBv, k, vBt))
        a('buffer_store_dwordx4 %s, v%d, %s, 0 offen sc1' % (vr(vBv, 4), vBst, sr(rWS, 4)))

    def b_load(k):
        btok[k] = a('buffer_load_dword v%d, v%d, %s, 0 offen sc1' % (vBr + (len(btok) & 1), vBld, sr(rWS, 4))), vBr + (len(btok) & 1)

    def b_use(k):
        t, r = btok[k]
        a.wait_vm(t)
        a('v_sub_u32 v%d, v%d, v%d' % (r, r, vBt))
        a('v_cmp_gt_u32 vcc, 0x100, v%d' % r)
        a('v_cndmask_b32 v%d, 0, v%d, vcc' % (r, r))
        a('v_readlane_b32 s%d, v%d, s%d' % (sT1, r, sG))
        for b in (4, 2, 1):
            a('v_add_u32_dpp v%d, v%d, v%d row_ror:%d row_mask:0xf bank_mask:0xf' % (r, r, r, b))
        a('s_lshl_b32 s%d, s%d, 3' % (sT1, sT1))
        a('v_readfirstlane_b32 s%d, v%d' % (sT2, r))
        if theta:
            a('s_add_u32 s%d, s%d, %d' % (sT2, sT2, theta))
        a('s_cmp_gt_i32 s%d, s%d' % (sT1, sT2))
        a('s_cselect_b32 s%d, 1, 0' % sThr)
        if stamps:
            a('s_add_u32 s15, s15, s%d' % sThr)

    ctok = {}

    def c_add(k):
        r = vBr + (k & 1)
        a('s_cmp_eq_u32 s%d, %d' % (sW, k & 3))
        a('s_cselect_b32 s%d, 0, 0x7ff00000' % sT1)
        a('v_or_b32 v%d, s%d, v%d' % (vBv + 1, sT1, vBv))
        a('v_mov_b32 v%d, 1' % r)
        ctok[k] = a('buffer_atomic_add v%d, v%d, %s, 0 offen %s' % (r, vBv + 1, sr(rWS, 4), cflag))

    def c_use(k):
        r = vBr + (k & 1)
        n = 256 // NC
        a.wait_vm(ctok[k])
        a('v_readfirstlane_b32 s%d, v%d' % (sT1, r))
        a('s_mov_b32 s%d, 0' % sT2)
        for d in dth:
            a('s_cmp_lt_i32 s%d, %d' % (sT1, k * n + n // 2 - d))
            a('s_addc_u32 s%d, s%d, 0' % (sT2, sT2))
        if cforce is not None:
            a('s_mov_b32 s%d, %d' % (sT2, cforce))
        a('s_cmp_eq_u32 s%d, %d' % (sW, k & 3))
        a('s_cselect_b32 s%d, 0, 4' % sT1)
        a('v_mov_b32 v%d, s%d' % (r, sT2))
        a('v_add_u32 v%d, s%d, v%d' % (vBv + 1, sT1, vBv + 3))
        a('s_mov_b64 exec, 1')
        a('ds_write_b32 v%d, v%d' % (vBv + 1, r))
        a('s_mov_b64 exec, -1')

    def s_add(k):
        if clat == k:
            stamp()
        a('s_mov_b32 s%d, 1' % sCD)
        if cop == 'add':
            a('s_atomic_add s%d, %s, 0 glc' % (sCD, sr(sCA, 2)))
        else:
            a('s_load_dword s%d, %s, %d glc' % (sCD, sr(sCA, 2), 128 * k))

    def s_use(k):
        n = 1024 // NC
        if clat == k:
            stamp()
        a.wait_lg()
        if clat == k:
            stamp()
            stamp()
            stamp()
        a('s_mov_b32 s%d, 0' % sThr)
        for d in dth:
            a('s_cmp_lt_i32 s%d, %d' % (sCD, k * n + n // 2 - d))
            a('s_addc_u32 s%d, s%d, 0' % (sThr, sThr))
        if cforce is not None:
            a('s_mov_b32 s%d, %d' % (sThr, cforce))

    def w_add(k):
        a('s_cmp_lg_u32 s%d, 0' % sW)
        a('s_cbranch_scc1 L_wa%d' % k)
        if clat == k:
            stamp()
        a('s_mov_b32 s%d, 1' % sCD)
        if cop == 'add':
            a('s_atomic_add s%d, %s, 0 glc' % (sCD, sr(sCA, 2)))
        elif cop == 'ld':
            a('s_load_dword s%d, %s, %d glc' % (sCD, sr(sCA, 2), 128 * k))
        a.label('L_wa%d' % k)

    def w_use(k):
        n = 256 // NC
        a('s_cmp_lg_u32 s%d, 0' % sW)
        a('s_cbranch_scc1 L_wu%d' % k)
        if clat == k:
            stamp()
        a.wait_lg()
        if clat == k:
            stamp()
            stamp()
            stamp()
        a('s_mov_b32 s%d, 0' % sThr)
        for d in dth:
            a('s_cmp_lt_i32 s%d, %d' % (sCD, k * n + n // 2 - d))
            a('s_addc_u32 s%d, s%d, 0' % (sThr, sThr))
        if cforce is not None:
            a('s_mov_b32 s%d, %d' % (sThr, cforce))
        a('v_mov_b32 v%d, s%d' % (vBv, sThr))
        a('s_mov_b64 exec, 1')
        a('ds_write_b32 v%d, v%d' % (vBv + 3, vBv))
        a('s_mov_b64 exec, -1')
        a.label('L_wu%d' % k)
        a.smem_out = True
        a.lg_done = 0

    nlab = [0]

    def w_read():
        nlab[0] += 1
        a('s_cmp_eq_u32 s%d, 0' % sW)
        a('s_cbranch_scc1 L_wr%d' % nlab[0])
        a('ds_read_b32 v%d, v%d' % (vBv + 2, vBv + 3))
        a.label('L_wr%d' % nlab[0])
        a.smem_out = True

    def w_get():
        nlab[0] += 1
        a('s_cmp_eq_u32 s%d, 0' % sW)
        a('s_cbranch_scc1 L_wr%d' % nlab[0])
        a.wait_lg()
        a('v_readfirstlane_b32 s%d, v%d' % (sThr, vBv + 2))
        a.label('L_wr%d' % nlab[0])
        a.smem_out = True
        a.lg_done = 0
        if stamps:
            a('s_add_u32 s15, s15, s%d' % sThr)

    def c_read():
        ctok['r'] = a('ds_read_b32 v%d, v%d' % (vBv + 2, vBv + 3))

    def c_get():
        a.wait_lg(ctok['r'])
        a('v_readfirstlane_b32 s%d, v%d' % (sThr, vBv + 2))
        if stamps:
            a('s_add_u32 s15, s15, s%d' % sThr)

    sched = {i: [] for i in range(-1, N)}

    def at(i, f):
        i = min(i, N - 1)
        sched[i].append(f)
        return i

    p = W0 * sub - 1
    at(p, setup)
    at(p, ln1)
    p = at(max(ready('WQ') + d1 * sub, p), qpart)
    pbar = p
    for f in [ln2] + [lambda k=k: gelu_chunk(k) for k in range(4)] + [y_finish]:
        p = at(p + sub, f)
    pq = at(last[qpos], q_issue)
    p1 = at(rdy(pq), q_take)
    p2 = at(p1 + d2 * sub, q_frag)
    assert p <= p2, 'gelu must finish before qk'
    assert p2 < first['K4a'], (p2, first['K4a'])
    p = p2
    for t in range(4):
        p = at(min(max(p, p2 + t * sub), first['K%da' % (t + 4)] - 1), lambda t=t: qk(t))
    at(p, q_mode)
    if wol:
        last['WO'] = 0
    else:
        at(max(ready('WO'), p), wo_pair)
    at(max(ready('WO'), p), tail_setup)
    if warm:
        at(last[warmpos] if warmpos else max(ready('WO'), p), warmup)
    if pdpos:
        assert last[pdpos] >= max(ready('WO'), p)
        at(last[pdpos], predirty)
    for t in range(4, 8):
        p = at(ready('K%db' % (t | 1 if qkpair == 1 else 7 if qkpair == 2 else t)), lambda t=t: qk(t))
    at(p, sm_max)
    for t in range(0, 8, 2):
        p = at(p + (sub if t % 4 else 0), lambda t=t: (sm_exp(t), sm_exp(t + 1)))
    at(p, sm_fin)
    late = []
    for t in range(8):
        r = max(ready('V%db' % t), p)
        if r < N - 1 and t < 7:
            at(r, lambda t=t: (p_prep(t), pv(t)))
        else:
            late.append(t)
    if bal:
        b0 = (W0 * sub if bstart is None else bstart)
        b1 = (N - 1 if bend is None else bend)
        for i in range(b0, b1 if thrmask is None else b0):
            if (i - b0) % pub == 0:
                sched[i].insert(0, lambda i=i: b_pub(i))
            if (i - b0) % chk == 0 and i + Wn + 1 < N - 1:
                assert chk * 2 > Wn, 'only two result regs'
                sched[i].insert(0, lambda i=i: b_load(i))
                sched[i + Wn + 1].insert(0, lambda i=i: b_use(i))
        a('s_mov_b32 s%d, %d' % (sThr, bal - 1))
        a('s_mov_b32 s15, 0')
        if thrmask is not None:
            a('s_and_b32 s%d, s2, 7' % sThr)
            a('s_lshr_b32 s%d, %d, s%d' % (sThr, thrmask, sThr))
            a('s_and_b32 s%d, s%d, 1' % (sThr, sThr))
    cget = set()
    if verbose:
        for i in range(N):
            print(i, seq[i], [getattr(f, '__name__', '?') for f in sched[i]], file=sys.stderr)
    if ctl == 3:
        cfirst = cpts[0][1] * sub + 1
        for u in range(cpts[0][1], N // sub - 1):
            sched[u * sub + sub - 1].append(w_read)
            sched[u * sub + sub].insert(0, w_get)
        for k, (i, j) in enumerate(cpts):
            sched[i * sub + sub - 1].append(lambda k=k: w_add(k))
            sched[j * sub].insert(0, lambda k=k: w_use(k))
        a('s_mov_b32 s%d, 0' % sThr)
        a('s_mov_b32 s15, 0')
    elif ctl == 2:
        for k, (i, j) in enumerate(cpts):
            sched[i * sub + sub - 1].append(lambda k=k: s_add(k))
            sched[j * sub].insert(0, lambda k=k: s_use(k))
        cfirst = cpts[0][1] * sub + 1
        a('s_mov_b32 s%d, 0' % sThr)
        a('s_mov_b32 s15, 0')
    elif ctl:
        c0_ = max(pbar + 1, cstart or 0)
        c1_ = N - 1 if cend is None else cend
        k = 0
        assert CP * 2 > Wn
        fu = None
        for i in range(c0_, c1_, CP):
            if i + Wn + 1 >= N - 2:
                break
            sched[i].insert(0, lambda k=k: c_add(k))
            sched[i + Wn + 1].insert(0, lambda k=k: c_use(k))
            fu = fu or i + Wn + 1
            k += 1
        for i in range(fu, N - 1, sub if ctl == 1 else 1):
            sched[i].append(c_read)
            cget.add(i + 1)
        a('s_mov_b32 s%d, 0' % sThr)
        a('s_mov_b32 s15, 0')
    utok = []
    for i, (n, s) in enumerate(seq):
        if i >= W0 * sub and i - Wf(i) >= 0:
            a.wait_vm(utok[i - Wf(i)])
        if bal and i >= W0 * sub and i - Wlo >= 0:
            a('s_cmp_eq_u32 s%d, 0' % sThr)
            a('s_cbranch_scc1 L_b%d' % i)
            a('s_waitcnt vmcnt(%d)' % (a.vm - utok[i - Wlo]))
            a.label('L_b%d' % i)
        if i in cget:
            c_get()
        if ctl == 2 and stamps and i >= cfirst:
            a('s_add_u32 s15, s15, s%d' % sThr)
        if (ctl in (2, 3) and i >= cfirst) or (ctl == 1 and cget and i >= min(cget)):
            for li, wl in enumerate(Wl):
                a('s_cmp_eq_u32 s%d, %d' % (sThr, li))
                a('s_cbranch_scc1 L_c%d' % i)
                a('s_waitcnt vmcnt(%d)' % min(63, a.vm - utok[i - wl]))
            a.label('L_c%d' % i)
        if ts and i in ts:
            stamp()
            a.smem_out = False
        a.comment('unit %s.%d' % (n, s))
        utok.append(issue(n, s))
        for f in sched[i]:
            f()
    ool = []
    if wol == 2:
        issue('WO', 0)
    if wol == 8:
        issue('WO', (0, 1))
    a.label('L_tail')
    a.wait_lg()
    a('s_barrier')
    vA = vTmp
    a('s_lshl_b32 s%d, s%d, 5' % (sT1, sW))
    a('s_add_u32 s%d, s%d, %d' % (sT1, sT1, L_ML))
    a('v_mov_b32 v%d, s%d' % (vA, sT1))
    ML = vQ
    a('ds_read_b128 %s, v%d' % (vr(ML, 4), vA))
    a('ds_read_b128 %s, v%d offset:16' % (vr(ML + 4, 4), vA))
    a('v_mov_b32 v%d, %d' % (vA + 1, L_YP))
    a('ds_read_b128 %s, v%d' % (vr(ML + 8, 4), vA + 1))
    a('ds_read_b128 %s, v%d offset:16' % (vr(ML + 12, 4), vA + 1))
    if wol == 7:
        issue('WO', 0)
    a.wait_lg()
    Mx = vWt + 4
    a('v_max3_f32 v%d, v%d, v%d, v%d' % (Mx, ML, ML + 2, ML + 4))
    a('v_max_f32 v%d, v%d, v%d' % (Mx, Mx, ML + 6))
    for w in range(4):
        a('v_sub_f32 v%d, v%d, v%d' % (vWt + w, ML + 2 * w, Mx))
    for w in range(4):
        a('v_exp_f32 v%d, v%d' % (vWt + w, vWt + w))
    Ls = vWt + 5
    a('v_mul_f32 v%d, v%d, v%d' % (Ls, vWt, ML + 1))
    for w in range(1, 4):
        a('v_fmac_f32 v%d, v%d, v%d' % (Ls, vWt + w, ML + 2 * w + 1))
    a('v_rcp_f32 v%d, v%d' % (vWt + 6, Ls))
    a('v_log_f32 v%d, v%d' % (Ls, Ls))
    for w in range(4):
        a('v_mul_f32 v%d, v%d, v%d' % (vWt + w, vWt + w, vWt + 6))
    GP = vTmp + 4
    a('v_add_f32 v%d, v%d, v%d' % (GP + 2, Mx, Ls))
    a('v_xor_b32 v%d, v%d, v%d' % (GP + 3, GP + 2, vTag))
    for c in range(2):
        a('v_add_f32 v%d, v%d, v%d' % (ML + 8 + c, ML + 8 + c, ML + 10 + c))
        a('v_add_f32 v%d, v%d, v%d' % (ML + 12 + c, ML + 12 + c, ML + 14 + c))
    a('v_lshlrev_b32 v%d, 16, v%d' % (vB2, vB2))
    for c in range(2):
        a('v_add_f32 v%d, v%d, v%d' % (vY + c, ML + 8 + c, ML + 12 + c))
    for c in range(2):
        rnd(vY + c, vY + c)
    for c in range(2):
        a('v_add_f32 v%d, v%d, v%d' % (vY + c, vY + c, vB2))
    for c in range(2):
        rnd(vY + c, vY + c)
    vXu = vWt + 6
    unpack(vXu, vXp, 1)
    if wol == 4:
        issue('WO', 0)
    if wol == 8:
        issue('WO', (2, 3))
    if wol == 9:
        issue('WO', (0, 1))
    for t in late:
        p_prep(t)
        if wol == 3 and t == 7:
            a.wait_vm(tok['V7a'])
            issue('WO', 0)
        if wol == 5 and t == 7:
            issue('WO', 0)
        if wol == 9 and t == 7:
            issue('WO', (2, 3))
        pv(t, fine=True)
    if wol == 6:
        issue('WO', 0)
    stamp()
    a('ds_write_b128 v%d, %s' % (vRw, vr(vO, 4)))
    a('ds_write_b128 v%d, %s offset:%d' % (vRw, vr(vO + 4, 4), 1152 if red2 else 16))
    a.wait_lg()
    a('s_barrier')
    R = vQ
    lt = [a('ds_read_b64 %s, v%d offset:%d' % (vr(R + 2 * w, 2), vRr, w * (2304 if red2 else 2048))) for w in range(4)]
    a('s_mov_b32 s%d, 0' % sCnt)
    a('s_cmp_lg_u32 s%d, 0' % sMode)
    for w in range(4):
        a.wait_lg(lt[w])
        if red2:
            sel = 'op_sel:[0,1,0] op_sel_hi:[1,1,1]' if w & 1 else 'op_sel_hi:[1,0,1]'
            if w == 0:
                a('v_pk_mul_f32 %s, %s, %s op_sel_hi:[1,0]' % (vr(GP, 2), vr(R, 2), vr(vWt, 2)))
            else:
                a('v_pk_fma_f32 %s, %s, %s, %s %s' % (vr(GP, 2), vr(R + 2 * w, 2), vr(vWt + (w & 2), 2), vr(GP, 2), sel))
            continue
        for c in range(2):
            if w == 0:
                a('v_mul_f32 v%d, v%d, v%d' % (GP + c, vWt, R + c))
            else:
                a('v_fmac_f32 v%d, v%d, v%d' % (GP + c, vWt + w, R + 2 * w + c))
    xor3(GP + 3, GP + 3, GP, GP + 1)
    a('s_cbranch_scc1 L_pslow')
    a('buffer_store_dwordx4 %s, v%d, %s, s%d offen %s' % (vr(GP, 4), vT16, sr(rWS, 4), sPub, pflag))
    a.label('L_pback')
    stamp()
    Gq = vQ
    GO = vTmp
    C = vQ + 16
    Mx = C + 4
    K = C + 12
    A0, A1, Wt = C + 8, C + 9, C + 10
    if pm:
        sM = 60
        for i in range(4):
            a('v_mov_b32 v%d, 0' % (GO + i))
        for jj in range(4):
            a('buffer_load_dwordx4 %s, v%d, %s, s%d offen %s' % (vr(Gq + 4 * jj, 4), vPo, sr(rWS, 4), sGa + jj, pld))
        if wol:
            a('s_waitcnt vmcnt(4)')
            wo_pair(False)
        a.label('L_pg')
        a.wait_vm0()
        if pst:
            a('s_memrealtime %s' % sr(sST + 6, 2))
        for jj in range(4):
            xor3(K + jj, Gq + 4 * jj, Gq + 4 * jj + 1, Gq + 4 * jj + 2)
        for jj in range(4):
            xor3(K + jj, K + jj, Gq + 4 * jj + 3, vTag)
        a('v_max3_f32 v%d, v%d, v%d, v%d' % (Mx, Gq + 2, Gq + 6, Gq + 10))
        a('v_or3_b32 v%d, v%d, v%d, v%d' % (C + 6, K, K + 1, K + 2))
        a('v_max_f32 v%d, v%d, v%d' % (Mx, Mx, Gq + 14))
        a('v_or_b32 v%d, v%d, v%d' % (C + 6, C + 6, K + 3))
        a('v_cmp_ne_u32 vcc, 0, v%d' % (C + 6))
        a('v_max_f32_dpp v%d, v%d, v%d row_ror:8 row_mask:0xf bank_mask:0xf' % (Mx, Mx, Mx))
        a('v_mov_b32 v%d, v%d' % (C + 5, Mx))
        a('s_cbranch_vccnz L_pretry')
        a.label('L_pcont')
        if om == 3:
            a('s_cmp_lg_u32 s%d, %d' % (sW, ow))
            a('s_cbranch_scc1 L_noe')
            a('buffer_load_dwordx4 %s, v%d, %s, s%d offen sc1' % (vr(vS, 4), vOo if olay == 'prod' else vT16, sr(rWS, 4), sGa + 5))
            a.label('L_noe')
        a('v_permlane16_swap_b32 v%d, v%d' % (Mx, C + 5))
        a('v_max_f32 v%d, v%d, v%d' % (Mx, Mx, C + 5))
        a('v_mov_b32 v%d, v%d' % (C + 5, Mx))
        a('v_permlane32_swap_b32 v%d, v%d' % (Mx, C + 5))
        a('v_max_f32 v%d, v%d, v%d' % (Mx, Mx, C + 5))
        for jj in range(4):
            a('v_sub_f32 v%d, v%d, v%d' % (C + jj, Gq + 4 * jj + 2, Mx))
        for jj in range(4):
            a('v_exp_f32 v%d, v%d' % (C + jj, C + jj))
        a('v_pk_mul_f32 %s, %s, %s op_sel_hi:[1,0]' % (vr(A0, 2), vr(Gq, 2), vr(C, 2)))
        a('v_add_f32 v%d, v%d, v%d' % (Wt, C, C + 1))
        a('v_pk_fma_f32 %s, %s, %s, %s op_sel:[0,1,0] op_sel_hi:[1,1,1]' % (vr(A0, 2), vr(Gq + 4, 2), vr(C, 2), vr(A0, 2)))
        a('v_add_f32 v%d, v%d, v%d' % (Wt, Wt, C + 2))
        a('v_pk_fma_f32 %s, %s, %s, %s op_sel_hi:[1,0,1]' % (vr(A0, 2), vr(Gq + 8, 2), vr(C + 2, 2), vr(A0, 2)))
        a('v_add_f32 v%d, v%d, v%d' % (Wt, Wt, C + 3))
        a('v_pk_fma_f32 %s, %s, %s, %s op_sel:[0,1,0] op_sel_hi:[1,1,1]' % (vr(A0, 2), vr(Gq + 12, 2), vr(C + 2, 2), vr(A0, 2)))
        allred([Wt, A0, A1], 'add_f32', [C, C + 1, C + 2], bits=(3, 4, 5))
        a('v_rcp_f32 v%d, v%d' % (Wt, Wt))
        a('v_pk_mul_f32 %s, %s, %s op_sel_hi:[1,0]' % (vr(A0, 2), vr(A0, 2), vr(Wt, 2)))
        a('v_cvt_pk_bf16_f32 v%d, v%d, v%d' % (A0, A0, A1))
        for k in range(8):
            for c in range(2):
                a('v_dot2c_f32_bf16_dpp v%d, v%d, v%d row_newbcast:%d row_mask:0xf bank_mask:0xf' % (GO + c + 2 * (k & 1), A0, vWOp + 8 * c + k, k))
        a('v_pk_add_f32 %s, %s, %s' % (vr(GO, 2), vr(GO, 2), vr(GO + 2, 2)))

        def pretry():
            a.label('L_pretry')
            a('s_add_u32 s%d, s%d, 1' % (sCnt, sCnt))
            a('s_cmp_ge_u32 s%d, %d' % (sCnt, SPIN))
            a('s_cbranch_scc1 L_pcont')
            if pst:
                a('s_memrealtime %s' % sr(sST + 4, 2))
            if pm == 1:
                a('s_mov_b64 exec, vcc')
            for jj in range(4):
                if pm == 2:
                    a('v_cmp_ne_u32 vcc, 0, v%d' % (K + jj))
                    a('s_mov_b64 exec, vcc')
                a('buffer_load_dwordx4 %s, v%d, %s, s%d offen %s' % (vr(Gq + 4 * jj, 4), vPo, sr(rWS, 4), sGa + jj, pld))
                if pm == 2:
                    a('s_mov_b64 exec, -1')
            a('s_mov_b64 exec, -1')
            a('s_branch L_pg')
        ool.append(pretry)
    else:
        a.label('L_pg')
        if pst:
            a('s_memrealtime %s' % sr(sST + 4, 2))
        for jj in range(4):
            a('buffer_load_dwordx4 %s, v%d, %s, s%d offen %s' % (vr(Gq + 4 * jj, 4), vPo, sr(rWS, 4), sGa + jj, pld))
        for i in range(4):
            a('v_mov_b32 v%d, 0' % (GO + i))
        a.wait_vm0()
        if pst:
            a('s_memrealtime %s' % sr(sST + 6, 2))
        a('v_max3_f32 v%d, v%d, v%d, v%d' % (Mx, Gq + 2, Gq + 6, Gq + 10))
        a('v_max_f32 v%d, v%d, v%d' % (Mx, Mx, Gq + 14))
        for jj in range(2):
            xor3(K + jj, Gq + 4 * jj, Gq + 4 * jj + 1, Gq + 4 * jj + 2)
        a('v_max_f32_dpp v%d, v%d, v%d row_ror:8 row_mask:0xf bank_mask:0xf' % (Mx, Mx, Mx))
        a('v_mov_b32 v%d, v%d' % (C + 5, Mx))
        for jj in range(2, 4):
            xor3(K + jj, Gq + 4 * jj, Gq + 4 * jj + 1, Gq + 4 * jj + 2)
        a('v_permlane16_swap_b32 v%d, v%d' % (Mx, C + 5))
        a('v_max_f32 v%d, v%d, v%d' % (Mx, Mx, C + 5))
        a('v_mov_b32 v%d, v%d' % (C + 5, Mx))
        for jj in range(2):
            xor3(K + jj, K + jj, Gq + 4 * jj + 3, vTag)
        a('v_permlane32_swap_b32 v%d, v%d' % (Mx, C + 5))
        a('v_max_f32 v%d, v%d, v%d' % (Mx, Mx, C + 5))
        for jj in range(4):
            a('v_sub_f32 v%d, v%d, v%d' % (C + jj, Gq + 4 * jj + 2, Mx))
        for jj in range(4):
            a('v_exp_f32 v%d, v%d' % (C + jj, C + jj))
        a('v_mul_f32 v%d, v%d, v%d' % (A0, C, Gq))
        a('v_mul_f32 v%d, v%d, v%d' % (A1, C, Gq + 1))
        a('v_add_f32 v%d, v%d, v%d' % (Wt, C, C + 1))
        for jj in range(1, 4):
            a('v_fmac_f32 v%d, v%d, v%d' % (A0, C + jj, Gq + 4 * jj))
            a('v_fmac_f32 v%d, v%d, v%d' % (A1, C + jj, Gq + 4 * jj + 1))
            if jj > 1:
                a('v_add_f32 v%d, v%d, v%d' % (Wt, Wt, C + jj))
        allred([Wt, A0, A1], 'add_f32', [C, C + 1, C + 2], bits=(3, 4, 5))
        a('v_rcp_f32 v%d, v%d' % (Wt, Wt))
        for jj in range(2, 4):
            xor3(K + jj, K + jj, Gq + 4 * jj + 3, vTag)
        a('v_mul_f32 v%d, v%d, v%d' % (A0, A0, Wt))
        a('v_mul_f32 v%d, v%d, v%d' % (A1, A1, Wt))
        a('v_cvt_pk_bf16_f32 v%d, v%d, v%d' % (A0, A0, A1))
        a('v_or3_b32 v%d, v%d, v%d, v%d' % (K, K, K + 1, K + 2))
        a('v_or_b32 v%d, v%d, v%d' % (K, K, K + 3))
        for k in range(8):
            for c in range(2):
                a('v_dot2c_f32_bf16_dpp v%d, v%d, v%d row_newbcast:%d row_mask:0xf bank_mask:0xf' % (GO + c + 2 * (k & 1), A0, vWOp + 8 * c + k, k))
        a('v_cmp_ne_u32 vcc, 0, v%d' % K)
        a('s_add_u32 s%d, s%d, 1' % (sCnt, sCnt))
        a('v_add_f32 v%d, v%d, v%d' % (GO, GO, GO + 2))
        a('v_add_f32 v%d, v%d, v%d' % (GO + 1, GO + 1, GO + 3))
        a('s_cbranch_vccz L_pok')
        if sleep:
            a('s_sleep %d' % sleep)
        a('s_cmp_lt_u32 s%d, %d' % (sCnt, SPIN))
        a('s_cbranch_scc1 L_pg')
    a.label('L_pok')
    a('ds_write_b64 v%d, %s' % (vR2w, vr(GO, 2)))
    stamp()
    a.wait_lg()
    a('s_barrier')
    a('s_cmp_lg_u32 s%d, 0' % sW)
    a('s_cbranch_scc1 %s' % ('L_w1' if ow else 'L_clean' if clean else 'L_fin'))
    lt = [a('ds_read_b64 %s, v%d offset:%d' % (vr(R + 2 * w, 2), vR2w, w * 512)) for w in range(4)]
    a('s_mov_b32 s%d, 0' % sCnt)
    a.wait_lg(lt[1])
    a('v_pk_add_f32 %s, %s, %s' % (vr(R, 2), vr(R, 2), vr(R + 2, 2)))
    a.wait_lg(lt[3])
    a('v_pk_add_f32 %s, %s, %s' % (vr(R + 4, 2), vr(R + 4, 2), vr(R + 6, 2)))
    a('v_pk_add_f32 %s, %s, %s' % (vr(GO, 2), vr(R, 2), vr(R + 4, 2)))
    vOst, vOld = (vT16, vOo) if olay == 'prod' else (vOo, vT16)
    if oat:
        a('v_mov_b32 v%d, v%d' % (GO + 2, GO + 1))
        a('v_xor_b32 v%d, v%d, v%d' % (GO + 1, GO, vTag))
        a('v_xor_b32 v%d, v%d, v%d' % (GO + 3, GO + 2, vTag))
        a('buffer_atomic_swap_x2 %s, v%d, %s, s%d offen %s' % (vr(GO, 2), vOst, sr(rWS, 4), sGa + 4, oflag))
        a('buffer_atomic_swap_x2 %s, v%d, %s, s%d offen offset:8 %s' % (vr(GO + 2, 2), vOst, sr(rWS, 4), sGa + 4, oflag))
    else:
        xor3(GO + 2, GO, GO + 1, vTag)
        a('buffer_store_dwordx4 %s, v%d, %s, s%d offen %s' % (vr(GO, 4), vOst, sr(rWS, 4), sGa + 4, oflag))
    if clean == 1:
        a('buffer_store_dwordx4 %s, v%d, %s, s%d offen sc1' % (vr(GP, 4), vT16, sr(rWS, 4), sPub))
    stamp()
    if ow:
        a('s_branch L_fin')
        a.label('L_w1')
        a('s_cmp_lg_u32 s%d, %d' % (sW, ow))
        a('s_cbranch_scc1 L_fin')
        a('s_mov_b32 s%d, 0' % sCnt)
    a('s_lshl_b32 s%d, s%d, 2' % (sT1, sP))
    a('v_mov_b32 v%d, s%d' % (Gq + 8, sT1))
    def ofin(B):
        if oat:
            assert B == Gq
            xor3(C + 4, B, B + 1, vTag)
            xor3(C + 5, B + 2, B + 3, vTag)
            a('v_mov_b32 v%d, v%d' % (B + 1, B + 2))
            a('v_or_b32 v%d, v%d, v%d' % (C + 4, C + 4, C + 5))
            a('v_cmp_ne_u32 vcc, 0, v%d' % (C + 4))
        else:
            xor3(C + 4, B, B + 1, B + 2)
            a('v_cmp_ne_u32 vcc, v%d, v%d' % (C + 4, vTag))
        if B != Gq:
            for c in range(2):
                a('v_add_f32_dpp v%d, v%d, v%d row_ror:1 row_mask:0xf bank_mask:0xf' % (Gq + c, B + c, B + c))
            allred([Gq, Gq + 1], 'add_f32', [C, C + 1], bits=(1, 2, 3, 4, 5))
        else:
            allred([Gq, Gq + 1], 'add_f32', [C, C + 1])
        for c in range(2):
            rnd(Gq + c, Gq + c)
        for c in range(2):
            a('v_add_f32 v%d, v%d, v%d' % (Gq + c, Gq + c, vXu + c))
        for c in range(2):
            rnd(Gq + c, Gq + c)
        for c in range(2):
            a('v_add_f32 v%d, v%d, v%d' % (Gq + c, Gq + c, vY + c))
        a('v_cvt_pk_bf16_f32 v%d, v%d, v%d' % (Gq, Gq, Gq + 1))
    if om:
        B = vS
        a('buffer_load_dwordx4 %s, v%d, %s, s%d offen sc1' % (vr(B, 4), vOld, sr(rWS, 4), sGa + 5))
        a.label('L_og')
        a('s_waitcnt vmcnt(%d)' % (1 if om == 3 else 0))
        if pst:
            a('s_memrealtime %s' % sr(sST + 10, 2))
        xor3(C + 4, B, B + 1, B + 2)
        for c in range(2):
            a('v_add_f32_dpp v%d, v%d, v%d row_ror:1 row_mask:0xf bank_mask:0xf' % (Gq + c, B + c, B + c))
        a('v_cmp_ne_u32 vcc, v%d, v%d' % (C + 4, vTag))
        allred([Gq, Gq + 1], 'add_f32', [C, C + 1], bits=(1,))
        a('s_cbranch_vccnz L_oretry')
        a.label('L_ocont')
        allred([Gq, Gq + 1], 'add_f32', [C, C + 1], bits=(2, 3, 4, 5))
        for c in range(2):
            rnd(Gq + c, Gq + c)
        a('v_pk_add_f32 %s, %s, %s' % (vr(Gq, 2), vr(Gq, 2), vr(vXu, 2)))
        for c in range(2):
            rnd(Gq + c, Gq + c)
        a('v_pk_add_f32 %s, %s, %s' % (vr(Gq, 2), vr(Gq, 2), vr(vY, 2)))
        a('v_cvt_pk_bf16_f32 v%d, v%d, v%d' % (Gq, Gq, Gq + 1))

        def oretry():
            a.label('L_oretry')
            a('s_add_u32 s%d, s%d, 1' % (sCnt, sCnt))
            a('s_cmp_ge_u32 s%d, %d' % (sCnt, SPIN))
            a('s_cbranch_scc1 L_ocont')
            if pst:
                a('s_memrealtime %s' % sr(sST + 8, 2))
            if om in (1, 3):
                a('s_mov_b64 exec, vcc')
            if sleep:
                a('s_sleep %d' % sleep)
            a('buffer_load_dwordx4 %s, v%d, %s, s%d offen sc1' % (vr(B, 4), vOld, sr(rWS, 4), sGa + 5))
            a('s_mov_b64 exec, -1')
            a('s_branch L_og')
        ool.append(oretry)
    elif opoll == 1:
        a.label('L_og')
        if pst:
            a('s_memrealtime %s' % sr(sST + 8, 2))
        a('buffer_load_dwordx4 %s, v%d, %s, s%d offen sc1' % (vr(Gq, 4), vOld, sr(rWS, 4), sGa + 5))
        a.wait_vm0()
        if pst:
            a('s_memrealtime %s' % sr(sST + 10, 2))
        ofin(Gq)
        a('s_add_u32 s%d, s%d, 1' % (sCnt, sCnt))
        a('s_cbranch_vccz L_ook')
        if sleep:
            a('s_sleep %d' % sleep)
        a('s_cmp_lt_u32 s%d, %d' % (sCnt, SPIN))
        a('s_cbranch_scc1 L_og')
    else:
        OB = vS
        assert opoll * 4 <= 64
        for k in range(1, opoll):
            a('v_mov_b32 v%d, 0' % (OB + 4 * k))
            a('v_mov_b32 v%d, 0' % (OB + 4 * k + 1))
            a('v_not_b32 v%d, v%d' % (OB + 4 * k + 2, vTag))
        a.label('L_og')
        for k in range(opoll):
            a('buffer_load_dwordx4 %s, v%d, %s, s%d offen sc1' % (vr(OB + 4 * k, 4), vOld, sr(rWS, 4), sGa + 5))
            a('s_waitcnt vmcnt(%d)' % (opoll - 1))
            ofin(OB + 4 * ((k + 1) % opoll))
            a('s_cbranch_vccz L_ook')
        a('s_add_u32 s%d, s%d, 1' % (sCnt, sCnt))
        a('s_cmp_lt_u32 s%d, %d' % (sCnt, SPIN))
        a('s_cbranch_scc1 L_og')
    a.label('L_ook')
    a('s_mov_b64 exec, 1')
    a('global_store_dword v%d, v%d, %s %s' % (Gq + 8, Gq, sr(pOUT, 2), oflg))
    a('s_cmp_lg_u32 s2, 0')
    a('s_cbranch_scc1 L_fin')
    a('buffer_store_dword v%d, off, %s, 0 %s' % (vTag, sr(rWS, 4), tflag))
    a.label('L_fin')
    if dbg:
        a('s_memrealtime s[78:79]')
        a.wait_lg()
        a('s_mov_b64 exec, 1')
        a('v_mov_b32 v%d, 0' % vS)
        for i in range(nst[0]):
            if i == 10:
                continue
            a('v_mov_b32 v%d, s%d' % (vS + 1, sST + 2 * i))
            a('global_atomic_umax v%d, v%d, s[26:27] offset:%d' % (vS, vS + 1, 4 * i))
        a('v_mov_b32 v%d, s78' % (vS + 1))
        a('global_atomic_umax v%d, v%d, s[26:27] offset:%d' % (vS, vS + 1, 4 * 11))
        for k, i in enumerate((0, 2, 7)):
            a('s_not_b32 s78, s%d' % (sST + 2 * i))
            a('v_mov_b32 v%d, s78' % (vS + 1))
            a('global_atomic_umax v%d, v%d, s[26:27] offset:%d' % (vS, vS + 1, 4 * (12 + k)))
    elif stamps:
        a('s_memrealtime s[78:79]')
        a.wait_lg()
        a('s_waitcnt vmcnt(0)')
        a('s_mov_b64 exec, 1')
        a('s_getreg_b32 s%d, hwreg(HW_REG_XCC_ID)' % sT2)
        for i in range(11):
            a('v_mov_b32 v%d, s%d' % (vS + i, sST + 2 * i if i < nst[0] else sST))
        a('v_mov_b32 v%d, s78' % (vS + 11))
        a('v_mov_b32 v%d, s%d' % (vS + 12, sCnt))
        a('v_mov_b32 v%d, s%d' % (vS + 13, sT2))
        a('v_mov_b32 v%d, s%d' % (vS + 14, sMode))
        a('v_mov_b32 v%d, s15' % (vS + 15))
        a('s_lshl_b32 s%d, s2, 2' % sT1)
        a('s_add_u32 s%d, s%d, s%d' % (sT1, sT1, sW))
        a('s_lshl_b32 s%d, s%d, 6' % (sT1, sT1))
        a('s_add_u32 s%d, s%d, 0x%x' % (sT1, sT1, WS_STAMP))
        for i in range(4):
            a('buffer_store_dwordx4 %s, off, %s, s%d offset:%d' % (vr(vS + 4 * i, 4), sr(rWS, 4), sT1, 16 * i))
    a('s_endpgm')
    a.label('L_qretry')
    a.cond += 1
    a('s_mov_b32 s%d, 0' % sCnt)
    a.label('L_qr')
    q_loads()
    a('s_waitcnt vmcnt(0)')
    q_check()
    a('s_cbranch_vccz L_qok')
    a('s_add_u32 s%d, s%d, 1' % (sCnt, sCnt))
    a('s_cmp_lt_u32 s%d, %d' % (sCnt, SPIN))
    a('s_cbranch_scc1 L_qr')
    a('s_branch L_qok')
    if clean:
        a.label('L_clean')
        if clean == 1:
            a('buffer_store_dwordx4 %s, v%d, %s, s%d offen sc1' % (vr(GP, 4), vT16, sr(rWS, 4), sPub))
        else:
            a('s_cmp_lg_u32 s%d, 1' % sW)
            a('s_cbranch_scc1 L_fin')
            if clean == 2:
                a('s_cmp_lg_u32 s%d, 0' % sC)
                a('s_cbranch_scc1 L_fin')
            a('buffer_wbl2 sc1')
        a('s_branch L_fin')
    for f in ool:
        f()
    a.label('L_pslow')
    a('buffer_store_dwordx4 %s, v%d, %s, s%d offen sc1' % (vr(GP, 4), vT16, sr(rWS, 4), sPub))
    a('s_branch L_pback')
    a.cond -= 1
    a.label('L_codeend')
    a('s_endpgm')
    a.raw('.section .rodata,"a"')
    a.raw('.p2align 6')
    a.raw('.amdhsa_kernel ' + KN)
    for l in ('.amdhsa_next_free_vgpr 512', '.amdhsa_next_free_sgpr 102', '.amdhsa_accum_offset 256',
              '.amdhsa_group_segment_fixed_size 0', '.amdhsa_kernarg_size 104', '.amdhsa_user_sgpr_count 2',
              '.amdhsa_user_sgpr_kernarg_segment_ptr 1', '.amdhsa_system_sgpr_workgroup_id_x 1',
              '.amdhsa_float_denorm_mode_32 3'):
        a.raw('  ' + l)
    a.raw('.end_amdhsa_kernel')
    if verbose:
        print('late', late, 'N', N, 'vgpr', va.next, file=sys.stderr)
    return a.text()


if __name__ == '__main__':
    out = sys.argv[1]
    kw = eval('dict(%s)' % (sys.argv[2] if len(sys.argv) > 2 else ''))
    open(out, 'w').write(gen(verbose=True, **kw))
```

```python
import sys, math, struct
from asmlib import *

KN = "parallel_sum__gqa_block_cached__mixer_token_mlp__decode_kernel"
REF = "parallel_sum__gqa_block_cached__mixer_token_mlp__decode.s.ref"


def f32(x):
    return '0x%08x' % struct.unpack('<I', struct.pack('<f', x))[0]


WS_EPOCH = 0
WS_BRD = 0x8000
WS_Q = 0x10000
WS_PART = 0x100000
WS_OUTP = 0x200000
WS_STAMP = 0x300000
WS_SIZE = 0x400000
L_K = 0
L_WQ = 131072
L_RED = L_WQ
L_RED2 = L_RED + 9216
L_XN = 147456
L_QL = L_XN + 1024
L_ML = L_QL + 1024
L_YP = L_ML + 128
L_XF = L_YP + 32
L_CT = L_XF + 32
LDS_BYTES = 150016
OST = 1152
SPIN = 4000
LOG2E = 1.4426950408889634


def gen(W0=2, W=2, sub=1, mapping='mod', stamps=False, nv_pre=4, qpos='V0b', d1=1, d2=1, wo_pos='K3b', prefetch=True,
        tailpf=True, sleep=0, verbose=False, PST=4096, pflag='', pld='sc1', skip=(), dbg=False, clean=0, force=None, wqskew=0, gran=4, bal=0, Wlo=3, pub=2, chk=2, theta=0, bstart=None, bend=None, thrmask=None,
        pdpos=None, olay='prod', CST=1024, opoll=1, pexit=0, ts=None,
        ctl=0, NC=16, CP=2, Wl=(1,), dth=(2,), cstart=None, cend=None, CSTR=256, cforce=None, cflag='sc0 sc1', WSB=None, cpts=None, clat=None, cop='add', wsch=None, qflag='sc1', qkpair=0, warm=0, warmpos=None, vwarm=0, OUTP=None, qld='sc1', tld='sc1', pst=0, oat=0, oflag='sc1', pm=0, om=0, ow=0, red2=0, tflag='sc1', oflg='', polK=0, polV=0, wol=0, xpos=0, wwarm=None, wqa=None, wqe=1, pvo=None, exo=None, two=None):
    a = Asm()
    WS_OUTP = OUTP or globals()['WS_OUTP']
    hdr = [l for l in open(REF).read().split('\n') if l.startswith(';') and '@launch' not in l]
    for l in hdr:
        a.raw(l)
    a.raw('; @launch grid=(256,1,1) block=(256,1,1) lds=%d' % LDS_BYTES)
    a.raw('.amdgcn_target "amdgcn-amd-amdhsa--gfx950"')
    a.raw('.text')
    a.raw('.globl ' + KN)
    a.raw('.p2align 8')
    a.raw('.type %s,@function' % KN)
    a.label(KN)

    sW = 3
    pX, pK, pV, pWQ, pWO, pW1, pB1, pW2, pB2, pOUT, pWS = 4, 6, 8, 10, 12, 16, 18, 20, 22, 24, 28
    rK, rV, rWQ, rWO, rWS, rW1, rB1, rW2 = 32, 36, 40, 44, 48, 52, 56, 60
    sG, sC, sP, sJ = 64, 65, 66, 67
    sKL = 68
    sT0, sT1, sT2 = 69, 70, 71
    sOff = 72
    sCnt = 73
    sQg, sPub = 74, 75
    sPC = 76
    sXcc, sMode = 30, 31
    sC0, sC1 = 78, 79
    sST = 80
    sThr = 14
    sCA, sCD = 16, 18
    sTagS = 14
    nst = [0]

    def stamp(mid=False):
        if mid and ts:
            return
        if stamps:
            assert nst[0] < 11
            a('s_memrealtime %s' % sr(sST + 2 * nst[0], 2))
            nst[0] += 1

    va = VAlloc(1)
    vL = va(); vTag = va(); vT16 = va(); vL4 = va()
    vKo = va(4); vKa = va(4); vVo = va(2); vSel = va(4)
    vM = va(); vLs = va(); vY = va(2); vXp = va(); vB2 = va(); vJunk = va(); vTmp = va(8, 4)
    vZ = va(32, 4)
    vQ = va(32, 4)
    vKf = va(32, 4)
    vS = va(64, 4)
    vAS = va(8, 4)
    vO = va(8, 4)
    vWt = va(8, 4)
    vWOr = va(16, 4)
    vBv = va(4, 4); vBst = vBv + 1; vBld = vBv + 2; vBt = vBv + 3; vBr = va(2)
    vX = vZ; vXf = vZ + 4; vW1 = vZ + 12; vB1 = vZ + 16; vW2 = vZ + 20; vH = vZ + 24
    vWOp = vZ
    T = vKf

    def rnd(d, s):
        a('v_cvt_pk_bf16_f32 v%d, 0, v%d' % (d, s))

    def allred(regs, op, tmps, bits=(0, 1, 2, 3, 4, 5)):
        for b in bits:
            if b < 4:
                for r in regs:
                    a('v_%s_dpp v%d, v%d, v%d row_ror:%d row_mask:0xf bank_mask:0xf' % (op, r, r, r, 1 << b))
            else:
                for r, t in zip(regs, tmps):
                    a('v_mov_b32 v%d, v%d' % (t, r))
                for r, t in zip(regs, tmps):
                    a('v_permlane%d_swap_b32 v%d, v%d' % (16 if b == 4 else 32, r, t))
                for r, t in zip(regs, tmps):
                    a('v_%s v%d, v%d, v%d' % (op, r, r, t))

    def xor3(d, x, y, z):
        a('v_bitop3_b32 v%d, v%d, v%d, v%d bitop3:0x96' % (d, x, y, z))

    a('s_cmp_lt_u32 s2, 256')
    a('s_cbranch_scc1 L_go')
    a('s_endpgm')
    a.label('L_go')
    stamp()
    a('s_load_dwordx16 s[4:19], s[0:1], 0')
    a('s_load_dwordx8 s[20:27], s[0:1], 64')
    a('s_load_dwordx2 s[28:29], s[0:1], 96')
    a('v_lshrrev_b32 v%d, 6, v0' % vTmp)
    a('v_and_b32 v%d, 63, v0' % vL)
    a('v_readfirstlane_b32 s%d, v%d' % (sW, vTmp))
    a('s_getpc_b64 %s' % sr(sPC, 2))
    a.label('L_pc')
    if prefetch:
        a('s_lshr_b32 s%d, s2, 3' % sT0)
        a('s_and_b32 s%d, s%d, 3' % (sT0, sT0))
        a('s_lshl_b32 s%d, s%d, 2' % (sT0, sT0))
        a('s_add_u32 s%d, s%d, s%d' % (sT0, sT0, sW))
        a('s_lshl_b32 s%d, s%d, 10' % (sT0, sT0))
        a('v_and_b32 v%d, 7, v0' % (vTmp + 1))
        a('v_lshlrev_b32 v%d, 7, v%d' % (vTmp + 1, vTmp + 1))
        a('v_add_u32 v%d, s%d, v%d' % (vTmp + 1, sT0, vTmp + 1))
        a('v_min_u32 v%d, L_codeend-L_pc-4, v%d' % (vTmp + 1, vTmp + 1))
        a('global_load_dword v%d, v%d, %s' % (vJunk, vTmp + 1, sr(sPC, 2)))
    a('s_and_b32 s%d, s2, 7' % sG)
    a('s_lshr_b32 s%d, s2, 3' % sC)
    a('s_lshl_b32 s%d, s%d, 5' % (sP, sG))
    a('s_add_u32 s%d, s%d, s%d' % (sP, sP, sC))
    a('s_lshr_b32 s%d, s%d, 3' % (sT1, sC))
    a('s_lshl_b32 s%d, s%d, 2' % (sT1, sT1))
    a('s_add_u32 s%d, s%d, s%d' % (sT1, sT1, sW))
    a('s_lshl_b32 s%d, s%d, 18' % (sT1, sT1))
    sG4, sWqo = sCnt, sMode
    WS_XC = WS_BRD
    if wqa:
        assert mapping == 'mod' and sorted(sum(wqa, [])) == list(range(8)) and not bal
        NB = max(len(l) for l in wqa)
        TB = [sum((l[b] if b < len(l) else 15) << (4 * x) for x, l in enumerate(wqa)) for b in range(NB)]
        a('s_lshl_b32 s%d, s%d, 2' % (sG4, sG))
        a('s_and_b32 s%d, s%d, 7' % (sT2, sC))
        a('s_lshl_b32 s%d, s%d, 7' % (sT2, sT2))
        a('s_add_u32 s%d, s%d, s%d' % (sWqo, sT1, sT2))
        a('s_lshr_b32 s%d, 0x%x, s%d' % (sOff, TB[0], sG4))
        a('s_and_b32 s%d, s%d, 15' % (sOff, sOff))
        a('s_lshl_b32 s%d, s%d, 10' % (sOff, sOff))
        a('s_add_u32 s%d, s%d, s%d' % (sT1, sWqo, sOff))
    else:
        a('s_lshl_b32 s%d, s%d, 10' % (sT2, sG))
        a('s_add_u32 s%d, s%d, s%d' % (sT1, sT1, sT2))
        a('s_and_b32 s%d, s%d, 7' % (sT2, sC))
        a('s_lshl_b32 s%d, s%d, 7' % (sT2, sT2))
        a('s_add_u32 s%d, s%d, s%d' % (sT1, sT1, sT2))

    def hb(b, d):
        a('s_lshr_b32 s%d, 0x%x, s%d' % (d, TB[b], sG4))
        a('s_and_b32 s%d, s%d, 15' % (d, d))
        a('s_cmp_eq_u32 s%d, 15' % d)
    sKb = sC
    if mapping == 'mod':
        a('s_mov_b32 s%d, s%d' % (sJ, sP))
    elif mapping == 'stk':
        a('s_lshr_b32 s%d, s2, 6' % sJ)
        a('s_and_b32 s%d, s%d, 7' % (sT0, sC))
        a('s_lshr_b32 s%d, s2, 2' % sKb)
        a('s_xor_b32 s%d, s%d, s%d' % (sKb, sKb, sJ))
        a('s_xor_b32 s%d, s%d, %d' % (sKb, sKb, polK))
        a('s_and_b32 s%d, s%d, 1' % (sKb, sKb))
        a('s_lshl_b32 s%d, s%d, 13' % (sKb, sKb))
        a('s_and_b32 s%d, s2, 1' % sT2)
        a('s_lshl_b32 s%d, s%d, 14' % (sT2, sT2))
        a('s_or_b32 s%d, s%d, s%d' % (sKb, sKb, sT2))
        a('s_and_b32 s%d, s2, 2' % sT2)
        a('s_lshl_b32 s%d, s%d, 11' % (sT2, sT2))
        a('s_or_b32 s%d, s%d, s%d' % (sKb, sKb, sT2))
        a('s_lshl_b32 s%d, s%d, 3' % (sJ, sJ))
        a('s_add_u32 s%d, s%d, s%d' % (sJ, sJ, sG))
        a('s_mov_b32 s%d, s%d' % (sG, sT0))
        a('s_lshl_b32 s%d, s%d, 5' % (sT2, sG))
        a('s_add_u32 s%d, s%d, s%d' % (sJ, sJ, sT2))
    else:
        a('s_lshr_b32 s%d, s2, 5' % sG)
        a('s_and_b32 s%d, s2, 31' % sC)
        a('s_mov_b32 s%d, s2' % sJ)
    i15, ks, bsw, vWq, l16, zero = vTmp + 2, vTmp + 3, vTmp + 4, vTmp + 5, vTmp + 6, vTmp + 7
    a('v_and_b32 v%d, 15, v%d' % (i15, vL))
    a('v_lshrrev_b32 v%d, 4, v%d' % (ks, vL))
    a('v_xor_b32 v%d, v%d, v%d' % (bsw, i15, ks))
    a('v_lshlrev_b32 v%d, 4, v%d' % (bsw, bsw))
    a('v_lshl_add_u32 v%d, v%d, 8, v%d' % (vKo, ks, bsw))
    for j in range(1, 4):
        a('v_xor_b32 v%d, 0x%x, v%d' % (vKo + j, j << 6, vKo))
    a('v_lshrrev_b32 v%d, 3, v%d' % (vWq, vL))
    a('v_lshlrev_b32 v%d, 13, v%d' % (vWq, vWq))
    a('v_and_b32 v%d, 7, v%d' % (l16, vL))
    a('v_lshl_add_u32 v%d, v%d, 4, v%d' % (vWq, l16, vWq))
    a('v_lshlrev_b32 v%d, 4, v%d' % (l16, vL))
    a('v_mov_b32 v%d, 0' % zero)
    a('s_lshl_b32 s%d, s%d, 18' % (sT0, sJ))
    a('s_lshl_b32 s%d, s%d, %d' % (sT2, sW, 12 if gran == 4 else 13))
    a('s_add_u32 s%d, s%d, s%d' % (sT0, sT0, sT2))
    KVN = 0x3d000 if gran == 4 else 0x3a000
    if mapping == 'stk':
        KVN = 0x1e8000
        a('s_lshr_b32 s%d, s%d, 3' % (sT0, sJ))
        a('s_lshl_b32 s%d, s%d, 21' % (sT0, sT0))
        a('s_lshl_b32 s%d, s%d, 15' % (sT2, sW))
        a('s_add_u32 s%d, s%d, s%d' % (sT0, sT0, sT2))

    def setoff(tl, half, isv):
        if mapping == 'stk':
            u = 2 * tl + half
            xm = (((u >> 2) & 1) << 14) | ((u >> 3) << 12) | (((polK ^ polV) << 13) if isv else 0)
            a('s_xor_b32 s%d, s%d, 0x%x' % (sOff, sKb, xm + u * 131072))
        else:
            a('s_mov_b32 s%d, 0x%x' % (sOff, uoff(tl, half)))
    uoff = (lambda tl, half: (2 * tl + half) * 16384) if gran == 4 else (lambda tl, half: tl * 32768 + half * 4096)
    a('s_lshl_b32 s%d, s%d, 15' % (sKL, sW))
    a('s_lshl_b32 s%d, s%d, 12' % (sT2, sW))
    a('s_add_u32 m0, s%d, %d' % (sT2, L_WQ))
    a('s_mov_b32 s%d, 0x%x' % (rWQ + 2, 31 * 8192 + 128))
    a('s_mov_b32 s%d, 0x20000' % (rWQ + 3))
    a('s_mov_b32 s%d, 0x%x' % (rK + 2, KVN))
    a('s_mov_b32 s%d, 0x20000' % (rK + 3))
    a.wait_lg()
    stamp()
    xtok = {}
    def xload():
        xtok['x'] = a('global_load_dwordx4 %s, v%d, %s' % (vr(vX, 4), l16, sr(pX, 2)))
    if not xpos:
        xload()
    if tld == 's':
        a('s_load_dword s%d, %s, 0' % (sTagS, sr(pWS, 2)))
        tE = None
    else:
        tE = a('global_load_dword v%d, v%d, %s %s' % (vTag, zero, sr(pWS, 2), tld))
    a('s_add_u32 s%d, s%d, s%d' % (rWQ, pWQ, sT1))
    a('s_addc_u32 s%d, s%d, 0' % (rWQ + 1, pWQ + 1))
    a('s_add_u32 s%d, s%d, s%d' % (rK, pK, sT0))
    a('s_addc_u32 s%d, s%d, 0' % (rK + 1, pK + 1))

    vtok = {}
    tok = {}

    def parts(s):
        n = 4 // sub
        return range(s * n, (s + 1) * n)

    def issue(name, s):
        if name in skip:
            t = a('global_load_dword v%d, v%d, %s' % (vJunk, vL, sr(pWQ, 2)))
        elif name == 'WQ' and wqskew:
            a('s_and_b32 s%d, s2, 7' % sOff)
            a('s_lshl_b32 s%d, 1, s%d' % (sOff, sOff))
            a('s_and_b32 s%d, s%d, %d' % (sMode, sOff, wqskew))
            a('s_cbranch_scc0 L_nowq')
            a.cond += 1
            a('s_mov_b32 s%d, 0x%x' % (rWQ + 2, 31 * 8192 + 128 + 1024))
            for rep in range(2):
                for j in parts(s):
                    a('s_mov_b32 s%d, 0x%x' % (sOff, j * (65536 - 1024) + rep * 1024))
                    a('buffer_load_dwordx4 v%d, %s, %s offen offset:%d nt lds' % (vWq, sr(rWQ, 4), 's%d' % sOff, j * 1024))
            a.cond -= 1
            a.label('L_nowq')
            t = a('global_load_dword v%d, v%d, %s' % (vJunk, vL, sr(pX, 2)))
        elif name == 'WQ' and wqa:
            def blk():
                for j in range(4):
                    if j:
                        a('s_mov_b32 s%d, 0x%x' % (sOff, j * (65536 - 1024)))
                    t = a('buffer_load_dwordx4 v%d, %s, %s offen offset:%d nt lds' % (vWq, sr(rWQ, 4), 's%d' % sOff if j else '0', j * 1024))
                return t
            a('s_cmp_lg_u32 s%d, 0x%x' % (sOff, 15 << 10))
            a('s_cbranch_scc1 L_a0')
            a.cond += 1
            if wqe:
                issue('K0b', -1)
            else:
                for j in range(4):
                    a('global_load_dword v%d, v%d, %s' % (vJunk, zero, sr(pX, 2)))
            a.cond -= 1
            a('s_branch L_a1')
            a.label('L_a0')
            t = blk()
            a.cond += 1
            for b in range(1, NB):
                hb(b, sT2)
                a('s_cbranch_scc1 L_a1')
                a('s_lshl_b32 s%d, s%d, 10' % (sT2, sT2))
                a('s_add_u32 s%d, s%d, s%d' % (sT2, sT2, sWqo))
                a('s_add_u32 s%d, s%d, s%d' % (rWQ, pWQ, sT2))
                a('s_addc_u32 s%d, s%d, 0' % (rWQ + 1, pWQ + 1))
                a('s_add_u32 m0, s%d, %d' % (sKL, 24576 + (b - 1) * 4096))
                blk()
            a.cond -= 1
            a.label('L_a1')
        elif name == 'K0b' and wqa and wqe and s >= 0:
            hb(0, sT2)
            a('s_cbranch_scc0 L_b0')
            a.cond += 1
            for j in range(4):
                a('global_load_dword v%d, v%d, %s' % (vJunk, zero, sr(pX, 2)))
            a.cond -= 1
            a('s_branch L_b1')
            a.label('L_b0')
            t = issue('K0b', -1)
            a.label('L_b1')
        elif name == 'WQ':
            for j in parts(s):
                if j:
                    a('s_mov_b32 s%d, 0x%x' % (sOff, j * (65536 - 1024)))
                t = a('buffer_load_dwordx4 v%d, %s, %s offen offset:%d nt lds' % (vWq, sr(rWQ, 4), 's%d' % sOff if j else '0', j * 1024))
        elif name == 'WO':
            for q in (parts(s) if isinstance(s, int) else s):
                a('s_mov_b32 s%d, %d' % (sOff, q * 4096))
                for r in range(4):
                    t = a('buffer_load_dword v%d, v%d, %s, s%d offen offset:%d nt' % (vWOr + q * 4 + r, vL4, sr(rWO, 4), sOff, r * 1024))
        elif name[0] == 'K':
            tl, half = int(name[1]), 'ab'.index(name[2])
            a('s_add_u32 m0, s%d, %d' % (sKL, (tl % 4) * 8192 + half * 4096))
            setoff(tl, half, 0)
            for j in parts(max(s, 0)):
                t = a('buffer_load_dwordx4 v%d, %s, s%d offen offset:%d nt lds' % (vKo + j, sr(rK, 4), sOff, j * 1024))
        else:
            tl, half = int(name[1]), 'ab'.index(name[2])
            setoff(tl, half, 1)
            for r in parts(s):
                t = a('buffer_load_dwordx4 %s, v%d, %s, s%d offen offset:%d nt' % (ar(tl * 32 + half * 16 + r * 4, 4), vVo, sr(rV, 4), sOff, r * 256))
                vtok[(tl, half, r)] = t
        tok[name] = t
        return t

    names = ['WQ']
    for t in range(4):
        names += ['K%da' % t, 'K%db' % t]
    for t in range(nv_pre):
        names += ['V%da' % t, 'V%db' % t]
    for t in range(4, 8):
        names += ['K%da' % t, 'K%db' % t]
    for t in range(nv_pre, 8):
        names += ['V%da' % t, 'V%db' % t]
    if not wol:
        names.insert(names.index(wo_pos) + 1, 'WO')
    seq = [(n, s) for n in names for s in range(sub)]
    Wn = W
    last = {n: i for i, (n, s) in enumerate(seq)}
    first = {}
    for i, (n, s) in enumerate(seq):
        first.setdefault(n, i)
    N = len(seq)

    def Wf(i):
        if not wsch:
            return Wn
        u = i / sub
        if u <= wsch[0][0]:
            return wsch[0][1]
        for (u0, w0), (u1, w1) in zip(wsch, wsch[1:]):
            if u <= u1:
                return int(round(w0 + (w1 - w0) * (u - u0) / (u1 - u0)))
        return wsch[-1][1]

    def rdy(j):
        i = j
        while i - Wf(i) < j:
            i += 1
        return i

    def ready(n):
        return rdy(last[n])

    vTr, vXb, vXw, vQw, vQf = vWt, vWt + 1, vWt + 2, vWt + 3, vWt + 4
    small = {}

    def setup():
        a('s_getreg_b32 s%d, hwreg(HW_REG_XCC_ID, 0, 4)' % sXcc)
        a('s_mov_b32 s%d, 0x%x' % (rV + 2, KVN))
        a('s_mov_b32 s%d, 0x20000' % (rV + 3))
        a('s_add_u32 s%d, s%d, s%d' % (rV, pV, sT0))
        a('s_addc_u32 s%d, s%d, 0' % (rV + 1, pV + 1))
        a('v_lshlrev_b32 v%d, 4, v0' % vT16)
        a('v_lshlrev_b32 v%d, 2, v%d' % (vL4, vL))
        for r, p in ((rW1, pW1), (rB1, pB1), (rW2, pW2)):
            a('s_mov_b32 s%d, s%d' % (r, p))
            a('s_mov_b32 s%d, s%d' % (r + 1, p + 1))
            a('s_mov_b32 s%d, 3584' % (r + 2))
            a('s_mov_b32 s%d, 0x20000' % (r + 3))
        a('s_lshl_b32 s%d, s%d, 2' % (sT1, sP))
        a('v_mov_b32 v%d, s%d' % (vXp, sT1))
        for r, v in ((rW1, vW1), (rB1, vB1), (rW2, vW2)):
            a('buffer_load_dwordx4 %s, v%d, %s, 0 offen' % (vr(v, 4), vT16, sr(r, 4)))
        a('global_load_ushort v%d, v%d, %s' % (vB2, zero, sr(pB2, 2)))
        small['t'] = a('global_load_dword v%d, v%d, %s' % (vXp, vXp, sr(pX, 2)))
        a('s_mov_b32 s%d, s%d' % (rWS, pWS))
        a('s_mov_b32 s%d, s%d' % (rWS + 1, pWS + 1))
        a('s_mov_b32 s%d, 0x%x' % (rWS + 2, WS_SIZE))
        a('s_mov_b32 s%d, 0x20000' % (rWS + 3))
        a('s_and_b32 s%d, s%d, 0xfc' % (sT1, sJ))
        a('s_add_u32 s%d, s%d, s%d' % (sT1, sT1, sW))
        a('s_lshl_b32 s%d, s%d, 14' % (sT1, sT1))
        a('s_and_b32 s%d, s%d, 3' % (sT2, sJ))
        a('s_lshl_b32 s%d, s%d, 8' % (sT2, sT2))
        a('s_add_u32 s%d, s%d, s%d' % (sT1, sT1, sT2))
        a('s_add_u32 s%d, s%d, s%d' % (rWO, pWO, sT1))
        a('s_addc_u32 s%d, s%d, 0' % (rWO + 1, pWO + 1))
        a('s_mov_b32 s%d, %d' % (rWO + 2, 15 * 1024 + 256))
        a('s_mov_b32 s%d, 0x20000' % (rWO + 3))
        a('v_lshlrev_b32 v%d, 4, v%d' % (vVo, i15))
        a('v_lshl_add_u32 v%d, v%d, 10, v%d' % (vVo, ks, vVo))
        a('v_lshl_add_u32 v%d, v%d, 8, v%d' % (vKa, i15, bsw))
        a('v_add_u32 v%d, s%d, v%d' % (vKa, sKL, vKa))
        for j in range(1, 4):
            a('v_xor_b32 v%d, 0x%x, v%d' % (vKa + j, j << 6, vKa))
        e = vTmp
        a('v_and_b32 v%d, 3, v%d' % (e, vL))
        a('v_bfe_u32 v%d, v%d, 2, 2' % (vTmp + 1, vL))
        a('s_lshl_b32 s%d, s%d, 5' % (sT1, sW))
        a('s_add_u32 s%d, s%d, %d' % (sT1, sT1, L_WQ))
        a('v_lshlrev_b32 v%d, 3, v%d' % (vTr, e))
        a('v_lshl_add_u32 v%d, v%d, 7, v%d' % (vTr, vTmp + 1, vTr))
        a('v_lshl_add_u32 v%d, v%d, 10, v%d' % (vTr, ks, vTr))
        a('v_add_u32 v%d, s%d, v%d' % (vTr, sT1, vTr))
        a('s_lshr_b32 s%d, s%d, 3' % (sT1, sP))
        a('s_and_b32 s%d, s%d, 3' % (sT1, sT1))
        a('s_lshl_b32 s%d, s%d, 8' % (sT2, sT1))
        a('s_add_u32 s%d, s%d, %d' % (sT2, sT2, L_XN))
        a('v_lshlrev_b32 v%d, 4, v%d' % (vXb, ks))
        a('v_add_u32 v%d, s%d, v%d' % (vXb, sT2, vXb))
        a('v_add_u32 v%d, %d, v%d' % (vXw, L_XN, l16))
        if wqa:
            a('s_lshl_b32 s%d, s%d, 12' % (sPub, sT1))
        else:
            a('s_lshr_b32 s%d, s%d, 5' % (sT2, sP))
            a('s_lshl_b32 s%d, s%d, 2' % (sT2, sT2))
            a('s_add_u32 s%d, s%d, s%d' % (sT2, sT2, sT1))
            a('s_lshl_b32 s%d, s%d, 12' % (sPub, sT2))
        a('s_and_b32 s%d, s%d, 7' % (sT2, sP))
        a('s_lshl_b32 s%d, s%d, 2' % (sT2, sT2))
        a('s_add_u32 s%d, s%d, s%d' % (sT2, sT2, sW))
        a('s_lshl_b32 s%d, s%d, 7' % (sT2, sT2))
        a('s_add_u32 s%d, s%d, s%d' % (sPub, sPub, sT2))
        a('s_add_u32 s%d, s%d, 0x%x' % (sPub, sPub, WS_Q))
        a('v_and_b32 v%d, 1, v%d' % (vQw, vL))
        a('v_lshl_add_u32 v%d, v%d, 1, v%d' % (vQw, ks, vQw))
        a('v_lshlrev_b32 v%d, 4, v%d' % (vQw, vQw))
        a('v_lshlrev_b32 v%d, 8, v%d' % (vQf, vTmp + 1))
        a('v_lshl_add_u32 v%d, v%d, 4, v%d' % (vQf, ks, vQf))
        a('v_add_u32 v%d, %d, v%d' % (vQf, L_QL, vQf))
        a('s_lshl_b32 s%d, s%d, 14' % (sQg, sG))
        a('s_add_u32 s%d, s%d, 0x%x' % (sQg, sQg, WS_Q))
        if bal:
            a('s_lshl_b32 s%d, s%d, 10' % (sT1, sC))
            a('s_add_u32 s%d, s%d, 0x%x' % (sT1, sT1, WS_BRD))
            a('v_and_b32 v%d, 7, v%d' % (vBld, vL))
            a('v_lshlrev_b32 v%d, 7, v%d' % (vBld, vBld))
            a('v_add_u32 v%d, s%d, v%d' % (vBld, sT1, vBld))
            a('s_lshl_b32 s%d, s%d, 7' % (sT2, sG))
            a('s_add_u32 s%d, s%d, s%d' % (sT1, sT1, sT2))
            a('v_add_u32 v%d, s%d, v%d' % (vBst, sT1, vT16))
            a('v_mov_b32 v%d, 0x7ffffff0' % vBv)
            a('v_cmp_gt_u32 vcc, 8, v0')
            a('v_cndmask_b32 v%d, v%d, v%d, vcc' % (vBst, vBv, vBst))
        if ctl in (2, 3):
            if ctl == 2:
                a('s_lshl_b32 s%d, s%d, 2' % (sT1, sC))
                a('s_add_u32 s%d, s%d, s%d' % (sT1, sT1, sW))
                a('s_lshr_b32 s%d, s%d, %d' % (sT2, sT1, NC.bit_length() - 1))
            else:
                a('v_mov_b32 v%d, %d' % (vBv + 3, L_CT))
                a('ds_write_b32 v%d, v%d' % (vBv + 3, zero))
                a('s_mov_b32 s%d, s%d' % (sT1, sC))
                a('s_lshr_b32 s%d, s%d, %d' % (sT2, sT1, NC.bit_length() - 1))
                a('s_or_b32 s%d, s%d, s%d' % (sT2, sT2, sW))
            a('s_and_b32 s%d, s%d, %d' % (sT1, sT1, NC - 1))
            a('s_mul_i32 s%d, s%d, %d' % (sT1, sT1, CSTR))
            a('s_add_u32 s%d, s%d, 0x%x' % (sT1, sT1, WSB or WS_BRD))
            a('s_add_u32 s%d, s%d, s%d' % (sCA, pWS, sT1))
            a('s_addc_u32 s%d, s%d, 0' % (sCA + 1, pWS + 1))
            a('s_or_b32 s%d, s%d, s%d' % (sT2, sT2, sG))
            a('s_cbranch_scc1 L_noinit')
            a('s_mov_b32 s%d, 0' % sCD)
            a('s_atomic_swap s%d, %s, 0' % (sCD, sr(sCA, 2)))
            a.label('L_noinit')
        elif ctl:
            a('s_and_b32 s%d, s%d, %d' % (sT1, sC, NC - 1))
            a('s_mul_i32 s%d, s%d, %d' % (sT1, sT1, CSTR))
            a('s_add_u32 s%d, s%d, 0x%x' % (sT1, sT1, WSB or WS_BRD))
            a('v_mov_b32 v%d, s%d' % (vBv + 1, sT1))
            a('v_mov_b32 v%d, 0x7ff00000' % vBv)
            a('v_cmp_eq_u32 vcc, 0, v%d' % vL)
            a('v_cndmask_b32 v%d, v%d, v%d, vcc' % (vBv, vBv, vBv + 1))
            a('s_or_b32 s%d, s%d, s%d' % (sT1, sG, sW))
            a('s_lshr_b32 s%d, s%d, %d' % (sT2, sC, NC.bit_length() - 1))
            a('s_or_b32 s%d, s%d, s%d' % (sT1, sT1, sT2))
            a('s_cselect_b32 s%d, 0x7ff00000, 0' % sT1)
            a('v_or_b32 v%d, s%d, v%d' % (vBv + 1, sT1, vBv))
            a('buffer_store_dword v%d, v%d, %s, 0 offen sc1' % (zero, vBv + 1, sr(rWS, 4)))
            a('v_mov_b32 v%d, %d' % (vBv + 3, L_CT))
            a('ds_write_b32 v%d, v%d' % (vBv + 3, zero))
        a('s_mov_b32 s%d, 0x0c0c0c0c' % sC0)
        for k, (ev0, lo) in enumerate(((0, 0x0100), (2, 0x0100), (0, 0x0302), (2, 0x0302))):
            a('v_mov_b32 v%d, s%d' % (vSel + k, sC0))
            a('v_mov_b32 v%d, 0x%08x' % (vTmp + 1, 0x0c0c0000 | lo))
            a('v_cmp_eq_u32 vcc, %d, v%d' % (ev0, e))
            a('v_cndmask_b32 v%d, v%d, v%d, vcc' % (vSel + k, vSel + k, vTmp + 1))
            a('v_mov_b32 v%d, 0x%08x' % (vTmp + 1, (lo << 16) | 0x0c0c))
            a('v_cmp_eq_u32 vcc, %d, v%d' % (ev0 + 1, e))
            a('v_cndmask_b32 v%d, v%d, v%d, vcc' % (vSel + k, vSel + k, vTmp + 1))

        if vwarm:
            a('buffer_load_dword v%d, v%d, %s, 0 offen' % (vJunk, zero, sr(rV, 4)))
            a('buffer_load_dword v%d, v%d, %s, 0 offen' % (vJunk, zero, sr(rWO, 4)))
            a('buffer_load_dword v%d, v%d, %s, s%d offen sc1' % (vJunk, zero, sr(rWS, 4), sQg))

    def unpack(dst, src, n):
        for i in range(n):
            a('v_lshlrev_b32 v%d, 16, v%d' % (dst + 2 * i, src + i))
            a('v_and_b32 v%d, 0xffff0000, v%d' % (dst + 2 * i + 1, src + i))

    def ln_stats(xf, t):
        s, tm = t + 8, t + 9
        a('v_add_f32 v%d, v%d, v%d' % (t, xf, xf + 1))
        a('v_add_f32 v%d, v%d, v%d' % (t + 1, xf + 2, xf + 3))
        a('v_add_f32 v%d, v%d, v%d' % (t + 2, xf + 4, xf + 5))
        a('v_add_f32 v%d, v%d, v%d' % (t + 3, xf + 6, xf + 7))
        a('v_add_f32 v%d, v%d, v%d' % (t, t, t + 1))
        a('v_add_f32 v%d, v%d, v%d' % (t + 2, t + 2, t + 3))
        a('v_add_f32 v%d, v%d, v%d' % (s, t, t + 2))
        allred([s], 'add_f32', [tm])
        a('v_mul_f32 v%d, %s, v%d' % (s, f32(1 / 512), s))
        for i in range(8):
            a('v_sub_f32 v%d, v%d, v%d' % (t + i, xf + i, s))
        rnd(s, s)
        a('v_mul_f32 v%d, v%d, v%d' % (t, t, t))
        a('v_mul_f32 v%d, v%d, v%d' % (t + 1, t + 1, t + 1))
        for i in range(2, 8):
            a('v_fmac_f32 v%d, v%d, v%d' % (t + (i & 1), t + i, t + i))
        a('v_add_f32 v%d, v%d, v%d' % (t, t, t + 1))
        allred([t], 'add_f32', [tm])
        a('v_mul_f32 v%d, %s, v%d' % (t, f32(1 / 512), t))
        rnd(t, t)
        a('v_add_f32 v%d, %s, v%d' % (t, f32(1e-5), t))
        rnd(t, t)
        a('v_sqrt_f32 v%d, v%d' % (t, t))
        rnd(t, t)
        a('v_rcp_f32 v%d, v%d' % (t, t))
        return s, t

    def ln1():
        if wqskew:
            n = a.vm - (tE or xtok['x'])
            a('s_cmp_eq_u32 s%d, 0' % sMode)
            a('s_cbranch_scc1 L_ws1')
            a('s_waitcnt vmcnt(%d)' % (n + 8))
            a('s_branch L_ws2')
            a.label('L_ws1')
            a('s_waitcnt vmcnt(%d)' % n)
            a.label('L_ws2')
            a.vm_done = tE or xtok['x']
        a.wait_vm(tE or xtok['x'])
        if tld == 's':
            a.wait_lg()
            a('v_mov_b32 v%d, s%d' % (vTag, sTagS))
        a('s_mov_b32 s%d, 1664525' % sC0)
        a('v_mul_lo_u32 v%d, v%d, s%d' % (vTag, vTag, sC0))
        a('v_add_u32 v%d, 1013904223, v%d' % (vTag, vTag))
        if bal:
            a('v_and_b32 v%d, 0xffffff00, v%d' % (vBt, vTag))
        unpack(vXf, vX, 4)
        mb, rc = ln_stats(vXf, T)
        for i in range(8):
            a('v_sub_f32 v%d, v%d, v%d' % (vXf + i, vXf + i, mb))
        for i in range(8):
            rnd(vXf + i, vXf + i)
        for i in range(8):
            a('v_mul_f32 v%d, v%d, v%d' % (vXf + i, vXf + i, rc))
        for i in range(4):
            a('v_cvt_pk_bf16_f32 v%d, v%d, v%d' % (vX + i, vXf + 2 * i, vXf + 2 * i + 1))
        a('ds_write_b128 v%d, %s' % (vXw, vr(vX, 4)))

    def qpart():
        a.wait_vm(tok['WQ'])
        a.wait_lg()
        stamp(True)
        a('s_barrier')
        for t in range(4):
            a('ds_read_b128 %s, v%d offset:%d' % (vr(vKf + 16 + 4 * t, 4), vXb, t * 64))
        if wqa:
            G = vAS + 4
            a('s_mov_b32 vcc_lo, 0xaaaaaaaa')
            a('s_mov_b32 vcc_hi, 0xaaaaaaaa')
            a('v_mov_b32 v%d, s%d' % (G + 3, sXcc))
            for b in range(NB):
                hb(b, sT1)
                a('s_cbranch_scc0 L_q%da' % b)
                a.cond += 1
                a('v_mov_b32 v%d, 0x7ff00000' % vTmp)
                a('buffer_store_dword v%d, v%d, %s, 0 offen' % (vTmp, vTmp, sr(rWS, 4)))
                a.cond -= 1
                a('s_branch L_q%db' % b)
                a.label('L_q%da' % b)
                if b:
                    a('v_add_u32 v%d, 0x%x, v%d' % (vTmp, (24576 + (b - 1) * 4096 - L_WQ) & 0xffffffff, vTr))
                    a('v_add_u32 v%d, 0x10000, v%d' % (vTmp + 1, vTmp))
                lt = []
                for t in range(4):
                    ad, of = (vTr, t * 4096) if b == 0 else (vTmp + (t >> 1), (t & 1) * 32768)
                    a('ds_read_b64_tr_b16 %s, v%d offset:%d' % (vr(vKf + 4 * t, 2), ad, of))
                    lt.append(a('ds_read_b64_tr_b16 %s, v%d offset:%d' % (vr(vKf + 4 * t + 2, 2), ad, of + 512)))
                a('s_lshl_b32 s%d, s%d, 14' % (sT1, sT1))
                a('s_add_u32 s%d, s%d, s%d' % (sT1, sT1, sPub))
                for t in range(4):
                    a.wait_lg(lt[t])
                    a('v_mfma_f32_16x16x32_bf16 %s, %s, %s, %s' % (vr(vAS, 4), vr(vKf + 4 * t, 4), vr(vKf + 16 + 4 * t, 4), '0' if t == 0 else vr(vAS, 4)))
                a('v_cndmask_b32 v%d, v%d, v%d, vcc' % (G, vAS, vAS + 2))
                a('v_cndmask_b32 v%d, v%d, v%d, vcc' % (G + 1, vAS + 1, vAS + 3))
                xor3(G + 2, G, G + 1, vTag)
                a('v_xor_b32 v%d, v%d, v%d' % (G + 2, G + 2, G + 3))
                a('s_mov_b32 exec_lo, 0x00030003')
                a('s_mov_b32 exec_hi, 0x00030003')
                a('buffer_store_dwordx4 %s, v%d, %s, s%d offen %s' % (vr(G, 4), vQw, sr(rWS, 4), sT1, qflag))
                a('s_mov_b64 exec, -1')
                a('s_nop 1')
                a.label('L_q%db' % b)
            a.wait_lg()
            if NB > 1:
                a('s_barrier')
            a('s_lshl_b32 s%d, s%d, 3' % (sT1, sP))
            a('s_add_u32 s%d, s%d, 0x%x' % (sT1, sT1, WS_XC))
            a('s_cmp_eq_u32 s%d, 0' % sW)
            a('s_cselect_b32 s%d, s%d, 0x7ff00000' % (sT1, sT1))
            a('v_mov_b32 v%d, s%d' % (vTmp, sT1))
            a('v_mov_b32 v%d, s%d' % (vAS, sXcc))
            a('v_xor_b32 v%d, s%d, v%d' % (vAS + 1, sXcc, vTag))
            a('s_mov_b64 exec, 1')
            a('buffer_store_dwordx2 %s, v%d, %s, 0 offen %s' % (vr(vAS, 2), vTmp, sr(rWS, 4), qflag))
            a('s_mov_b64 exec, -1')
            stamp(True)
            return
        lt = []
        for t in range(4):
            a('ds_read_b64_tr_b16 %s, v%d offset:%d' % (vr(vKf + 4 * t, 2), vTr, t * 4096))
            lt.append(a('ds_read_b64_tr_b16 %s, v%d offset:%d' % (vr(vKf + 4 * t + 2, 2), vTr, t * 4096 + 512)))
        a('s_mov_b32 vcc_lo, 0xaaaaaaaa')
        a('s_mov_b32 vcc_hi, 0xaaaaaaaa')
        for t in range(4):
            a.wait_lg(lt[t])
            a('v_mfma_f32_16x16x32_bf16 %s, %s, %s, %s' % (vr(vAS, 4), vr(vKf + 4 * t, 4), vr(vKf + 16 + 4 * t, 4), '0' if t == 0 else vr(vAS, 4)))
        G = vAS + 4
        a('v_cndmask_b32 v%d, v%d, v%d, vcc' % (G, vAS, vAS + 2))
        a('v_cndmask_b32 v%d, v%d, v%d, vcc' % (G + 1, vAS + 1, vAS + 3))
        a('v_mov_b32 v%d, s%d' % (G + 3, sXcc))
        xor3(G + 2, G, G + 1, vTag)
        a('v_xor_b32 v%d, v%d, v%d' % (G + 2, G + 2, G + 3))
        a('s_mov_b32 exec_lo, 0x00030003')
        a('s_mov_b32 exec_hi, 0x00030003')
        a('buffer_store_dwordx4 %s, v%d, %s, s%d offen %s' % (vr(G, 4), vQw, sr(rWS, 4), sPub, qflag))
        a('s_mov_b64 exec, -1')
        stamp(True)

    def ln2():
        a.wait_vm(small['t'])
        unpack(vXf, vX, 4)
        a('s_lshl_b32 s%d, s%d, 2' % (sT1, sP))
        a('s_add_u32 s%d, s%d, %d' % (sT1, sT1, L_XN))
        a('v_mov_b32 v%d, s%d' % (vH, sT1))
        a('ds_read_b32 v%d, v%d' % (vH + 2, vH))
        mb, rc = ln_stats(vXf, T)
        a.wait_lg()
        unpack(vH, vH + 2, 1)
        for i in range(2):
            a('v_sub_f32 v%d, v%d, v%d' % (vH + i, vH + i, mb))
        for i in range(2):
            rnd(vH + i, vH + i)
        for i in range(2):
            a('v_mul_f32 v%d, v%d, v%d' % (vH + i, vH + i, rc))
        for i in range(2):
            rnd(vH + i, vH + i)
        a('v_mov_b32 v%d, 0' % vY)
        a('v_mov_b32 v%d, 0' % (vY + 1))

    c0 = -2.0 * math.sqrt(2.0 / math.pi) * LOG2E
    c1 = c0 * 0.044715

    def gelu_chunk(k):
        wf, bf_, u, tt = T, T + 2, T + 4, T + 8
        unpack(wf, vW1 + k, 1)
        unpack(bf_, vB1 + k, 1)
        a('s_mov_b32 s%d, %s' % (sC0, f32(c0)))
        a('v_mov_b32 v%d, %s' % (T + 12, f32(c1)))
        for c in range(2):
            for i in range(2):
                a('v_mul_f32 v%d, v%d, v%d' % (u + 2 * c + i, vH + c, wf + i))
        for i in range(4):
            rnd(u + i, u + i)
        for i in range(4):
            a('v_add_f32 v%d, v%d, v%d' % (u + i, u + i, bf_ + (i & 1)))
        for i in range(4):
            rnd(u + i, u + i)
        for i in range(4):
            a('v_mul_f32 v%d, v%d, v%d' % (tt + i, u + i, u + i))
        for i in range(4):
            a('v_fma_f32 v%d, v%d, v%d, s%d' % (tt + i, tt + i, T + 12, sC0))
        for i in range(4):
            a('v_mul_f32 v%d, v%d, v%d' % (tt + i, tt + i, u + i))
        for i in range(4):
            a('v_exp_f32 v%d, v%d' % (tt + i, tt + i))
        for i in range(4):
            a('v_add_f32 v%d, 1.0, v%d' % (tt + i, tt + i))
        for i in range(4):
            a('v_rcp_f32 v%d, v%d' % (tt + i, tt + i))
        for i in range(4):
            a('v_mul_f32 v%d, v%d, v%d' % (u + i, u + i, tt + i))
        for c in range(2):
            a('v_cvt_pk_bf16_f32 v%d, v%d, v%d' % (tt + c, u + 2 * c, u + 2 * c + 1))
        for c in range(2):
            a('v_dot2c_f32_bf16 v%d, v%d, v%d' % (vY + c, tt + c, vW2 + k))

    def y_finish():
        allred([vY, vY + 1], 'add_f32', [T, T + 1])
        a('s_lshl_b32 s%d, s%d, 3' % (sT1, sW))
        a('s_add_u32 s%d, s%d, %d' % (sT1, sT1, L_YP))
        a('v_mov_b32 v%d, s%d' % (T, sT1))
        a('s_mov_b64 exec, 1')
        a('ds_write_b64 v%d, %s' % (T, vr(vY, 2)))
        a('s_mov_b64 exec, -1')

    QG = vQ + 16

    def q_loads(fl='sc1'):
        for k in range(4):
            if k:
                a('s_add_u32 s%d, s%d, %d' % (sOff, sQg, k * 4096))
            tk = a('buffer_load_dwordx4 %s, v%d, %s, s%d offen %s' % (vr(QG + 4 * k, 4), vT16, sr(rWS, 4), sOff if k else sQg, fl))
        if wqa:
            a('s_lshl_b32 s%d, s%d, 8' % (sOff, sG))
            a('s_add_u32 s%d, s%d, 0x%x' % (sOff, sOff, WS_XC))
            tk = a('buffer_load_dwordx2 %s, v%d, %s, s%d offen %s' % (vr(vS, 2), vS + 2, sr(rWS, 4), sOff, fl))
        tok['QG'] = tk

    def q_check():
        for k in range(4):
            xor3(T + k, QG + 4 * k, QG + 4 * k + 1, QG + 4 * k + 2)
        for k in range(4):
            xor3(T + k, T + k, QG + 4 * k + 3, vTag)
        a('v_or3_b32 v%d, v%d, v%d, v%d' % (vTmp, T, T + 1, T + 2))
        if wqa:
            xor3(T, vS, vS + 1, vTag)
            a('v_or3_b32 v%d, v%d, v%d, v%d' % (vTmp, vTmp, T + 3, T))
        else:
            a('v_or_b32 v%d, v%d, v%d' % (vTmp, vTmp, T + 3))
        a('v_cmp_ne_u32 vcc, 0, v%d' % vTmp)

    def q_issue():
        if wqa:
            a('v_and_b32 v%d, 31, v0' % (vS + 2))
            a('v_lshlrev_b32 v%d, 3, v%d' % (vS + 2, vS + 2))
        q_loads(qld)
        stamp(True)

    def q_take():
        a.wait_vm(tok['QG'])
        q_check()
        a('s_cbranch_vccnz L_qretry')
        a.label('L_qok')
        for c in range(2):
            a('v_add_f32 v%d, v%d, v%d' % (QG + c, QG + c, QG + 4 + c))
            a('v_add_f32 v%d, v%d, v%d' % (QG + 8 + c, QG + 8 + c, QG + 12 + c))
        for c in range(2):
            a('v_add_f32 v%d, v%d, v%d' % (QG + c, QG + c, QG + 8 + c))
        a('v_cvt_pk_bf16_f32 v%d, v%d, v%d' % (QG, QG, QG + 1))
        a('v_lshlrev_b32 v%d, 2, v0' % (QG + 1))
        a('v_add_u32 v%d, %d, v%d' % (QG + 1, L_QL, QG + 1))
        a('ds_write_b32 v%d, v%d' % (QG + 1, QG))
        if wqa:
            a('v_cmp_ne_u32 vcc, s%d, v%d' % (sXcc, vS))
        else:
            for k in range(4):
                a('v_xor_b32 v%d, s%d, v%d' % (T + k, sXcc, QG + 4 * k + 3))
            a('v_or3_b32 v%d, v%d, v%d, v%d' % (T, T, T + 1, T + 2))
            a('v_or_b32 v%d, v%d, v%d' % (T, T, T + 3))
            a('v_cmp_ne_u32 vcc, 0, v%d' % T)
        a('s_lshl_b32 s%d, s%d, 2' % (sT1, sW))
        a('s_add_u32 s%d, s%d, %d' % (sT1, sT1, L_XF))
        a('s_or_b32 s%d, vcc_lo, vcc_hi' % sT2)
        a('v_mov_b32 v%d, s%d' % (T, sT1))
        a('v_mov_b32 v%d, s%d' % (T + 1, sT2))
        a('ds_write_b32 v%d, v%d' % (T, T + 1))

    def q_mode():
        a.wait_lg(tok['XF'])
        a('v_or3_b32 v%d, v%d, v%d, v%d' % (vTmp + 4, vTmp + 4, vTmp + 5, vTmp + 6))
        a('v_or_b32 v%d, v%d, v%d' % (vTmp + 4, vTmp + 4, vTmp + 7))
        a('v_readfirstlane_b32 s%d, v%d' % (sMode, vTmp + 4))
        if mapping != 'mod':
            a('s_mov_b32 s%d, 1' % sMode)
        if force is not None:
            a('s_mov_b32 s%d, %d' % (sMode, force))

    def q_frag():
        a('v_mov_b32 v%d, %d' % (vTmp, L_XF))
        a.wait_lg()
        a('s_barrier')
        tok['XF'] = a('ds_read_b128 %s, v%d' % (vr(vTmp + 4, 4), vTmp))
        for t in range(4):
            a('ds_read_b128 %s, v%d offset:%d' % (vr(vQ + 4 * t, 4), vQf, t * 64))
        stamp(True)

    SCALE = float(struct.unpack('<f', struct.pack('<f', 128 ** -0.5))[0])

    def qk(t):
        a.wait_vm(tok['K%db' % t])
        lt = {}
        for g in range(2):
            for k in range(4):
                lt[g, k] = a('ds_read_b128 %s, v%d offset:%d' % (vr(vKf + g * 16 + k * 4, 4), vKa + k, (t % 4) * 8192 + g * 4096))
        for g in range(2):
            for k in range(4):
                a.wait_lg(lt[g, k])
                a('v_mfma_f32_16x16x32_bf16 %s, %s, %s, %s' % (vr(vAS + 4 * g, 4), vr(vKf + g * 16 + k * 4, 4), vr(vQ + k * 4, 4), '0' if k == 0 else vr(vAS + 4 * g, 4)))
        S = vS + t * 8
        a('s_mov_b32 s%d, %s' % (sC0, f32(SCALE)))
        for i in range(8):
            rnd(S + i, vAS + i)
        for i in range(8):
            a('v_mul_f32 v%d, s%d, v%d' % (S + i, sC0, S + i))
        for i in range(8):
            rnd(S + i, S + i)
        if t == 0:
            a('v_max3_f32 v%d, v%d, v%d, v%d' % (vM, S, S + 1, S + 2))
            a('v_max3_f32 v%d, v%d, v%d, v%d' % (vM, vM, S + 3, S + 4))
            a('v_max3_f32 v%d, v%d, v%d, v%d' % (vM, vM, S + 5, S + 6))
            a('v_max_f32 v%d, v%d, v%d' % (vM, vM, S + 7))
        else:
            for i in range(4):
                a('v_max3_f32 v%d, v%d, v%d, v%d' % (vM, vM, S + 2 * i, S + 2 * i + 1))
        if t == 7:
            stamp(True)

    vMA, vL2 = (vBv, vBv + 1) if two else (None, vTmp + 1)

    def sm_maxA():
        allred([vM], 'max_f32', [vTmp], bits=(4, 5))
        a('v_mul_f32 v%d, %s, v%d' % (vMA, f32(LOG2E), vM))
        a('v_mov_b32 v%d, 0' % vLs)
        a('v_mov_b32 v%d, 0' % vL2)

    def sm_max():
        allred([vM], 'max_f32', [vTmp], bits=(4, 5))
        a('v_mul_f32 v%d, %s, v%d' % (vM, f32(LOG2E), vM))
        if two:
            a('v_sub_f32 v%d, v%d, v%d' % (vMA, vMA, vM))
            a('v_exp_f32 v%d, v%d' % (vMA, vMA))
            a('s_nop 1')
            for r in range(4):
                a('v_mov_b32_dpp v%d, v%d row_newbcast:%d row_mask:0x%x bank_mask:0xf' % (vTmp, vMA, 4 * r, 1 << r))
            a('v_mul_f32 v%d, v%d, v%d' % (vLs, vLs, vMA))
            a('v_mul_f32 v%d, v%d, v%d' % (vL2, vL2, vMA))
            for i in range(8):
                a('v_mul_f32 v%d, v%d, v%d' % (vO + i, vO + i, vTmp))
            return
        a('v_mov_b32 v%d, 0' % vLs)
        a('v_mov_b32 v%d, 0' % vL2)

    def sm_exp(t):
        S = vS + t * 8
        a('s_mov_b32 s%d, %s' % (sC0, f32(LOG2E)))
        for i in range(8):
            a('v_fma_f32 v%d, v%d, s%d, -v%d' % (S + i, S + i, sC0, vMA if two and t < 4 else vM))
        for i in range(8):
            a('v_exp_f32 v%d, v%d' % (S + i, S + i))
        for i in range(4):
            a('v_add_f32 v%d, v%d, v%d' % (vLs, vLs, S + 2 * i))
            a('v_add_f32 v%d, v%d, v%d' % (vL2, vL2, S + 2 * i + 1))
        for i in range(4):
            a('v_cvt_pk_bf16_f32 v%d, v%d, v%d' % (S + i, S + 2 * i, S + 2 * i + 1))

    def sm_fin():
        a('v_add_f32 v%d, v%d, v%d' % (vLs, vLs, vL2))
        allred([vLs], 'add_f32', [vTmp], bits=(4, 5))
        a('s_lshl_b32 s%d, s%d, 3' % (sT1, sW))
        a('s_add_u32 s%d, s%d, %d' % (sT1, sT1, L_ML))
        a('v_lshlrev_b32 v%d, 3, v%d' % (vTmp, vL))
        a('v_add_u32 v%d, s%d, v%d' % (vTmp, sT1, vTmp))
        a('s_mov_b64 exec, 0x1111')
        a('ds_write_b64 v%d, %s' % (vTmp, vr(vM, 2)))
        a('s_mov_b64 exec, -1')

    def p_prep(t):
        P = vKf + (t & 1) * 16
        S = vS + t * 8
        for g in range(2):
            for r in range(4):
                pk = S + g * 2 + (r >> 1)
                sl = vSel + (r & 1) * 2
                a('v_perm_b32 v%d, v%d, v%d, v%d' % (P + g * 8 + r * 2, pk, pk, sl))
                a('v_perm_b32 v%d, v%d, v%d, v%d' % (P + g * 8 + r * 2 + 1, pk, pk, sl + 1))

    def pv(t, fine=False):
        P = vKf + (t & 1) * 16
        if not fine:
            a.wait_vm(tok['V%db' % t])
        for g in range(2):
            for r in range(4):
                if fine:
                    a.wait_vm(vtok[(t, g, r)])
                for hf in range(2):
                    fst = (t == 0 and g == 0 and r == 0)
                    a('v_mfma_f32_16x16x16_bf16 %s, %s, %s, %s' % (vr(vO + 4 * hf, 4), vr(P + g * 8 + r * 2, 2), ar(t * 32 + g * 16 + r * 4 + hf * 2, 2), '0' if fst else vr(vO + 4 * hf, 4)))

    def wo_pair(w=True):
        if w:
            a.wait_vm(tok['WO'])
        a('s_mov_b32 s%d, 0x05040100' % sC0)
        a('s_mov_b32 s%d, 0x07060302' % sC1)
        for k in range(8):
            a('v_perm_b32 v%d, v%d, v%d, s%d' % (vWOp + k, vWOr + 2 * k + 1, vWOr + 2 * k, sC0))
            a('v_perm_b32 v%d, v%d, v%d, s%d' % (vWOp + 8 + k, vWOr + 2 * k + 1, vWOr + 2 * k, sC1))

    vTB = vZ + 16 if wol else vWOr
    vRw, vRr, vPo, vOo = vTB, vTB + 1, vTB + 2, vTB + 3
    vR2w, vR2r = vTB + 4, vTB + 5
    sGa = 52

    def tail_setup():
        if tailpf:
            a('v_and_b32 v%d, 31, v0' % vTmp)
            a('v_lshlrev_b32 v%d, 7, v%d' % (vTmp, vTmp))
            a('v_add_u32 v%d, L_tail-L_pc, v%d' % (vTmp, vTmp))
            a('v_min_u32 v%d, L_codeend-L_pc-4, v%d' % (vTmp, vTmp))
            a('global_load_dword v%d, v%d, %s' % (vJunk, vTmp, sr(sPC, 2)))
        a('s_mul_i32 s%d, s%d, %d' % (sT1, sW, 2304 if red2 else 2048))
        a('s_add_u32 s%d, s%d, %d' % (sT1, sT1, L_RED))
        a('v_lshlrev_b32 v%d, %d, v%d' % (vRw, 4 if red2 else 5, vL))
        a('v_add_u32 v%d, s%d, v%d' % (vRw, sT1, vRw))
        a('v_lshlrev_b32 v%d, 3, v0' % vRr)
        a('v_add_u32 v%d, %d, v%d' % (vR2w, L_RED2, vRr))
        if red2:
            a('v_and_b32 v%d, 8, v%d' % (vRr, vRr))
            a('v_lshrrev_b32 v%d, 2, v0' % vPo)
            a('v_lshl_add_u32 v%d, v%d, 4, v%d' % (vRr, vPo, vRr))
            a('v_bfe_u32 v%d, v0, 1, 1' % vPo)
            a('v_mul_u32_u24 v%d, 1152, v%d' % (vPo, vPo))
            a('v_add_u32 v%d, v%d, v%d' % (vRr, vPo, vRr))
        a('v_add_u32 v%d, %d, v%d' % (vRr, L_RED, vRr))
        a('v_lshrrev_b32 v%d, 3, v%d' % (vPo, vL))
        a('v_mul_u32_u24 v%d, %d, v%d' % (vPo, PST, vPo))
        a('v_and_b32 v%d, 7, v%d' % (vOo, vL))
        a('v_lshl_add_u32 v%d, v%d, 4, v%d' % (vPo, vOo, vPo))
        if olay == 'prod':
            a('v_mul_u32_u24 v%d, %d, v%d' % (vOo, OST, vL))
        else:
            a('v_mul_u32_u24 v%d, %d, v%d' % (vOo, CST, vL))
        a('s_mul_i32 s%d, s%d, %d' % (sPub, sJ, PST))
        a('s_add_u32 s%d, s%d, 0x%x' % (sPub, sPub, WS_PART))
        a('s_and_b32 s%d, s%d, 0xe0' % (sT1, sJ))
        a('s_mul_i32 s%d, s%d, %d' % (sT1, sT1, PST))
        a('s_and_b32 s%d, s%d, 0x1c' % (sT2, sJ))
        a('s_add_u32 s%d, s%d, s%d' % (sT2, sT2, sW))
        a('s_lshl_b32 s%d, s%d, 7' % (sT2, sT2))
        a('s_add_u32 s%d, s%d, s%d' % (sT1, sT1, sT2))
        for jj in range(4):
            a('s_add_u32 s%d, s%d, 0x%x' % (sGa + jj, sT1, WS_PART + jj * 8 * PST))
        if olay == 'prod':
            a('s_and_b32 s%d, s%d, 3' % (sT1, sJ))
            a('s_lshl_b32 s%d, s%d, 6' % (sT1, sT1))
            a('s_lshr_b32 s%d, s%d, 2' % (sT2, sJ))
            a('s_add_u32 s%d, s%d, s%d' % (sT1, sT1, sT2))
            a('s_mul_i32 s%d, s%d, %d' % (sT1, sT1, OST))
            a('s_add_u32 s%d, s%d, 0x%x' % (sGa + 4, sT1, WS_OUTP))
            a('s_and_b32 s%d, s%d, 0xc0' % (sT1, sP))
            a('s_mul_i32 s%d, s%d, %d' % (sT1, sT1, OST))
            a('s_and_b32 s%d, s%d, 63' % (sT2, sP))
            a('s_lshl_b32 s%d, s%d, 4' % (sT2, sT2))
            a('s_add_u32 s%d, s%d, s%d' % (sT1, sT1, sT2))
            a('s_add_u32 s%d, s%d, 0x%x' % (sGa + 5, sT1, WS_OUTP))
        else:
            a('s_and_b32 s%d, s%d, 3' % (sT1, sJ))
            a('s_mul_i32 s%d, s%d, %d' % (sT1, sT1, 64 * CST))
            a('s_lshr_b32 s%d, s%d, 2' % (sT2, sJ))
            a('s_lshl_b32 s%d, s%d, 4' % (sT2, sT2))
            a('s_add_u32 s%d, s%d, s%d' % (sT1, sT1, sT2))
            a('s_add_u32 s%d, s%d, 0x%x' % (sGa + 4, sT1, WS_OUTP))
            a('s_mul_i32 s%d, s%d, %d' % (sT1, sP, CST))
            a('s_add_u32 s%d, s%d, 0x%x' % (sGa + 5, sT1, WS_OUTP))

    def warmup():
        vOst, vOld = (vT16, vOo) if olay == 'prod' else (vOo, vT16)
        if warm & 1:
            for jj in range(4):
                a('buffer_load_dword v%d, v%d, %s, s%d offen sc1' % (vJunk, vPo, sr(rWS, 4), sGa + jj))
            a('buffer_load_dword v%d, v%d, %s, s%d offen sc1' % (vJunk, vT16, sr(rWS, 4), sPub))
        if warm & 2:
            a('buffer_load_dword v%d, v%d, %s, s%d offen sc1' % (vJunk, vOld, sr(rWS, 4), sGa + 5))
            a('buffer_load_dword v%d, v%d, %s, s%d offen sc1' % (vJunk, vL4, sr(rWS, 4), sGa + 4))
        if warm & 8:
            a('v_lshrrev_b32 v%d, 4, v%d' % (vBv, vL))
            a('v_mul_u32_u24 v%d, %d, v%d' % (vBv, 21 * OST, vBv))
            a('buffer_load_dword v%d, v%d, %s, s%d offen sc1' % (vJunk, vBv, sr(rWS, 4), sGa + 5))
            a('buffer_load_dword v%d, off, %s, s%d sc1' % (vJunk, sr(rWS, 4), sGa + 4))
        if warm & 16:
            a('v_lshrrev_b32 v%d, 4, v%d' % (vBv, vL))
            a('v_mul_u32_u24 v%d, %d, v%d' % (vBv, 10 * PST, vBv))
            a('buffer_load_dword v%d, v%d, %s, s%d offen sc1' % (vJunk, vBv, sr(rWS, 4), sGa))
        if warm & 4:
            a('global_load_dword v%d, v%d, %s sc1' % (vJunk, vL4, sr(pOUT, 2)))

    def predirty():
        D = vTmp + 4
        a('s_cmp_lg_u32 s%d, 0' % sMode)
        a('s_cbranch_scc1 L_nopd')
        a.cond += 1
        for i in range(3):
            a('v_mov_b32 v%d, 0' % (D + i))
        a('v_not_b32 v%d, v%d' % (D + 3, vTag))
        a('buffer_store_dwordx4 %s, v%d, %s, s%d offen %s' % (vr(D, 4), vT16, sr(rWS, 4), sPub, pflag))
        a('s_nop 1')
        a.cond -= 1
        a.label('L_nopd')

    btok = {}

    def b_pub(k):
        a('v_add_u32 v%d, %d, v%d' % (vBv, k, vBt))
        a('buffer_store_dwordx4 %s, v%d, %s, 0 offen sc1' % (vr(vBv, 4), vBst, sr(rWS, 4)))

    def b_load(k):
        btok[k] = a('buffer_load_dword v%d, v%d, %s, 0 offen sc1' % (vBr + (len(btok) & 1), vBld, sr(rWS, 4))), vBr + (len(btok) & 1)

    def b_use(k):
        t, r = btok[k]
        a.wait_vm(t)
        a('v_sub_u32 v%d, v%d, v%d' % (r, r, vBt))
        a('v_cmp_gt_u32 vcc, 0x100, v%d' % r)
        a('v_cndmask_b32 v%d, 0, v%d, vcc' % (r, r))
        a('v_readlane_b32 s%d, v%d, s%d' % (sT1, r, sG))
        for b in (4, 2, 1):
            a('v_add_u32_dpp v%d, v%d, v%d row_ror:%d row_mask:0xf bank_mask:0xf' % (r, r, r, b))
        a('s_lshl_b32 s%d, s%d, 3' % (sT1, sT1))
        a('v_readfirstlane_b32 s%d, v%d' % (sT2, r))
        if theta:
            a('s_add_u32 s%d, s%d, %d' % (sT2, sT2, theta))
        a('s_cmp_gt_i32 s%d, s%d' % (sT1, sT2))
        a('s_cselect_b32 s%d, 1, 0' % sThr)
        if stamps:
            a('s_add_u32 s15, s15, s%d' % sThr)

    ctok = {}

    def c_add(k):
        r = vBr + (k & 1)
        a('s_cmp_eq_u32 s%d, %d' % (sW, k & 3))
        a('s_cselect_b32 s%d, 0, 0x7ff00000' % sT1)
        a('v_or_b32 v%d, s%d, v%d' % (vBv + 1, sT1, vBv))
        a('v_mov_b32 v%d, 1' % r)
        ctok[k] = a('buffer_atomic_add v%d, v%d, %s, 0 offen %s' % (r, vBv + 1, sr(rWS, 4), cflag))

    def c_use(k):
        r = vBr + (k & 1)
        n = 256 // NC
        a.wait_vm(ctok[k])
        a('v_readfirstlane_b32 s%d, v%d' % (sT1, r))
        a('s_mov_b32 s%d, 0' % sT2)
        for d in dth:
            a('s_cmp_lt_i32 s%d, %d' % (sT1, k * n + n // 2 - d))
            a('s_addc_u32 s%d, s%d, 0' % (sT2, sT2))
        if cforce is not None:
            a('s_mov_b32 s%d, %d' % (sT2, cforce))
        a('s_cmp_eq_u32 s%d, %d' % (sW, k & 3))
        a('s_cselect_b32 s%d, 0, 4' % sT1)
        a('v_mov_b32 v%d, s%d' % (r, sT2))
        a('v_add_u32 v%d, s%d, v%d' % (vBv + 1, sT1, vBv + 3))
        a('s_mov_b64 exec, 1')
        a('ds_write_b32 v%d, v%d' % (vBv + 1, r))
        a('s_mov_b64 exec, -1')

    def s_add(k):
        if clat == k:
            stamp()
        a('s_mov_b32 s%d, 1' % sCD)
        if cop == 'add':
            a('s_atomic_add s%d, %s, 0 glc' % (sCD, sr(sCA, 2)))
        else:
            a('s_load_dword s%d, %s, %d glc' % (sCD, sr(sCA, 2), 128 * k))

    def s_use(k):
        n = 1024 // NC
        if clat == k:
            stamp()
        a.wait_lg()
        if clat == k:
            stamp()
            stamp()
            stamp()
        a('s_mov_b32 s%d, 0' % sThr)
        for d in dth:
            a('s_cmp_lt_i32 s%d, %d' % (sCD, k * n + n // 2 - d))
            a('s_addc_u32 s%d, s%d, 0' % (sThr, sThr))
        if cforce is not None:
            a('s_mov_b32 s%d, %d' % (sThr, cforce))

    def w_add(k):
        a('s_cmp_lg_u32 s%d, 0' % sW)
        a('s_cbranch_scc1 L_wa%d' % k)
        if clat == k:
            stamp()
        a('s_mov_b32 s%d, 1' % sCD)
        if cop == 'add':
            a('s_atomic_add s%d, %s, 0 glc' % (sCD, sr(sCA, 2)))
        elif cop == 'ld':
            a('s_load_dword s%d, %s, %d glc' % (sCD, sr(sCA, 2), 128 * k))
        a.label('L_wa%d' % k)

    def w_use(k):
        n = 256 // NC
        a('s_cmp_lg_u32 s%d, 0' % sW)
        a('s_cbranch_scc1 L_wu%d' % k)
        if clat == k:
            stamp()
        a.wait_lg()
        if clat == k:
            stamp()
            stamp()
            stamp()
        a('s_mov_b32 s%d, 0' % sThr)
        for d in dth:
            a('s_cmp_lt_i32 s%d, %d' % (sCD, k * n + n // 2 - d))
            a('s_addc_u32 s%d, s%d, 0' % (sThr, sThr))
        if cforce is not None:
            a('s_mov_b32 s%d, %d' % (sThr, cforce))
        a('v_mov_b32 v%d, s%d' % (vBv, sThr))
        a('s_mov_b64 exec, 1')
        a('ds_write_b32 v%d, v%d' % (vBv + 3, vBv))
        a('s_mov_b64 exec, -1')
        a.label('L_wu%d' % k)
        a.smem_out = True
        a.lg_done = 0

    nlab = [0]

    def w_read():
        nlab[0] += 1
        a('s_cmp_eq_u32 s%d, 0' % sW)
        a('s_cbranch_scc1 L_wr%d' % nlab[0])
        a('ds_read_b32 v%d, v%d' % (vBv + 2, vBv + 3))
        a.label('L_wr%d' % nlab[0])
        a.smem_out = True

    def w_get():
        nlab[0] += 1
        a('s_cmp_eq_u32 s%d, 0' % sW)
        a('s_cbranch_scc1 L_wr%d' % nlab[0])
        a.wait_lg()
        a('v_readfirstlane_b32 s%d, v%d' % (sThr, vBv + 2))
        a.label('L_wr%d' % nlab[0])
        a.smem_out = True
        a.lg_done = 0
        if stamps:
            a('s_add_u32 s15, s15, s%d' % sThr)

    def c_read():
        ctok['r'] = a('ds_read_b32 v%d, v%d' % (vBv + 2, vBv + 3))

    def c_get():
        a.wait_lg(ctok['r'])
        a('v_readfirstlane_b32 s%d, v%d' % (sThr, vBv + 2))
        if stamps:
            a('s_add_u32 s15, s15, s%d' % sThr)

    sched = {i: [] for i in range(-1, N)}

    def at(i, f):
        i = min(i, N - 1)
        sched[i].append(f)
        return i

    p = W0 * sub - 1
    if xpos:
        at(xpos - 1, xload)
    if wwarm:
        at(last[wwarm], lambda: a('buffer_load_dword v%d, off, %s, 0' % (vJunk, sr(rWO, 4))) if wwarm != 'K0a' else None)
    at(p, setup)
    if wwarm == 'K0a':
        at(p, lambda: a('buffer_load_dword v%d, off, %s, 0' % (vJunk, sr(rWO, 4))))
    at(p, ln1)
    p = at(max(ready('WQ') + d1 * sub, p), qpart)
    pbar = p
    for f in [ln2] + [lambda k=k: gelu_chunk(k) for k in range(4)] + [y_finish]:
        p = at(p + sub, f)
    pq = at(last[qpos], q_issue)
    p1 = at(rdy(pq), q_take)
    p2 = at(p1 + d2 * sub, q_frag)
    assert p <= p2, 'gelu must finish before qk'
    assert p2 < first['K4a'], (p2, first['K4a'])
    p = p2
    for t in range(4):
        p = at(min(max(p, p2 + t * sub), first['K%da' % (t + 4)] - 1), lambda t=t: qk(t))
    at(p, q_mode)
    if wol:
        last['WO'] = 0
    else:
        at(max(ready('WO'), p), wo_pair)
    at(max(ready('WO'), p), tail_setup)
    if warm:
        at(last[warmpos] if warmpos else max(ready('WO'), p), warmup)
    if pdpos:
        assert last[pdpos] >= max(ready('WO'), p)
        at(last[pdpos], predirty)
    if two:
        assert not bal and not ctl
        pa = at(p + two[0], sm_maxA)
        at(pa, lambda: (sm_exp(0), sm_exp(1)))
        pa = at(p + two[1], lambda: (sm_exp(2), sm_exp(3)))
        for t in range(4):
            assert p + two[2 + t] >= max(pa, ready('V%db' % t)) and p + two[2 + t] < ready('K7b')
            at(p + two[2 + t], lambda t=t: (p_prep(t), pv(t)))
    for t in range(4, 8):
        p = at(ready('K%db' % (t | 1 if qkpair == 1 else 7 if qkpair == 2 else t)), lambda t=t: qk(t))
    at(p, sm_max)
    p0 = p
    for t in range(4 if two else 0, 8, 2):
        p = at(p0 + exo[t // 2] if exo else p + (sub if t % 4 else 0), lambda t=t: (sm_exp(t), sm_exp(t + 1)))
    at(p, sm_fin)
    late = []
    for t in range(4 if two else 0, 8):
        r = max(ready('V%db' % t), p + (pvo[t] if pvo and t < len(pvo) else 0))
        if r < N - 1 and t < 7:
            at(r, lambda t=t: (p_prep(t), pv(t)))
        else:
            late.append(t)
    if bal:
        b0 = (W0 * sub if bstart is None else bstart)
        b1 = (N - 1 if bend is None else bend)
        for i in range(b0, b1 if thrmask is None else b0):
            if (i - b0) % pub == 0:
                sched[i].insert(0, lambda i=i: b_pub(i))
            if (i - b0) % chk == 0 and i + Wn + 1 < N - 1:
                assert chk * 2 > Wn, 'only two result regs'
                sched[i].insert(0, lambda i=i: b_load(i))
                sched[i + Wn + 1].insert(0, lambda i=i: b_use(i))
        a('s_mov_b32 s%d, %d' % (sThr, bal - 1))
        a('s_mov_b32 s15, 0')
        if thrmask is not None:
            a('s_and_b32 s%d, s2, 7' % sThr)
            a('s_lshr_b32 s%d, %d, s%d' % (sThr, thrmask, sThr))
            a('s_and_b32 s%d, s%d, 1' % (sThr, sThr))
    cget = set()
    if verbose:
        for i in range(N):
            print(i, seq[i], [getattr(f, '__name__', '?') for f in sched[i]], file=sys.stderr)
    if ctl == 3:
        cfirst = cpts[0][1] * sub + 1
        for u in range(cpts[0][1], N // sub - 1):
            sched[u * sub + sub - 1].append(w_read)
            sched[u * sub + sub].insert(0, w_get)
        for k, (i, j) in enumerate(cpts):
            sched[i * sub + sub - 1].append(lambda k=k: w_add(k))
            sched[j * sub].insert(0, lambda k=k: w_use(k))
        a('s_mov_b32 s%d, 0' % sThr)
        a('s_mov_b32 s15, 0')
    elif ctl == 2:
        for k, (i, j) in enumerate(cpts):
            sched[i * sub + sub - 1].append(lambda k=k: s_add(k))
            sched[j * sub].insert(0, lambda k=k: s_use(k))
        cfirst = cpts[0][1] * sub + 1
        a('s_mov_b32 s%d, 0' % sThr)
        a('s_mov_b32 s15, 0')
    elif ctl:
        c0_ = max(pbar + 1, cstart or 0)
        c1_ = N - 1 if cend is None else cend
        k = 0
        assert CP * 2 > Wn
        fu = None
        for i in range(c0_, c1_, CP):
            if i + Wn + 1 >= N - 2:
                break
            sched[i].insert(0, lambda k=k: c_add(k))
            sched[i + Wn + 1].insert(0, lambda k=k: c_use(k))
            fu = fu or i + Wn + 1
            k += 1
        for i in range(fu, N - 1, sub if ctl == 1 else 1):
            sched[i].append(c_read)
            cget.add(i + 1)
        a('s_mov_b32 s%d, 0' % sThr)
        a('s_mov_b32 s15, 0')
    utok = []
    for i, (n, s) in enumerate(seq):
        if i >= W0 * sub and i - Wf(i) >= 0:
            a.wait_vm(utok[i - Wf(i)])
        if bal and i >= W0 * sub and i - Wlo >= 0:
            a('s_cmp_eq_u32 s%d, 0' % sThr)
            a('s_cbranch_scc1 L_b%d' % i)
            a('s_waitcnt vmcnt(%d)' % (a.vm - utok[i - Wlo]))
            a.label('L_b%d' % i)
        if i in cget:
            c_get()
        if ctl == 2 and stamps and i >= cfirst:
            a('s_add_u32 s15, s15, s%d' % sThr)
        if (ctl in (2, 3) and i >= cfirst) or (ctl == 1 and cget and i >= min(cget)):
            for li, wl in enumerate(Wl):
                a('s_cmp_eq_u32 s%d, %d' % (sThr, li))
                a('s_cbranch_scc1 L_c%d' % i)
                a('s_waitcnt vmcnt(%d)' % min(63, a.vm - utok[i - wl]))
            a.label('L_c%d' % i)
        if ts and i in ts:
            stamp()
            a.smem_out = False
        a.comment('unit %s.%d' % (n, s))
        utok.append(issue(n, s))
        for f in sched[i]:
            f()
    ool = []
    if wol == 2:
        issue('WO', 0)
    if wol == 8:
        issue('WO', (0, 1))
    a.label('L_tail')
    a.wait_lg()
    a('s_barrier')
    vA = vTmp
    a('s_lshl_b32 s%d, s%d, 5' % (sT1, sW))
    a('s_add_u32 s%d, s%d, %d' % (sT1, sT1, L_ML))
    a('v_mov_b32 v%d, s%d' % (vA, sT1))
    ML = vQ
    a('ds_read_b128 %s, v%d' % (vr(ML, 4), vA))
    a('ds_read_b128 %s, v%d offset:16' % (vr(ML + 4, 4), vA))
    a('v_mov_b32 v%d, %d' % (vA + 1, L_YP))
    a('ds_read_b128 %s, v%d' % (vr(ML + 8, 4), vA + 1))
    a('ds_read_b128 %s, v%d offset:16' % (vr(ML + 12, 4), vA + 1))
    if wol == 7:
        issue('WO', 0)
    a.wait_lg()
    Mx = vWt + 4
    a('v_max3_f32 v%d, v%d, v%d, v%d' % (Mx, ML, ML + 2, ML + 4))
    a('v_max_f32 v%d, v%d, v%d' % (Mx, Mx, ML + 6))
    for w in range(4):
        a('v_sub_f32 v%d, v%d, v%d' % (vWt + w, ML + 2 * w, Mx))
    for w in range(4):
        a('v_exp_f32 v%d, v%d' % (vWt + w, vWt + w))
    Ls = vWt + 5
    a('v_mul_f32 v%d, v%d, v%d' % (Ls, vWt, ML + 1))
    for w in range(1, 4):
        a('v_fmac_f32 v%d, v%d, v%d' % (Ls, vWt + w, ML + 2 * w + 1))
    a('v_rcp_f32 v%d, v%d' % (vWt + 6, Ls))
    a('v_log_f32 v%d, v%d' % (Ls, Ls))
    for w in range(4):
        a('v_mul_f32 v%d, v%d, v%d' % (vWt + w, vWt + w, vWt + 6))
    GP = vTmp + 4
    a('v_add_f32 v%d, v%d, v%d' % (GP + 2, Mx, Ls))
    a('v_xor_b32 v%d, v%d, v%d' % (GP + 3, GP + 2, vTag))
    for c in range(2):
        a('v_add_f32 v%d, v%d, v%d' % (ML + 8 + c, ML + 8 + c, ML + 10 + c))
        a('v_add_f32 v%d, v%d, v%d' % (ML + 12 + c, ML + 12 + c, ML + 14 + c))
    a('v_lshlrev_b32 v%d, 16, v%d' % (vB2, vB2))
    for c in range(2):
        a('v_add_f32 v%d, v%d, v%d' % (vY + c, ML + 8 + c, ML + 12 + c))
    for c in range(2):
        rnd(vY + c, vY + c)
    for c in range(2):
        a('v_add_f32 v%d, v%d, v%d' % (vY + c, vY + c, vB2))
    for c in range(2):
        rnd(vY + c, vY + c)
    vXu = vWt + 6
    unpack(vXu, vXp, 1)
    if wol == 4:
        issue('WO', 0)
    if wol == 8:
        issue('WO', (2, 3))
    if wol == 9:
        issue('WO', (0, 1))
    for t in late:
        p_prep(t)
        if wol == 3 and t == 7:
            a.wait_vm(tok['V7a'])
            issue('WO', 0)
        if wol == 5 and t == 7:
            issue('WO', 0)
        if wol == 9 and t == 7:
            issue('WO', (2, 3))
        pv(t, fine=True)
    if wol == 6:
        issue('WO', 0)
    stamp()
    a('ds_write_b128 v%d, %s' % (vRw, vr(vO, 4)))
    a('ds_write_b128 v%d, %s offset:%d' % (vRw, vr(vO + 4, 4), 1152 if red2 else 16))
    a.wait_lg()
    a('s_barrier')
    R = vQ
    lt = [a('ds_read_b64 %s, v%d offset:%d' % (vr(R + 2 * w, 2), vRr, w * (2304 if red2 else 2048))) for w in range(4)]
    a('s_mov_b32 s%d, 0' % sCnt)
    a('s_cmp_lg_u32 s%d, 0' % sMode)
    for w in range(4):
        a.wait_lg(lt[w])
        if red2:
            sel = 'op_sel:[0,1,0] op_sel_hi:[1,1,1]' if w & 1 else 'op_sel_hi:[1,0,1]'
            if w == 0:
                a('v_pk_mul_f32 %s, %s, %s op_sel_hi:[1,0]' % (vr(GP, 2), vr(R, 2), vr(vWt, 2)))
            else:
                a('v_pk_fma_f32 %s, %s, %s, %s %s' % (vr(GP, 2), vr(R + 2 * w, 2), vr(vWt + (w & 2), 2), vr(GP, 2), sel))
            continue
        for c in range(2):
            if w == 0:
                a('v_mul_f32 v%d, v%d, v%d' % (GP + c, vWt, R + c))
            else:
                a('v_fmac_f32 v%d, v%d, v%d' % (GP + c, vWt + w, R + 2 * w + c))
    xor3(GP + 3, GP + 3, GP, GP + 1)
    a('s_cbranch_scc1 L_pslow')
    a('buffer_store_dwordx4 %s, v%d, %s, s%d offen %s' % (vr(GP, 4), vT16, sr(rWS, 4), sPub, pflag))
    a.label('L_pback')
    stamp()
    Gq = vQ
    GO = vTmp
    C = vQ + 16
    Mx = C + 4
    K = C + 12
    A0, A1, Wt = C + 8, C + 9, C + 10
    if pm:
        sM = 60
        for i in range(4):
            a('v_mov_b32 v%d, 0' % (GO + i))
        for jj in range(4):
            a('buffer_load_dwordx4 %s, v%d, %s, s%d offen %s' % (vr(Gq + 4 * jj, 4), vPo, sr(rWS, 4), sGa + jj, pld))
        if wol:
            a('s_waitcnt vmcnt(4)')
            wo_pair(False)
        a.label('L_pg')
        a.wait_vm0()
        if pst:
            a('s_memrealtime %s' % sr(sST + 6, 2))
        for jj in range(4):
            xor3(K + jj, Gq + 4 * jj, Gq + 4 * jj + 1, Gq + 4 * jj + 2)
        for jj in range(4):
            xor3(K + jj, K + jj, Gq + 4 * jj + 3, vTag)
        a('v_max3_f32 v%d, v%d, v%d, v%d' % (Mx, Gq + 2, Gq + 6, Gq + 10))
        a('v_or3_b32 v%d, v%d, v%d, v%d' % (C + 6, K, K + 1, K + 2))
        a('v_max_f32 v%d, v%d, v%d' % (Mx, Mx, Gq + 14))
        a('v_or_b32 v%d, v%d, v%d' % (C + 6, C + 6, K + 3))
        a('v_cmp_ne_u32 vcc, 0, v%d' % (C + 6))
        a('v_max_f32_dpp v%d, v%d, v%d row_ror:8 row_mask:0xf bank_mask:0xf' % (Mx, Mx, Mx))
        a('v_mov_b32 v%d, v%d' % (C + 5, Mx))
        a('s_cbranch_vccnz L_pretry')
        a.label('L_pcont')
        if om == 3:
            a('s_cmp_lg_u32 s%d, %d' % (sW, ow))
            a('s_cbranch_scc1 L_noe')
            a('buffer_load_dwordx4 %s, v%d, %s, s%d offen sc1' % (vr(vS, 4), vOo if olay == 'prod' else vT16, sr(rWS, 4), sGa + 5))
            a.label('L_noe')
        a('v_permlane16_swap_b32 v%d, v%d' % (Mx, C + 5))
        a('v_max_f32 v%d, v%d, v%d' % (Mx, Mx, C + 5))
        a('v_mov_b32 v%d, v%d' % (C + 5, Mx))
        a('v_permlane32_swap_b32 v%d, v%d' % (Mx, C + 5))
        a('v_max_f32 v%d, v%d, v%d' % (Mx, Mx, C + 5))
        for jj in range(4):
            a('v_sub_f32 v%d, v%d, v%d' % (C + jj, Gq + 4 * jj + 2, Mx))
        for jj in range(4):
            a('v_exp_f32 v%d, v%d' % (C + jj, C + jj))
        a('v_pk_mul_f32 %s, %s, %s op_sel_hi:[1,0]' % (vr(A0, 2), vr(Gq, 2), vr(C, 2)))
        a('v_add_f32 v%d, v%d, v%d' % (Wt, C, C + 1))
        a('v_pk_fma_f32 %s, %s, %s, %s op_sel:[0,1,0] op_sel_hi:[1,1,1]' % (vr(A0, 2), vr(Gq + 4, 2), vr(C, 2), vr(A0, 2)))
        a('v_add_f32 v%d, v%d, v%d' % (Wt, Wt, C + 2))
        a('v_pk_fma_f32 %s, %s, %s, %s op_sel_hi:[1,0,1]' % (vr(A0, 2), vr(Gq + 8, 2), vr(C + 2, 2), vr(A0, 2)))
        a('v_add_f32 v%d, v%d, v%d' % (Wt, Wt, C + 3))
        a('v_pk_fma_f32 %s, %s, %s, %s op_sel:[0,1,0] op_sel_hi:[1,1,1]' % (vr(A0, 2), vr(Gq + 12, 2), vr(C + 2, 2), vr(A0, 2)))
        allred([Wt, A0, A1], 'add_f32', [C, C + 1, C + 2], bits=(3, 4, 5))
        a('v_rcp_f32 v%d, v%d' % (Wt, Wt))
        a('v_pk_mul_f32 %s, %s, %s op_sel_hi:[1,0]' % (vr(A0, 2), vr(A0, 2), vr(Wt, 2)))
        a('v_cvt_pk_bf16_f32 v%d, v%d, v%d' % (A0, A0, A1))
        for k in range(8):
            for c in range(2):
                a('v_dot2c_f32_bf16_dpp v%d, v%d, v%d row_newbcast:%d row_mask:0xf bank_mask:0xf' % (GO + c + 2 * (k & 1), A0, vWOp + 8 * c + k, k))
        a('v_pk_add_f32 %s, %s, %s' % (vr(GO, 2), vr(GO, 2), vr(GO + 2, 2)))

        def pretry():
            a.label('L_pretry')
            a('s_add_u32 s%d, s%d, 1' % (sCnt, sCnt))
            a('s_cmp_ge_u32 s%d, %d' % (sCnt, SPIN))
            a('s_cbranch_scc1 L_pcont')
            if pst:
                a('s_memrealtime %s' % sr(sST + 4, 2))
            if pm == 1:
                a('s_mov_b64 exec, vcc')
            for jj in range(4):
                if pm == 2:
                    a('v_cmp_ne_u32 vcc, 0, v%d' % (K + jj))
                    a('s_mov_b64 exec, vcc')
                a('buffer_load_dwordx4 %s, v%d, %s, s%d offen %s' % (vr(Gq + 4 * jj, 4), vPo, sr(rWS, 4), sGa + jj, pld))
                if pm == 2:
                    a('s_mov_b64 exec, -1')
            a('s_mov_b64 exec, -1')
            a('s_branch L_pg')
        ool.append(pretry)
    else:
        a.label('L_pg')
        if pst:
            a('s_memrealtime %s' % sr(sST + 4, 2))
        for jj in range(4):
            a('buffer_load_dwordx4 %s, v%d, %s, s%d offen %s' % (vr(Gq + 4 * jj, 4), vPo, sr(rWS, 4), sGa + jj, pld))
        for i in range(4):
            a('v_mov_b32 v%d, 0' % (GO + i))
        a.wait_vm0()
        if pst:
            a('s_memrealtime %s' % sr(sST + 6, 2))
        a('v_max3_f32 v%d, v%d, v%d, v%d' % (Mx, Gq + 2, Gq + 6, Gq + 10))
        a('v_max_f32 v%d, v%d, v%d' % (Mx, Mx, Gq + 14))
        for jj in range(2):
            xor3(K + jj, Gq + 4 * jj, Gq + 4 * jj + 1, Gq + 4 * jj + 2)
        a('v_max_f32_dpp v%d, v%d, v%d row_ror:8 row_mask:0xf bank_mask:0xf' % (Mx, Mx, Mx))
        a('v_mov_b32 v%d, v%d' % (C + 5, Mx))
        for jj in range(2, 4):
            xor3(K + jj, Gq + 4 * jj, Gq + 4 * jj + 1, Gq + 4 * jj + 2)
        a('v_permlane16_swap_b32 v%d, v%d' % (Mx, C + 5))
        a('v_max_f32 v%d, v%d, v%d' % (Mx, Mx, C + 5))
        a('v_mov_b32 v%d, v%d' % (C + 5, Mx))
        for jj in range(2):
            xor3(K + jj, K + jj, Gq + 4 * jj + 3, vTag)
        a('v_permlane32_swap_b32 v%d, v%d' % (Mx, C + 5))
        a('v_max_f32 v%d, v%d, v%d' % (Mx, Mx, C + 5))
        for jj in range(4):
            a('v_sub_f32 v%d, v%d, v%d' % (C + jj, Gq + 4 * jj + 2, Mx))
        for jj in range(4):
            a('v_exp_f32 v%d, v%d' % (C + jj, C + jj))
        a('v_mul_f32 v%d, v%d, v%d' % (A0, C, Gq))
        a('v_mul_f32 v%d, v%d, v%d' % (A1, C, Gq + 1))
        a('v_add_f32 v%d, v%d, v%d' % (Wt, C, C + 1))
        for jj in range(1, 4):
            a('v_fmac_f32 v%d, v%d, v%d' % (A0, C + jj, Gq + 4 * jj))
            a('v_fmac_f32 v%d, v%d, v%d' % (A1, C + jj, Gq + 4 * jj + 1))
            if jj > 1:
                a('v_add_f32 v%d, v%d, v%d' % (Wt, Wt, C + jj))
        allred([Wt, A0, A1], 'add_f32', [C, C + 1, C + 2], bits=(3, 4, 5))
        a('v_rcp_f32 v%d, v%d' % (Wt, Wt))
        for jj in range(2, 4):
            xor3(K + jj, K + jj, Gq + 4 * jj + 3, vTag)
        a('v_mul_f32 v%d, v%d, v%d' % (A0, A0, Wt))
        a('v_mul_f32 v%d, v%d, v%d' % (A1, A1, Wt))
        a('v_cvt_pk_bf16_f32 v%d, v%d, v%d' % (A0, A0, A1))
        a('v_or3_b32 v%d, v%d, v%d, v%d' % (K, K, K + 1, K + 2))
        a('v_or_b32 v%d, v%d, v%d' % (K, K, K + 3))
        for k in range(8):
            for c in range(2):
                a('v_dot2c_f32_bf16_dpp v%d, v%d, v%d row_newbcast:%d row_mask:0xf bank_mask:0xf' % (GO + c + 2 * (k & 1), A0, vWOp + 8 * c + k, k))
        a('v_cmp_ne_u32 vcc, 0, v%d' % K)
        a('s_add_u32 s%d, s%d, 1' % (sCnt, sCnt))
        a('v_add_f32 v%d, v%d, v%d' % (GO, GO, GO + 2))
        a('v_add_f32 v%d, v%d, v%d' % (GO + 1, GO + 1, GO + 3))
        a('s_cbranch_vccz L_pok')
        if sleep:
            a('s_sleep %d' % sleep)
        a('s_cmp_lt_u32 s%d, %d' % (sCnt, SPIN))
        a('s_cbranch_scc1 L_pg')
    a.label('L_pok')
    a('ds_write_b64 v%d, %s' % (vR2w, vr(GO, 2)))
    stamp()
    a.wait_lg()
    a('s_barrier')
    a('s_cmp_lg_u32 s%d, 0' % sW)
    a('s_cbranch_scc1 %s' % ('L_w1' if ow else 'L_clean' if clean else 'L_fin'))
    lt = [a('ds_read_b64 %s, v%d offset:%d' % (vr(R + 2 * w, 2), vR2w, w * 512)) for w in range(4)]
    a('s_mov_b32 s%d, 0' % sCnt)
    a.wait_lg(lt[1])
    a('v_pk_add_f32 %s, %s, %s' % (vr(R, 2), vr(R, 2), vr(R + 2, 2)))
    a.wait_lg(lt[3])
    a('v_pk_add_f32 %s, %s, %s' % (vr(R + 4, 2), vr(R + 4, 2), vr(R + 6, 2)))
    a('v_pk_add_f32 %s, %s, %s' % (vr(GO, 2), vr(R, 2), vr(R + 4, 2)))
    vOst, vOld = (vT16, vOo) if olay == 'prod' else (vOo, vT16)
    if oat:
        a('v_mov_b32 v%d, v%d' % (GO + 2, GO + 1))
        a('v_xor_b32 v%d, v%d, v%d' % (GO + 1, GO, vTag))
        a('v_xor_b32 v%d, v%d, v%d' % (GO + 3, GO + 2, vTag))
        a('buffer_atomic_swap_x2 %s, v%d, %s, s%d offen %s' % (vr(GO, 2), vOst, sr(rWS, 4), sGa + 4, oflag))
        a('buffer_atomic_swap_x2 %s, v%d, %s, s%d offen offset:8 %s' % (vr(GO + 2, 2), vOst, sr(rWS, 4), sGa + 4, oflag))
    else:
        xor3(GO + 2, GO, GO + 1, vTag)
        a('buffer_store_dwordx4 %s, v%d, %s, s%d offen %s' % (vr(GO, 4), vOst, sr(rWS, 4), sGa + 4, oflag))
    if clean == 1:
        a('buffer_store_dwordx4 %s, v%d, %s, s%d offen sc1' % (vr(GP, 4), vT16, sr(rWS, 4), sPub))
    stamp()
    if ow:
        a('s_branch L_fin')
        a.label('L_w1')
        a('s_cmp_lg_u32 s%d, %d' % (sW, ow))
        a('s_cbranch_scc1 L_fin')
        a('s_mov_b32 s%d, 0' % sCnt)
    a('s_lshl_b32 s%d, s%d, 2' % (sT1, sP))
    a('v_mov_b32 v%d, s%d' % (Gq + 8, sT1))
    def ofin(B):
        if oat:
            assert B == Gq
            xor3(C + 4, B, B + 1, vTag)
            xor3(C + 5, B + 2, B + 3, vTag)
            a('v_mov_b32 v%d, v%d' % (B + 1, B + 2))
            a('v_or_b32 v%d, v%d, v%d' % (C + 4, C + 4, C + 5))
            a('v_cmp_ne_u32 vcc, 0, v%d' % (C + 4))
        else:
            xor3(C + 4, B, B + 1, B + 2)
            a('v_cmp_ne_u32 vcc, v%d, v%d' % (C + 4, vTag))
        if B != Gq:
            for c in range(2):
                a('v_add_f32_dpp v%d, v%d, v%d row_ror:1 row_mask:0xf bank_mask:0xf' % (Gq + c, B + c, B + c))
            allred([Gq, Gq + 1], 'add_f32', [C, C + 1], bits=(1, 2, 3, 4, 5))
        else:
            allred([Gq, Gq + 1], 'add_f32', [C, C + 1])
        for c in range(2):
            rnd(Gq + c, Gq + c)
        for c in range(2):
            a('v_add_f32 v%d, v%d, v%d' % (Gq + c, Gq + c, vXu + c))
        for c in range(2):
            rnd(Gq + c, Gq + c)
        for c in range(2):
            a('v_add_f32 v%d, v%d, v%d' % (Gq + c, Gq + c, vY + c))
        a('v_cvt_pk_bf16_f32 v%d, v%d, v%d' % (Gq, Gq, Gq + 1))
    if om:
        B = vS
        a('buffer_load_dwordx4 %s, v%d, %s, s%d offen sc1' % (vr(B, 4), vOld, sr(rWS, 4), sGa + 5))
        a.label('L_og')
        a('s_waitcnt vmcnt(%d)' % (1 if om == 3 else 0))
        if pst:
            a('s_memrealtime %s' % sr(sST + 10, 2))
        xor3(C + 4, B, B + 1, B + 2)
        for c in range(2):
            a('v_add_f32_dpp v%d, v%d, v%d row_ror:1 row_mask:0xf bank_mask:0xf' % (Gq + c, B + c, B + c))
        a('v_cmp_ne_u32 vcc, v%d, v%d' % (C + 4, vTag))
        allred([Gq, Gq + 1], 'add_f32', [C, C + 1], bits=(1,))
        a('s_cbranch_vccnz L_oretry')
        a.label('L_ocont')
        allred([Gq, Gq + 1], 'add_f32', [C, C + 1], bits=(2, 3, 4, 5))
        for c in range(2):
            rnd(Gq + c, Gq + c)
        a('v_pk_add_f32 %s, %s, %s' % (vr(Gq, 2), vr(Gq, 2), vr(vXu, 2)))
        for c in range(2):
            rnd(Gq + c, Gq + c)
        a('v_pk_add_f32 %s, %s, %s' % (vr(Gq, 2), vr(Gq, 2), vr(vY, 2)))
        a('v_cvt_pk_bf16_f32 v%d, v%d, v%d' % (Gq, Gq, Gq + 1))

        def oretry():
            a.label('L_oretry')
            a('s_add_u32 s%d, s%d, 1' % (sCnt, sCnt))
            a('s_cmp_ge_u32 s%d, %d' % (sCnt, SPIN))
            a('s_cbranch_scc1 L_ocont')
            if pst:
                a('s_memrealtime %s' % sr(sST + 8, 2))
            if om in (1, 3):
                a('s_mov_b64 exec, vcc')
            if sleep:
                a('s_sleep %d' % sleep)
            a('buffer_load_dwordx4 %s, v%d, %s, s%d offen sc1' % (vr(B, 4), vOld, sr(rWS, 4), sGa + 5))
            a('s_mov_b64 exec, -1')
            a('s_branch L_og')
        ool.append(oretry)
    elif opoll == 1:
        a.label('L_og')
        if pst:
            a('s_memrealtime %s' % sr(sST + 8, 2))
        a('buffer_load_dwordx4 %s, v%d, %s, s%d offen sc1' % (vr(Gq, 4), vOld, sr(rWS, 4), sGa + 5))
        a.wait_vm0()
        if pst:
            a('s_memrealtime %s' % sr(sST + 10, 2))
        ofin(Gq)
        a('s_add_u32 s%d, s%d, 1' % (sCnt, sCnt))
        a('s_cbranch_vccz L_ook')
        if sleep:
            a('s_sleep %d' % sleep)
        a('s_cmp_lt_u32 s%d, %d' % (sCnt, SPIN))
        a('s_cbranch_scc1 L_og')
    else:
        OB = vS
        assert opoll * 4 <= 64
        for k in range(1, opoll):
            a('v_mov_b32 v%d, 0' % (OB + 4 * k))
            a('v_mov_b32 v%d, 0' % (OB + 4 * k + 1))
            a('v_not_b32 v%d, v%d' % (OB + 4 * k + 2, vTag))
        a.label('L_og')
        for k in range(opoll):
            a('buffer_load_dwordx4 %s, v%d, %s, s%d offen sc1' % (vr(OB + 4 * k, 4), vOld, sr(rWS, 4), sGa + 5))
            a('s_waitcnt vmcnt(%d)' % (opoll - 1))
            ofin(OB + 4 * ((k + 1) % opoll))
            a('s_cbranch_vccz L_ook')
        a('s_add_u32 s%d, s%d, 1' % (sCnt, sCnt))
        a('s_cmp_lt_u32 s%d, %d' % (sCnt, SPIN))
        a('s_cbranch_scc1 L_og')
    a.label('L_ook')
    a('s_mov_b64 exec, 1')
    a('global_store_dword v%d, v%d, %s %s' % (Gq + 8, Gq, sr(pOUT, 2), oflg))
    a('s_cmp_lg_u32 s2, 0')
    a('s_cbranch_scc1 L_fin')
    a('buffer_store_dword v%d, off, %s, 0 %s' % (vTag, sr(rWS, 4), tflag))
    a.label('L_fin')
    if dbg:
        a('s_memrealtime s[78:79]')
        a.wait_lg()
        a('s_mov_b64 exec, 1')
        a('v_mov_b32 v%d, 0' % vS)
        for i in range(nst[0]):
            if i == 10:
                continue
            a('v_mov_b32 v%d, s%d' % (vS + 1, sST + 2 * i))
            a('global_atomic_umax v%d, v%d, s[26:27] offset:%d' % (vS, vS + 1, 4 * i))
        a('v_mov_b32 v%d, s78' % (vS + 1))
        a('global_atomic_umax v%d, v%d, s[26:27] offset:%d' % (vS, vS + 1, 4 * 11))
        for k, i in enumerate((0, 2, 7)):
            a('s_not_b32 s78, s%d' % (sST + 2 * i))
            a('v_mov_b32 v%d, s78' % (vS + 1))
            a('global_atomic_umax v%d, v%d, s[26:27] offset:%d' % (vS, vS + 1, 4 * (12 + k)))
    elif stamps:
        a('s_memrealtime s[78:79]')
        a.wait_lg()
        a('s_waitcnt vmcnt(0)')
        a('s_mov_b64 exec, 1')
        a('s_getreg_b32 s%d, hwreg(HW_REG_XCC_ID)' % sT2)
        for i in range(11):
            a('v_mov_b32 v%d, s%d' % (vS + i, sST + 2 * i if i < nst[0] else sST))
        a('v_mov_b32 v%d, s78' % (vS + 11))
        a('v_mov_b32 v%d, s%d' % (vS + 12, sCnt))
        a('v_mov_b32 v%d, s%d' % (vS + 13, sT2))
        a('v_mov_b32 v%d, s%d' % (vS + 14, sMode))
        a('v_mov_b32 v%d, s15' % (vS + 15))
        a('s_lshl_b32 s%d, s2, 2' % sT1)
        a('s_add_u32 s%d, s%d, s%d' % (sT1, sT1, sW))
        a('s_lshl_b32 s%d, s%d, 6' % (sT1, sT1))
        a('s_add_u32 s%d, s%d, 0x%x' % (sT1, sT1, WS_STAMP))
        for i in range(4):
            a('buffer_store_dwordx4 %s, off, %s, s%d offset:%d' % (vr(vS + 4 * i, 4), sr(rWS, 4), sT1, 16 * i))
    a('s_endpgm')
    a.label('L_qretry')
    a.cond += 1
    a('s_mov_b32 s%d, 0' % sCnt)
    a.label('L_qr')
    q_loads()
    a('s_waitcnt vmcnt(0)')
    q_check()
    a('s_cbranch_vccz L_qok')
    a('s_add_u32 s%d, s%d, 1' % (sCnt, sCnt))
    a('s_cmp_lt_u32 s%d, %d' % (sCnt, SPIN))
    a('s_cbranch_scc1 L_qr')
    a('s_branch L_qok')
    if clean:
        a.label('L_clean')
        if clean == 1:
            a('buffer_store_dwordx4 %s, v%d, %s, s%d offen sc1' % (vr(GP, 4), vT16, sr(rWS, 4), sPub))
        else:
            a('s_cmp_lg_u32 s%d, 1' % sW)
            a('s_cbranch_scc1 L_fin')
            if clean == 2:
                a('s_cmp_lg_u32 s%d, 0' % sC)
                a('s_cbranch_scc1 L_fin')
            a('buffer_wbl2 sc1')
        a('s_branch L_fin')
    for f in ool:
        f()
    a.label('L_pslow')
    a('buffer_store_dwordx4 %s, v%d, %s, s%d offen sc1' % (vr(GP, 4), vT16, sr(rWS, 4), sPub))
    a('s_branch L_pback')
    a.cond -= 1
    a.label('L_codeend')
    a('s_endpgm')
    a.raw('.section .rodata,"a"')
    a.raw('.p2align 6')
    a.raw('.amdhsa_kernel ' + KN)
    for l in ('.amdhsa_next_free_vgpr 512', '.amdhsa_next_free_sgpr 102', '.amdhsa_accum_offset 256',
              '.amdhsa_group_segment_fixed_size 0', '.amdhsa_kernarg_size 104', '.amdhsa_user_sgpr_count 2',
              '.amdhsa_user_sgpr_kernarg_segment_ptr 1', '.amdhsa_system_sgpr_workgroup_id_x 1',
              '.amdhsa_float_denorm_mode_32 3'):
        a.raw('  ' + l)
    a.raw('.end_amdhsa_kernel')
    if verbose:
        print('late', late, 'N', N, 'vgpr', va.next, file=sys.stderr)
    return a.text()


if __name__ == '__main__':
    out = sys.argv[1]
    kw = eval('dict(%s)' % (sys.argv[2] if len(sys.argv) > 2 else ''))
    open(out, 'w').write(gen(verbose=True, **kw))
```

```python
import sys, math, struct
from asmlib import *

KN = "parallel_sum__gqa_block_cached__mixer_token_mlp__decode_kernel"
REF = "parallel_sum__gqa_block_cached__mixer_token_mlp__decode.s.ref"


def f32(x):
    return '0x%08x' % struct.unpack('<I', struct.pack('<f', x))[0]


WS_EPOCH = 0
WS_BRD = 0x8000
WS_Q = 0x10000
WS_PART = 0x100000
WS_OUTP = 0x200000
WS_STAMP = 0x300000
WS_SIZE = 0x400000
L_K = 0
L_WQ = 131072
L_RED = L_WQ
L_RED2 = L_RED + 9216
L_XN = 147456
L_QL = L_XN + 1024
L_ML = L_QL + 1024
L_YP = L_ML + 128
L_XF = L_YP + 32
L_CT = L_XF + 32
LDS_BYTES = 150016
OST = 1152
SPIN = 4000
LOG2E = 1.4426950408889634


def gen(W0=2, W=2, sub=1, mapping='mod', stamps=False, nv_pre=4, qpos='V0b', d1=1, d2=1, wo_pos='K3b', prefetch=True,
        tailpf=True, sleep=0, verbose=False, PST=4096, pflag='', pld='sc1', skip=(), dbg=False, clean=0, force=None, wqskew=0, gran=4, bal=0, Wlo=3, pub=2, chk=2, theta=0, bstart=None, bend=None, thrmask=None,
        pdpos=None, olay='prod', CST=1024, opoll=1, pexit=0, ts=None,
        ctl=0, NC=16, CP=2, Wl=(1,), dth=(2,), cstart=None, cend=None, CSTR=256, cforce=None, cflag='sc0 sc1', WSB=None, cpts=None, clat=None, cop='add', wsch=None, qflag='sc1', qkpair=0, warm=0, warmpos=None, vwarm=0, OUTP=None, qld='sc1', tld='sc1', pst=0, oat=0, oflag='sc1', pm=0, om=0, ow=0, red2=0, tflag='sc1', oflg='', polK=0, polV=0, wol=0, xpos=0, wwarm=None, wqa=None, wqe=1, pvo=None, exo=None, two=None, lnp=0, pfpos=0, dbgpc=0, aln=0, skp=0):
    a = Asm()
    WS_OUTP = OUTP or globals()['WS_OUTP']
    hdr = [l for l in open(REF).read().split('\n') if l.startswith(';') and '@launch' not in l]
    for l in hdr:
        a.raw(l)
    a.raw('; @launch grid=(256,1,1) block=(256,1,1) lds=%d' % LDS_BYTES)
    a.raw('.amdgcn_target "amdgcn-amd-amdhsa--gfx950"')
    a.raw('.text')
    a.raw('.globl ' + KN)
    if aln:
        a.raw('.p2align %d' % aln)
    if skp:
        a.raw('.fill %d, 4, 0xbf800000' % (skp // 4))
    a.raw('.p2align 8')
    a.raw('.type %s,@function' % KN)
    a.label(KN)

    sW = 3
    pX, pK, pV, pWQ, pWO, pW1, pB1, pW2, pB2, pOUT, pWS = 4, 6, 8, 10, 12, 16, 18, 20, 22, 24, 28
    rK, rV, rWQ, rWO, rWS, rW1, rB1, rW2 = 32, 36, 40, 44, 48, 52, 56, 60
    sG, sC, sP, sJ = 64, 65, 66, 67
    sKL = 68
    sT0, sT1, sT2 = 69, 70, 71
    sOff = 72
    sCnt = 73
    sQg, sPub = 74, 75
    sPC = 76
    sXcc, sMode = 30, 31
    sC0, sC1 = 78, 79
    sST = 80
    sThr = 14
    sCA, sCD = 16, 18
    sTagS = 14
    nst = [0]

    def stamp(mid=False):
        if mid and ts:
            return
        if stamps:
            assert nst[0] < 11
            a('s_memrealtime %s' % sr(sST + 2 * nst[0], 2))
            nst[0] += 1

    va = VAlloc(1)
    vL = va(); vTag = va(); vT16 = va(); vL4 = va()
    vKo = va(4); vKa = va(4); vVo = va(2); vSel = va(4)
    vM = va(); vLs = va(); vY = va(2); vXp = va(); vB2 = va(); vJunk = va(); vTmp = va(8, 4)
    vZ = va(32, 4)
    vQ = va(32, 4)
    vKf = va(32, 4)
    vS = va(64, 4)
    vAS = va(8, 4)
    vO = va(8, 4)
    vWt = va(8, 4)
    vWOr = va(16, 4)
    vBv = va(4, 4); vBst = vBv + 1; vBld = vBv + 2; vBt = vBv + 3; vBr = va(2)
    vX = vZ; vXf = vZ + 4; vW1 = vZ + 12; vB1 = vZ + 16; vW2 = vZ + 20; vH = vZ + 24
    vWOp = vZ
    T = vKf

    def rnd(d, s):
        a('v_cvt_pk_bf16_f32 v%d, 0, v%d' % (d, s))

    def allred(regs, op, tmps, bits=(0, 1, 2, 3, 4, 5)):
        for b in bits:
            if b < 4:
                for r in regs:
                    a('v_%s_dpp v%d, v%d, v%d row_ror:%d row_mask:0xf bank_mask:0xf' % (op, r, r, r, 1 << b))
            else:
                for r, t in zip(regs, tmps):
                    a('v_mov_b32 v%d, v%d' % (t, r))
                for r, t in zip(regs, tmps):
                    a('v_permlane%d_swap_b32 v%d, v%d' % (16 if b == 4 else 32, r, t))
                for r, t in zip(regs, tmps):
                    a('v_%s v%d, v%d, v%d' % (op, r, r, t))

    def xor3(d, x, y, z):
        a('v_bitop3_b32 v%d, v%d, v%d, v%d bitop3:0x96' % (d, x, y, z))

    a('s_cmp_lt_u32 s2, 256')
    a('s_cbranch_scc1 L_go')
    a('s_endpgm')
    a.label('L_go')
    stamp()
    a('s_load_dwordx16 s[4:19], s[0:1], 0')
    a('s_load_dwordx8 s[20:27], s[0:1], 64')
    a('s_load_dwordx2 s[28:29], s[0:1], 96')
    a('v_lshrrev_b32 v%d, 6, v0' % vTmp)
    a('v_and_b32 v%d, 63, v0' % vL)
    a('v_readfirstlane_b32 s%d, v%d' % (sW, vTmp))
    a('s_getpc_b64 %s' % sr(sPC, 2))
    a.label('L_pc')
    if prefetch:
        a('s_lshr_b32 s%d, s2, 3' % sT0)
        a('s_and_b32 s%d, s%d, 3' % (sT0, sT0))
        a('s_lshl_b32 s%d, s%d, 2' % (sT0, sT0))
        a('s_add_u32 s%d, s%d, s%d' % (sT0, sT0, sW))
        a('s_lshl_b32 s%d, s%d, 10' % (sT0, sT0))
        a('v_and_b32 v%d, 7, v0' % (vTmp + 1))
        a('v_lshlrev_b32 v%d, 7, v%d' % (vTmp + 1, vTmp + 1))
        a('v_add_u32 v%d, s%d, v%d' % (vTmp + 1, sT0, vTmp + 1))
        a('v_min_u32 v%d, L_codeend-L_pc-4, v%d' % (vTmp + 1, vTmp + 1))
        if not pfpos:
            a('global_load_dword v%d, v%d, %s' % (vJunk, vTmp + 1, sr(sPC, 2)))
    a('s_and_b32 s%d, s2, 7' % sG)
    a('s_lshr_b32 s%d, s2, 3' % sC)
    a('s_lshl_b32 s%d, s%d, 5' % (sP, sG))
    a('s_add_u32 s%d, s%d, s%d' % (sP, sP, sC))
    a('s_lshr_b32 s%d, s%d, 3' % (sT1, sC))
    a('s_lshl_b32 s%d, s%d, 2' % (sT1, sT1))
    a('s_add_u32 s%d, s%d, s%d' % (sT1, sT1, sW))
    a('s_lshl_b32 s%d, s%d, 18' % (sT1, sT1))
    sG4, sWqo = sCnt, sMode
    WS_XC = WS_BRD
    if wqa:
        assert mapping == 'mod' and sorted(sum(wqa, [])) == list(range(8)) and not bal
        NB = max(len(l) for l in wqa)
        TB = [sum((l[b] if b < len(l) else 15) << (4 * x) for x, l in enumerate(wqa)) for b in range(NB)]
        a('s_lshl_b32 s%d, s%d, 2' % (sG4, sG))
        a('s_and_b32 s%d, s%d, 7' % (sT2, sC))
        a('s_lshl_b32 s%d, s%d, 7' % (sT2, sT2))
        a('s_add_u32 s%d, s%d, s%d' % (sWqo, sT1, sT2))
        a('s_lshr_b32 s%d, 0x%x, s%d' % (sOff, TB[0], sG4))
        a('s_and_b32 s%d, s%d, 15' % (sOff, sOff))
        a('s_lshl_b32 s%d, s%d, 10' % (sOff, sOff))
        a('s_add_u32 s%d, s%d, s%d' % (sT1, sWqo, sOff))
    else:
        a('s_lshl_b32 s%d, s%d, 10' % (sT2, sG))
        a('s_add_u32 s%d, s%d, s%d' % (sT1, sT1, sT2))
        a('s_and_b32 s%d, s%d, 7' % (sT2, sC))
        a('s_lshl_b32 s%d, s%d, 7' % (sT2, sT2))
        a('s_add_u32 s%d, s%d, s%d' % (sT1, sT1, sT2))

    def hb(b, d):
        a('s_lshr_b32 s%d, 0x%x, s%d' % (d, TB[b], sG4))
        a('s_and_b32 s%d, s%d, 15' % (d, d))
        a('s_cmp_eq_u32 s%d, 15' % d)
    sKb = sC
    if mapping == 'mod':
        a('s_mov_b32 s%d, s%d' % (sJ, sP))
    elif mapping == 'stk':
        a('s_lshr_b32 s%d, s2, 6' % sJ)
        a('s_and_b32 s%d, s%d, 7' % (sT0, sC))
        a('s_lshr_b32 s%d, s2, 2' % sKb)
        a('s_xor_b32 s%d, s%d, s%d' % (sKb, sKb, sJ))
        a('s_xor_b32 s%d, s%d, %d' % (sKb, sKb, polK))
        a('s_and_b32 s%d, s%d, 1' % (sKb, sKb))
        a('s_lshl_b32 s%d, s%d, 13' % (sKb, sKb))
        a('s_and_b32 s%d, s2, 1' % sT2)
        a('s_lshl_b32 s%d, s%d, 14' % (sT2, sT2))
        a('s_or_b32 s%d, s%d, s%d' % (sKb, sKb, sT2))
        a('s_and_b32 s%d, s2, 2' % sT2)
        a('s_lshl_b32 s%d, s%d, 11' % (sT2, sT2))
        a('s_or_b32 s%d, s%d, s%d' % (sKb, sKb, sT2))
        a('s_lshl_b32 s%d, s%d, 3' % (sJ, sJ))
        a('s_add_u32 s%d, s%d, s%d' % (sJ, sJ, sG))
        a('s_mov_b32 s%d, s%d' % (sG, sT0))
        a('s_lshl_b32 s%d, s%d, 5' % (sT2, sG))
        a('s_add_u32 s%d, s%d, s%d' % (sJ, sJ, sT2))
    else:
        a('s_lshr_b32 s%d, s2, 5' % sG)
        a('s_and_b32 s%d, s2, 31' % sC)
        a('s_mov_b32 s%d, s2' % sJ)
    i15, ks, bsw, vWq, l16, zero = vTmp + 2, vTmp + 3, vTmp + 4, vTmp + 5, vTmp + 6, vTmp + 7
    a('v_and_b32 v%d, 15, v%d' % (i15, vL))
    a('v_lshrrev_b32 v%d, 4, v%d' % (ks, vL))
    a('v_xor_b32 v%d, v%d, v%d' % (bsw, i15, ks))
    a('v_lshlrev_b32 v%d, 4, v%d' % (bsw, bsw))
    a('v_lshl_add_u32 v%d, v%d, 8, v%d' % (vKo, ks, bsw))
    for j in range(1, 4):
        a('v_xor_b32 v%d, 0x%x, v%d' % (vKo + j, j << 6, vKo))
    a('v_lshrrev_b32 v%d, 3, v%d' % (vWq, vL))
    a('v_lshlrev_b32 v%d, 13, v%d' % (vWq, vWq))
    a('v_and_b32 v%d, 7, v%d' % (l16, vL))
    a('v_lshl_add_u32 v%d, v%d, 4, v%d' % (vWq, l16, vWq))
    a('v_lshlrev_b32 v%d, 4, v%d' % (l16, vL))
    a('v_mov_b32 v%d, 0' % zero)
    a('s_lshl_b32 s%d, s%d, 18' % (sT0, sJ))
    a('s_lshl_b32 s%d, s%d, %d' % (sT2, sW, 12 if gran == 4 else 13))
    a('s_add_u32 s%d, s%d, s%d' % (sT0, sT0, sT2))
    KVN = 0x3d000 if gran == 4 else 0x3a000
    if mapping == 'stk':
        KVN = 0x1e8000
        a('s_lshr_b32 s%d, s%d, 3' % (sT0, sJ))
        a('s_lshl_b32 s%d, s%d, 21' % (sT0, sT0))
        a('s_lshl_b32 s%d, s%d, 15' % (sT2, sW))
        a('s_add_u32 s%d, s%d, s%d' % (sT0, sT0, sT2))

    def setoff(tl, half, isv):
        if mapping == 'stk':
            u = 2 * tl + half
            xm = (((u >> 2) & 1) << 14) | ((u >> 3) << 12) | (((polK ^ polV) << 13) if isv else 0)
            a('s_xor_b32 s%d, s%d, 0x%x' % (sOff, sKb, xm + u * 131072))
        else:
            a('s_mov_b32 s%d, 0x%x' % (sOff, uoff(tl, half)))
    uoff = (lambda tl, half: (2 * tl + half) * 16384) if gran == 4 else (lambda tl, half: tl * 32768 + half * 4096)
    a('s_lshl_b32 s%d, s%d, 15' % (sKL, sW))
    a('s_lshl_b32 s%d, s%d, 12' % (sT2, sW))
    a('s_add_u32 m0, s%d, %d' % (sT2, L_WQ))
    a('s_mov_b32 s%d, 0x%x' % (rWQ + 2, 31 * 8192 + 128))
    a('s_mov_b32 s%d, 0x20000' % (rWQ + 3))
    a('s_mov_b32 s%d, 0x%x' % (rK + 2, KVN))
    a('s_mov_b32 s%d, 0x20000' % (rK + 3))
    a.wait_lg()
    stamp()
    xtok = {}
    def xload():
        xtok['x'] = a('global_load_dwordx4 %s, v%d, %s' % (vr(vX, 4), l16, sr(pX, 2)))
    if not xpos:
        xload()
    if tld == 's':
        a('s_load_dword s%d, %s, 0' % (sTagS, sr(pWS, 2)))
        tE = None
    else:
        tE = a('global_load_dword v%d, v%d, %s %s' % (vTag, zero, sr(pWS, 2), tld))
    a('s_add_u32 s%d, s%d, s%d' % (rWQ, pWQ, sT1))
    a('s_addc_u32 s%d, s%d, 0' % (rWQ + 1, pWQ + 1))
    a('s_add_u32 s%d, s%d, s%d' % (rK, pK, sT0))
    a('s_addc_u32 s%d, s%d, 0' % (rK + 1, pK + 1))

    vtok = {}
    tok = {}

    def parts(s):
        n = 4 // sub
        return range(s * n, (s + 1) * n)

    def issue(name, s):
        if name in skip:
            t = a('global_load_dword v%d, v%d, %s' % (vJunk, vL, sr(pWQ, 2)))
        elif name == 'WQ' and wqskew:
            a('s_and_b32 s%d, s2, 7' % sOff)
            a('s_lshl_b32 s%d, 1, s%d' % (sOff, sOff))
            a('s_and_b32 s%d, s%d, %d' % (sMode, sOff, wqskew))
            a('s_cbranch_scc0 L_nowq')
            a.cond += 1
            a('s_mov_b32 s%d, 0x%x' % (rWQ + 2, 31 * 8192 + 128 + 1024))
            for rep in range(2):
                for j in parts(s):
                    a('s_mov_b32 s%d, 0x%x' % (sOff, j * (65536 - 1024) + rep * 1024))
                    a('buffer_load_dwordx4 v%d, %s, %s offen offset:%d nt lds' % (vWq, sr(rWQ, 4), 's%d' % sOff, j * 1024))
            a.cond -= 1
            a.label('L_nowq')
            t = a('global_load_dword v%d, v%d, %s' % (vJunk, vL, sr(pX, 2)))
        elif name == 'WQ' and wqa:
            def blk():
                for j in range(4):
                    if j:
                        a('s_mov_b32 s%d, 0x%x' % (sOff, j * (65536 - 1024)))
                    t = a('buffer_load_dwordx4 v%d, %s, %s offen offset:%d nt lds' % (vWq, sr(rWQ, 4), 's%d' % sOff if j else '0', j * 1024))
                return t
            a('s_cmp_lg_u32 s%d, 0x%x' % (sOff, 15 << 10))
            a('s_cbranch_scc1 L_a0')
            a.cond += 1
            if wqe:
                issue('K0b', -1)
            else:
                for j in range(4):
                    a('global_load_dword v%d, v%d, %s' % (vJunk, zero, sr(pX, 2)))
            a.cond -= 1
            a('s_branch L_a1')
            a.label('L_a0')
            t = blk()
            a.cond += 1
            for b in range(1, NB):
                hb(b, sT2)
                a('s_cbranch_scc1 L_a1')
                a('s_lshl_b32 s%d, s%d, 10' % (sT2, sT2))
                a('s_add_u32 s%d, s%d, s%d' % (sT2, sT2, sWqo))
                a('s_add_u32 s%d, s%d, s%d' % (rWQ, pWQ, sT2))
                a('s_addc_u32 s%d, s%d, 0' % (rWQ + 1, pWQ + 1))
                a('s_add_u32 m0, s%d, %d' % (sKL, 24576 + (b - 1) * 4096))
                blk()
            a.cond -= 1
            a.label('L_a1')
        elif name == 'K0b' and wqa and wqe and s >= 0:
            hb(0, sT2)
            a('s_cbranch_scc0 L_b0')
            a.cond += 1
            for j in range(4):
                a('global_load_dword v%d, v%d, %s' % (vJunk, zero, sr(pX, 2)))
            a.cond -= 1
            a('s_branch L_b1')
            a.label('L_b0')
            t = issue('K0b', -1)
            a.label('L_b1')
        elif name == 'WQ':
            for j in parts(s):
                if j:
                    a('s_mov_b32 s%d, 0x%x' % (sOff, j * (65536 - 1024)))
                t = a('buffer_load_dwordx4 v%d, %s, %s offen offset:%d nt lds' % (vWq, sr(rWQ, 4), 's%d' % sOff if j else '0', j * 1024))
        elif name == 'WO':
            for q in (parts(s) if isinstance(s, int) else s):
                a('s_mov_b32 s%d, %d' % (sOff, q * 4096))
                for r in range(4):
                    t = a('buffer_load_dword v%d, v%d, %s, s%d offen offset:%d nt' % (vWOr + q * 4 + r, vL4, sr(rWO, 4), sOff, r * 1024))
        elif name[0] == 'K':
            tl, half = int(name[1]), 'ab'.index(name[2])
            a('s_add_u32 m0, s%d, %d' % (sKL, (tl % 4) * 8192 + half * 4096))
            setoff(tl, half, 0)
            for j in parts(max(s, 0)):
                t = a('buffer_load_dwordx4 v%d, %s, s%d offen offset:%d nt lds' % (vKo + j, sr(rK, 4), sOff, j * 1024))
        else:
            tl, half = int(name[1]), 'ab'.index(name[2])
            setoff(tl, half, 1)
            for r in parts(s):
                t = a('buffer_load_dwordx4 %s, v%d, %s, s%d offen offset:%d nt' % (ar(tl * 32 + half * 16 + r * 4, 4), vVo, sr(rV, 4), sOff, r * 256))
                vtok[(tl, half, r)] = t
        tok[name] = t
        return t

    names = ['WQ']
    for t in range(4):
        names += ['K%da' % t, 'K%db' % t]
    for t in range(nv_pre):
        names += ['V%da' % t, 'V%db' % t]
    for t in range(4, 8):
        names += ['K%da' % t, 'K%db' % t]
    for t in range(nv_pre, 8):
        names += ['V%da' % t, 'V%db' % t]
    if not wol:
        names.insert(names.index(wo_pos) + 1, 'WO')
    seq = [(n, s) for n in names for s in range(sub)]
    Wn = W
    last = {n: i for i, (n, s) in enumerate(seq)}
    first = {}
    for i, (n, s) in enumerate(seq):
        first.setdefault(n, i)
    N = len(seq)

    def Wf(i):
        if not wsch:
            return Wn
        u = i / sub
        if u <= wsch[0][0]:
            return wsch[0][1]
        for (u0, w0), (u1, w1) in zip(wsch, wsch[1:]):
            if u <= u1:
                return int(round(w0 + (w1 - w0) * (u - u0) / (u1 - u0)))
        return wsch[-1][1]

    def rdy(j):
        i = j
        while i - Wf(i) < j:
            i += 1
        return i

    def ready(n):
        return rdy(last[n])

    vTr, vXb, vXw, vQw, vQf = vWt, vWt + 1, vWt + 2, vWt + 3, vWt + 4
    small = {}

    def setup():
        a('s_getreg_b32 s%d, hwreg(HW_REG_XCC_ID, 0, 4)' % sXcc)
        a('s_mov_b32 s%d, 0x%x' % (rV + 2, KVN))
        a('s_mov_b32 s%d, 0x20000' % (rV + 3))
        a('s_add_u32 s%d, s%d, s%d' % (rV, pV, sT0))
        a('s_addc_u32 s%d, s%d, 0' % (rV + 1, pV + 1))
        a('v_lshlrev_b32 v%d, 4, v0' % vT16)
        a('v_lshlrev_b32 v%d, 2, v%d' % (vL4, vL))
        for r, p in ((rW1, pW1), (rB1, pB1), (rW2, pW2)):
            a('s_mov_b32 s%d, s%d' % (r, p))
            a('s_mov_b32 s%d, s%d' % (r + 1, p + 1))
            a('s_mov_b32 s%d, 3584' % (r + 2))
            a('s_mov_b32 s%d, 0x20000' % (r + 3))
        a('s_lshl_b32 s%d, s%d, 2' % (sT1, sP))
        a('v_mov_b32 v%d, s%d' % (vXp, sT1))
        for r, v in ((rW1, vW1), (rB1, vB1), (rW2, vW2)):
            a('buffer_load_dwordx4 %s, v%d, %s, 0 offen' % (vr(v, 4), vT16, sr(r, 4)))
        a('global_load_ushort v%d, v%d, %s' % (vB2, zero, sr(pB2, 2)))
        small['t'] = a('global_load_dword v%d, v%d, %s' % (vXp, vXp, sr(pX, 2)))
        a('s_mov_b32 s%d, s%d' % (rWS, pWS))
        a('s_mov_b32 s%d, s%d' % (rWS + 1, pWS + 1))
        a('s_mov_b32 s%d, 0x%x' % (rWS + 2, WS_SIZE))
        a('s_mov_b32 s%d, 0x20000' % (rWS + 3))
        a('s_and_b32 s%d, s%d, 0xfc' % (sT1, sJ))
        a('s_add_u32 s%d, s%d, s%d' % (sT1, sT1, sW))
        a('s_lshl_b32 s%d, s%d, 14' % (sT1, sT1))
        a('s_and_b32 s%d, s%d, 3' % (sT2, sJ))
        a('s_lshl_b32 s%d, s%d, 8' % (sT2, sT2))
        a('s_add_u32 s%d, s%d, s%d' % (sT1, sT1, sT2))
        a('s_add_u32 s%d, s%d, s%d' % (rWO, pWO, sT1))
        a('s_addc_u32 s%d, s%d, 0' % (rWO + 1, pWO + 1))
        a('s_mov_b32 s%d, %d' % (rWO + 2, 15 * 1024 + 256))
        a('s_mov_b32 s%d, 0x20000' % (rWO + 3))
        a('v_lshlrev_b32 v%d, 4, v%d' % (vVo, i15))
        a('v_lshl_add_u32 v%d, v%d, 10, v%d' % (vVo, ks, vVo))
        a('v_lshl_add_u32 v%d, v%d, 8, v%d' % (vKa, i15, bsw))
        a('v_add_u32 v%d, s%d, v%d' % (vKa, sKL, vKa))
        for j in range(1, 4):
            a('v_xor_b32 v%d, 0x%x, v%d' % (vKa + j, j << 6, vKa))
        e = vTmp
        a('v_and_b32 v%d, 3, v%d' % (e, vL))
        a('v_bfe_u32 v%d, v%d, 2, 2' % (vTmp + 1, vL))
        a('s_lshl_b32 s%d, s%d, 5' % (sT1, sW))
        a('s_add_u32 s%d, s%d, %d' % (sT1, sT1, L_WQ))
        a('v_lshlrev_b32 v%d, 3, v%d' % (vTr, e))
        a('v_lshl_add_u32 v%d, v%d, 7, v%d' % (vTr, vTmp + 1, vTr))
        a('v_lshl_add_u32 v%d, v%d, 10, v%d' % (vTr, ks, vTr))
        a('v_add_u32 v%d, s%d, v%d' % (vTr, sT1, vTr))
        a('s_lshr_b32 s%d, s%d, 3' % (sT1, sP))
        a('s_and_b32 s%d, s%d, 3' % (sT1, sT1))
        a('s_lshl_b32 s%d, s%d, 8' % (sT2, sT1))
        a('s_add_u32 s%d, s%d, %d' % (sT2, sT2, L_XN))
        a('v_lshlrev_b32 v%d, 4, v%d' % (vXb, ks))
        a('v_add_u32 v%d, s%d, v%d' % (vXb, sT2, vXb))
        a('v_add_u32 v%d, %d, v%d' % (vXw, L_XN, l16))
        if wqa:
            a('s_lshl_b32 s%d, s%d, 12' % (sPub, sT1))
        else:
            a('s_lshr_b32 s%d, s%d, 5' % (sT2, sP))
            a('s_lshl_b32 s%d, s%d, 2' % (sT2, sT2))
            a('s_add_u32 s%d, s%d, s%d' % (sT2, sT2, sT1))
            a('s_lshl_b32 s%d, s%d, 12' % (sPub, sT2))
        a('s_and_b32 s%d, s%d, 7' % (sT2, sP))
        a('s_lshl_b32 s%d, s%d, 2' % (sT2, sT2))
        a('s_add_u32 s%d, s%d, s%d' % (sT2, sT2, sW))
        a('s_lshl_b32 s%d, s%d, 7' % (sT2, sT2))
        a('s_add_u32 s%d, s%d, s%d' % (sPub, sPub, sT2))
        a('s_add_u32 s%d, s%d, 0x%x' % (sPub, sPub, WS_Q))
        a('v_and_b32 v%d, 1, v%d' % (vQw, vL))
        a('v_lshl_add_u32 v%d, v%d, 1, v%d' % (vQw, ks, vQw))
        a('v_lshlrev_b32 v%d, 4, v%d' % (vQw, vQw))
        a('v_lshlrev_b32 v%d, 8, v%d' % (vQf, vTmp + 1))
        a('v_lshl_add_u32 v%d, v%d, 4, v%d' % (vQf, ks, vQf))
        a('v_add_u32 v%d, %d, v%d' % (vQf, L_QL, vQf))
        a('s_lshl_b32 s%d, s%d, 14' % (sQg, sG))
        a('s_add_u32 s%d, s%d, 0x%x' % (sQg, sQg, WS_Q))
        if bal:
            a('s_lshl_b32 s%d, s%d, 10' % (sT1, sC))
            a('s_add_u32 s%d, s%d, 0x%x' % (sT1, sT1, WS_BRD))
            a('v_and_b32 v%d, 7, v%d' % (vBld, vL))
            a('v_lshlrev_b32 v%d, 7, v%d' % (vBld, vBld))
            a('v_add_u32 v%d, s%d, v%d' % (vBld, sT1, vBld))
            a('s_lshl_b32 s%d, s%d, 7' % (sT2, sG))
            a('s_add_u32 s%d, s%d, s%d' % (sT1, sT1, sT2))
            a('v_add_u32 v%d, s%d, v%d' % (vBst, sT1, vT16))
            a('v_mov_b32 v%d, 0x7ffffff0' % vBv)
            a('v_cmp_gt_u32 vcc, 8, v0')
            a('v_cndmask_b32 v%d, v%d, v%d, vcc' % (vBst, vBv, vBst))
        if ctl in (2, 3):
            if ctl == 2:
                a('s_lshl_b32 s%d, s%d, 2' % (sT1, sC))
                a('s_add_u32 s%d, s%d, s%d' % (sT1, sT1, sW))
                a('s_lshr_b32 s%d, s%d, %d' % (sT2, sT1, NC.bit_length() - 1))
            else:
                a('v_mov_b32 v%d, %d' % (vBv + 3, L_CT))
                a('ds_write_b32 v%d, v%d' % (vBv + 3, zero))
                a('s_mov_b32 s%d, s%d' % (sT1, sC))
                a('s_lshr_b32 s%d, s%d, %d' % (sT2, sT1, NC.bit_length() - 1))
                a('s_or_b32 s%d, s%d, s%d' % (sT2, sT2, sW))
            a('s_and_b32 s%d, s%d, %d' % (sT1, sT1, NC - 1))
            a('s_mul_i32 s%d, s%d, %d' % (sT1, sT1, CSTR))
            a('s_add_u32 s%d, s%d, 0x%x' % (sT1, sT1, WSB or WS_BRD))
            a('s_add_u32 s%d, s%d, s%d' % (sCA, pWS, sT1))
            a('s_addc_u32 s%d, s%d, 0' % (sCA + 1, pWS + 1))
            a('s_or_b32 s%d, s%d, s%d' % (sT2, sT2, sG))
            a('s_cbranch_scc1 L_noinit')
            a('s_mov_b32 s%d, 0' % sCD)
            a('s_atomic_swap s%d, %s, 0' % (sCD, sr(sCA, 2)))
            a.label('L_noinit')
        elif ctl:
            a('s_and_b32 s%d, s%d, %d' % (sT1, sC, NC - 1))
            a('s_mul_i32 s%d, s%d, %d' % (sT1, sT1, CSTR))
            a('s_add_u32 s%d, s%d, 0x%x' % (sT1, sT1, WSB or WS_BRD))
            a('v_mov_b32 v%d, s%d' % (vBv + 1, sT1))
            a('v_mov_b32 v%d, 0x7ff00000' % vBv)
            a('v_cmp_eq_u32 vcc, 0, v%d' % vL)
            a('v_cndmask_b32 v%d, v%d, v%d, vcc' % (vBv, vBv, vBv + 1))
            a('s_or_b32 s%d, s%d, s%d' % (sT1, sG, sW))
            a('s_lshr_b32 s%d, s%d, %d' % (sT2, sC, NC.bit_length() - 1))
            a('s_or_b32 s%d, s%d, s%d' % (sT1, sT1, sT2))
            a('s_cselect_b32 s%d, 0x7ff00000, 0' % sT1)
            a('v_or_b32 v%d, s%d, v%d' % (vBv + 1, sT1, vBv))
            a('buffer_store_dword v%d, v%d, %s, 0 offen sc1' % (zero, vBv + 1, sr(rWS, 4)))
            a('v_mov_b32 v%d, %d' % (vBv + 3, L_CT))
            a('ds_write_b32 v%d, v%d' % (vBv + 3, zero))
        a('s_mov_b32 s%d, 0x0c0c0c0c' % sC0)
        for k, (ev0, lo) in enumerate(((0, 0x0100), (2, 0x0100), (0, 0x0302), (2, 0x0302))):
            a('v_mov_b32 v%d, s%d' % (vSel + k, sC0))
            a('v_mov_b32 v%d, 0x%08x' % (vTmp + 1, 0x0c0c0000 | lo))
            a('v_cmp_eq_u32 vcc, %d, v%d' % (ev0, e))
            a('v_cndmask_b32 v%d, v%d, v%d, vcc' % (vSel + k, vSel + k, vTmp + 1))
            a('v_mov_b32 v%d, 0x%08x' % (vTmp + 1, (lo << 16) | 0x0c0c))
            a('v_cmp_eq_u32 vcc, %d, v%d' % (ev0 + 1, e))
            a('v_cndmask_b32 v%d, v%d, v%d, vcc' % (vSel + k, vSel + k, vTmp + 1))

        if vwarm:
            a('buffer_load_dword v%d, v%d, %s, 0 offen' % (vJunk, zero, sr(rV, 4)))
            a('buffer_load_dword v%d, v%d, %s, 0 offen' % (vJunk, zero, sr(rWO, 4)))
            a('buffer_load_dword v%d, v%d, %s, s%d offen sc1' % (vJunk, zero, sr(rWS, 4), sQg))

    def unpack(dst, src, n):
        for i in range(n):
            a('v_lshlrev_b32 v%d, 16, v%d' % (dst + 2 * i, src + i))
            a('v_and_b32 v%d, 0xffff0000, v%d' % (dst + 2 * i + 1, src + i))

    def ln_stats(xf, t):
        s, tm = t + 8, t + 9
        a('v_add_f32 v%d, v%d, v%d' % (t, xf, xf + 1))
        a('v_add_f32 v%d, v%d, v%d' % (t + 1, xf + 2, xf + 3))
        a('v_add_f32 v%d, v%d, v%d' % (t + 2, xf + 4, xf + 5))
        a('v_add_f32 v%d, v%d, v%d' % (t + 3, xf + 6, xf + 7))
        a('v_add_f32 v%d, v%d, v%d' % (t, t, t + 1))
        a('v_add_f32 v%d, v%d, v%d' % (t + 2, t + 2, t + 3))
        a('v_add_f32 v%d, v%d, v%d' % (s, t, t + 2))
        allred([s], 'add_f32', [tm])
        a('v_mul_f32 v%d, %s, v%d' % (s, f32(1 / 512), s))
        for i in range(8):
            a('v_sub_f32 v%d, v%d, v%d' % (t + i, xf + i, s))
        rnd(s, s)
        a('v_mul_f32 v%d, v%d, v%d' % (t, t, t))
        a('v_mul_f32 v%d, v%d, v%d' % (t + 1, t + 1, t + 1))
        for i in range(2, 8):
            a('v_fmac_f32 v%d, v%d, v%d' % (t + (i & 1), t + i, t + i))
        a('v_add_f32 v%d, v%d, v%d' % (t, t, t + 1))
        allred([t], 'add_f32', [tm])
        a('v_mul_f32 v%d, %s, v%d' % (t, f32(1 / 512), t))
        rnd(t, t)
        a('v_add_f32 v%d, %s, v%d' % (t, f32(1e-5), t))
        rnd(t, t)
        a('v_sqrt_f32 v%d, v%d' % (t, t))
        rnd(t, t)
        a('v_rcp_f32 v%d, v%d' % (t, t))
        return s, t

    def ln1():
        if wqskew:
            n = a.vm - (tE or xtok['x'])
            a('s_cmp_eq_u32 s%d, 0' % sMode)
            a('s_cbranch_scc1 L_ws1')
            a('s_waitcnt vmcnt(%d)' % (n + 8))
            a('s_branch L_ws2')
            a.label('L_ws1')
            a('s_waitcnt vmcnt(%d)' % n)
            a.label('L_ws2')
            a.vm_done = tE or xtok['x']
        a.wait_vm(tE or xtok['x'])
        if tld == 's':
            a.wait_lg()
            a('v_mov_b32 v%d, s%d' % (vTag, sTagS))
        a('s_mov_b32 s%d, 1664525' % sC0)
        a('v_mul_lo_u32 v%d, v%d, s%d' % (vTag, vTag, sC0))
        a('v_add_u32 v%d, 1013904223, v%d' % (vTag, vTag))
        if bal:
            a('v_and_b32 v%d, 0xffffff00, v%d' % (vBt, vTag))
        unpack(vXf, vX, 4)
        mb, rc = ln_stats(vXf, T)
        for i in range(8):
            a('v_sub_f32 v%d, v%d, v%d' % (vXf + i, vXf + i, mb))
        for i in range(8):
            rnd(vXf + i, vXf + i)
        for i in range(8):
            a('v_mul_f32 v%d, v%d, v%d' % (vXf + i, vXf + i, rc))
        for i in range(4):
            a('v_cvt_pk_bf16_f32 v%d, v%d, v%d' % (vX + i, vXf + 2 * i, vXf + 2 * i + 1))
        a('ds_write_b128 v%d, %s' % (vXw, vr(vX, 4)))

    def qpart():
        a.wait_vm(tok['WQ'])
        a.wait_lg()
        stamp(True)
        a('s_barrier')
        for t in range(4):
            a('ds_read_b128 %s, v%d offset:%d' % (vr(vKf + 16 + 4 * t, 4), vXb, t * 64))
        if wqa:
            G = vAS + 4
            a('s_mov_b32 vcc_lo, 0xaaaaaaaa')
            a('s_mov_b32 vcc_hi, 0xaaaaaaaa')
            a('v_mov_b32 v%d, s%d' % (G + 3, sXcc))
            for b in range(NB):
                hb(b, sT1)
                a('s_cbranch_scc0 L_q%da' % b)
                a.cond += 1
                a('v_mov_b32 v%d, 0x7ff00000' % vTmp)
                a('buffer_store_dword v%d, v%d, %s, 0 offen' % (vTmp, vTmp, sr(rWS, 4)))
                a.cond -= 1
                a('s_branch L_q%db' % b)
                a.label('L_q%da' % b)
                if b:
                    a('v_add_u32 v%d, 0x%x, v%d' % (vTmp, (24576 + (b - 1) * 4096 - L_WQ) & 0xffffffff, vTr))
                    a('v_add_u32 v%d, 0x10000, v%d' % (vTmp + 1, vTmp))
                lt = []
                for t in range(4):
                    ad, of = (vTr, t * 4096) if b == 0 else (vTmp + (t >> 1), (t & 1) * 32768)
                    a('ds_read_b64_tr_b16 %s, v%d offset:%d' % (vr(vKf + 4 * t, 2), ad, of))
                    lt.append(a('ds_read_b64_tr_b16 %s, v%d offset:%d' % (vr(vKf + 4 * t + 2, 2), ad, of + 512)))
                a('s_lshl_b32 s%d, s%d, 14' % (sT1, sT1))
                a('s_add_u32 s%d, s%d, s%d' % (sT1, sT1, sPub))
                for t in range(4):
                    a.wait_lg(lt[t])
                    a('v_mfma_f32_16x16x32_bf16 %s, %s, %s, %s' % (vr(vAS, 4), vr(vKf + 4 * t, 4), vr(vKf + 16 + 4 * t, 4), '0' if t == 0 else vr(vAS, 4)))
                a('v_cndmask_b32 v%d, v%d, v%d, vcc' % (G, vAS, vAS + 2))
                a('v_cndmask_b32 v%d, v%d, v%d, vcc' % (G + 1, vAS + 1, vAS + 3))
                xor3(G + 2, G, G + 1, vTag)
                a('v_xor_b32 v%d, v%d, v%d' % (G + 2, G + 2, G + 3))
                a('s_mov_b32 exec_lo, 0x00030003')
                a('s_mov_b32 exec_hi, 0x00030003')
                a('buffer_store_dwordx4 %s, v%d, %s, s%d offen %s' % (vr(G, 4), vQw, sr(rWS, 4), sT1, qflag))
                a('s_mov_b64 exec, -1')
                a('s_nop 1')
                a.label('L_q%db' % b)
            a.wait_lg()
            if NB > 1:
                a('s_barrier')
            a('s_lshl_b32 s%d, s%d, 3' % (sT1, sP))
            a('s_add_u32 s%d, s%d, 0x%x' % (sT1, sT1, WS_XC))
            a('s_cmp_eq_u32 s%d, 0' % sW)
            a('s_cselect_b32 s%d, s%d, 0x7ff00000' % (sT1, sT1))
            a('v_mov_b32 v%d, s%d' % (vTmp, sT1))
            a('v_mov_b32 v%d, s%d' % (vAS, sXcc))
            a('v_xor_b32 v%d, s%d, v%d' % (vAS + 1, sXcc, vTag))
            a('s_mov_b64 exec, 1')
            a('buffer_store_dwordx2 %s, v%d, %s, 0 offen %s' % (vr(vAS, 2), vTmp, sr(rWS, 4), qflag))
            a('s_mov_b64 exec, -1')
            stamp(True)
            return
        lt = []
        for t in range(4):
            a('ds_read_b64_tr_b16 %s, v%d offset:%d' % (vr(vKf + 4 * t, 2), vTr, t * 4096))
            lt.append(a('ds_read_b64_tr_b16 %s, v%d offset:%d' % (vr(vKf + 4 * t + 2, 2), vTr, t * 4096 + 512)))
        a('s_mov_b32 vcc_lo, 0xaaaaaaaa')
        a('s_mov_b32 vcc_hi, 0xaaaaaaaa')
        for t in range(4):
            a.wait_lg(lt[t])
            a('v_mfma_f32_16x16x32_bf16 %s, %s, %s, %s' % (vr(vAS, 4), vr(vKf + 4 * t, 4), vr(vKf + 16 + 4 * t, 4), '0' if t == 0 else vr(vAS, 4)))
        G = vAS + 4
        a('v_cndmask_b32 v%d, v%d, v%d, vcc' % (G, vAS, vAS + 2))
        a('v_cndmask_b32 v%d, v%d, v%d, vcc' % (G + 1, vAS + 1, vAS + 3))
        a('v_mov_b32 v%d, s%d' % (G + 3, sXcc))
        xor3(G + 2, G, G + 1, vTag)
        a('v_xor_b32 v%d, v%d, v%d' % (G + 2, G + 2, G + 3))
        a('s_mov_b32 exec_lo, 0x00030003')
        a('s_mov_b32 exec_hi, 0x00030003')
        a('buffer_store_dwordx4 %s, v%d, %s, s%d offen %s' % (vr(G, 4), vQw, sr(rWS, 4), sPub, qflag))
        a('s_mov_b64 exec, -1')
        stamp(True)

    def ln2():
        a.wait_vm(small['t'])
        unpack(vXf, vX, 4)
        a('s_lshl_b32 s%d, s%d, 2' % (sT1, sP))
        a('s_add_u32 s%d, s%d, %d' % (sT1, sT1, L_XN))
        a('v_mov_b32 v%d, s%d' % (vH, sT1))
        a('ds_read_b32 v%d, v%d' % (vH + 2, vH))
        mb, rc = ln_stats(vXf, T)
        a.wait_lg()
        unpack(vH, vH + 2, 1)
        for i in range(2):
            a('v_sub_f32 v%d, v%d, v%d' % (vH + i, vH + i, mb))
        for i in range(2):
            rnd(vH + i, vH + i)
        for i in range(2):
            a('v_mul_f32 v%d, v%d, v%d' % (vH + i, vH + i, rc))
        for i in range(2):
            rnd(vH + i, vH + i)
        a('v_mov_b32 v%d, 0' % vY)
        a('v_mov_b32 v%d, 0' % (vY + 1))

    c0 = -2.0 * math.sqrt(2.0 / math.pi) * LOG2E
    c1 = c0 * 0.044715

    def gelu_chunk(k):
        wf, bf_, u, tt = T, T + 2, T + 4, T + 8
        unpack(wf, vW1 + k, 1)
        unpack(bf_, vB1 + k, 1)
        a('s_mov_b32 s%d, %s' % (sC0, f32(c0)))
        a('v_mov_b32 v%d, %s' % (T + 12, f32(c1)))
        for c in range(2):
            for i in range(2):
                a('v_mul_f32 v%d, v%d, v%d' % (u + 2 * c + i, vH + c, wf + i))
        for i in range(4):
            rnd(u + i, u + i)
        for i in range(4):
            a('v_add_f32 v%d, v%d, v%d' % (u + i, u + i, bf_ + (i & 1)))
        for i in range(4):
            rnd(u + i, u + i)
        for i in range(4):
            a('v_mul_f32 v%d, v%d, v%d' % (tt + i, u + i, u + i))
        for i in range(4):
            a('v_fma_f32 v%d, v%d, v%d, s%d' % (tt + i, tt + i, T + 12, sC0))
        for i in range(4):
            a('v_mul_f32 v%d, v%d, v%d' % (tt + i, tt + i, u + i))
        for i in range(4):
            a('v_exp_f32 v%d, v%d' % (tt + i, tt + i))
        for i in range(4):
            a('v_add_f32 v%d, 1.0, v%d' % (tt + i, tt + i))
        for i in range(4):
            a('v_rcp_f32 v%d, v%d' % (tt + i, tt + i))
        for i in range(4):
            a('v_mul_f32 v%d, v%d, v%d' % (u + i, u + i, tt + i))
        for c in range(2):
            a('v_cvt_pk_bf16_f32 v%d, v%d, v%d' % (tt + c, u + 2 * c, u + 2 * c + 1))
        for c in range(2):
            a('v_dot2c_f32_bf16 v%d, v%d, v%d' % (vY + c, tt + c, vW2 + k))

    def y_finish():
        allred([vY, vY + 1], 'add_f32', [T, T + 1])
        a('s_lshl_b32 s%d, s%d, 3' % (sT1, sW))
        a('s_add_u32 s%d, s%d, %d' % (sT1, sT1, L_YP))
        a('v_mov_b32 v%d, s%d' % (T, sT1))
        a('s_mov_b64 exec, 1')
        a('ds_write_b64 v%d, %s' % (T, vr(vY, 2)))
        a('s_mov_b64 exec, -1')

    QG = vQ + 16

    def q_loads(fl='sc1'):
        for k in range(4):
            if k:
                a('s_add_u32 s%d, s%d, %d' % (sOff, sQg, k * 4096))
            tk = a('buffer_load_dwordx4 %s, v%d, %s, s%d offen %s' % (vr(QG + 4 * k, 4), vT16, sr(rWS, 4), sOff if k else sQg, fl))
        if wqa:
            a('s_lshl_b32 s%d, s%d, 8' % (sOff, sG))
            a('s_add_u32 s%d, s%d, 0x%x' % (sOff, sOff, WS_XC))
            tk = a('buffer_load_dwordx2 %s, v%d, %s, s%d offen %s' % (vr(vS, 2), vS + 2, sr(rWS, 4), sOff, fl))
        tok['QG'] = tk

    def q_check():
        for k in range(4):
            xor3(T + k, QG + 4 * k, QG + 4 * k + 1, QG + 4 * k + 2)
        for k in range(4):
            xor3(T + k, T + k, QG + 4 * k + 3, vTag)
        a('v_or3_b32 v%d, v%d, v%d, v%d' % (vTmp, T, T + 1, T + 2))
        if wqa:
            xor3(T, vS, vS + 1, vTag)
            a('v_or3_b32 v%d, v%d, v%d, v%d' % (vTmp, vTmp, T + 3, T))
        else:
            a('v_or_b32 v%d, v%d, v%d' % (vTmp, vTmp, T + 3))
        a('v_cmp_ne_u32 vcc, 0, v%d' % vTmp)

    def q_issue():
        if wqa:
            a('v_and_b32 v%d, 31, v0' % (vS + 2))
            a('v_lshlrev_b32 v%d, 3, v%d' % (vS + 2, vS + 2))
        q_loads(qld)
        stamp(True)

    def q_take():
        a.wait_vm(tok['QG'])
        q_check()
        a('s_cbranch_vccnz L_qretry')
        a.label('L_qok')
        for c in range(2):
            a('v_add_f32 v%d, v%d, v%d' % (QG + c, QG + c, QG + 4 + c))
            a('v_add_f32 v%d, v%d, v%d' % (QG + 8 + c, QG + 8 + c, QG + 12 + c))
        for c in range(2):
            a('v_add_f32 v%d, v%d, v%d' % (QG + c, QG + c, QG + 8 + c))
        a('v_cvt_pk_bf16_f32 v%d, v%d, v%d' % (QG, QG, QG + 1))
        a('v_lshlrev_b32 v%d, 2, v0' % (QG + 1))
        a('v_add_u32 v%d, %d, v%d' % (QG + 1, L_QL, QG + 1))
        a('ds_write_b32 v%d, v%d' % (QG + 1, QG))
        if wqa:
            a('v_cmp_ne_u32 vcc, s%d, v%d' % (sXcc, vS))
        else:
            for k in range(4):
                a('v_xor_b32 v%d, s%d, v%d' % (T + k, sXcc, QG + 4 * k + 3))
            a('v_or3_b32 v%d, v%d, v%d, v%d' % (T, T, T + 1, T + 2))
            a('v_or_b32 v%d, v%d, v%d' % (T, T, T + 3))
            a('v_cmp_ne_u32 vcc, 0, v%d' % T)
        a('s_lshl_b32 s%d, s%d, 2' % (sT1, sW))
        a('s_add_u32 s%d, s%d, %d' % (sT1, sT1, L_XF))
        a('s_or_b32 s%d, vcc_lo, vcc_hi' % sT2)
        a('v_mov_b32 v%d, s%d' % (T, sT1))
        a('v_mov_b32 v%d, s%d' % (T + 1, sT2))
        a('ds_write_b32 v%d, v%d' % (T, T + 1))

    def q_mode():
        a.wait_lg(tok['XF'])
        a('v_or3_b32 v%d, v%d, v%d, v%d' % (vTmp + 4, vTmp + 4, vTmp + 5, vTmp + 6))
        a('v_or_b32 v%d, v%d, v%d' % (vTmp + 4, vTmp + 4, vTmp + 7))
        a('v_readfirstlane_b32 s%d, v%d' % (sMode, vTmp + 4))
        if mapping != 'mod':
            a('s_mov_b32 s%d, 1' % sMode)
        if force is not None:
            a('s_mov_b32 s%d, %d' % (sMode, force))

    def q_frag():
        a('v_mov_b32 v%d, %d' % (vTmp, L_XF))
        a.wait_lg()
        a('s_barrier')
        tok['XF'] = a('ds_read_b128 %s, v%d' % (vr(vTmp + 4, 4), vTmp))
        for t in range(4):
            a('ds_read_b128 %s, v%d offset:%d' % (vr(vQ + 4 * t, 4), vQf, t * 64))
        stamp(True)

    SCALE = float(struct.unpack('<f', struct.pack('<f', 128 ** -0.5))[0])

    def qk(t):
        a.wait_vm(tok['K%db' % t])
        lt = {}
        for g in range(2):
            for k in range(4):
                lt[g, k] = a('ds_read_b128 %s, v%d offset:%d' % (vr(vKf + g * 16 + k * 4, 4), vKa + k, (t % 4) * 8192 + g * 4096))
        for g in range(2):
            for k in range(4):
                a.wait_lg(lt[g, k])
                a('v_mfma_f32_16x16x32_bf16 %s, %s, %s, %s' % (vr(vAS + 4 * g, 4), vr(vKf + g * 16 + k * 4, 4), vr(vQ + k * 4, 4), '0' if k == 0 else vr(vAS + 4 * g, 4)))
        S = vS + t * 8
        a('s_mov_b32 s%d, %s' % (sC0, f32(SCALE)))
        for i in range(8):
            rnd(S + i, vAS + i)
        for i in range(8):
            a('v_mul_f32 v%d, s%d, v%d' % (S + i, sC0, S + i))
        for i in range(8):
            rnd(S + i, S + i)
        if t == 0:
            a('v_max3_f32 v%d, v%d, v%d, v%d' % (vM, S, S + 1, S + 2))
            a('v_max3_f32 v%d, v%d, v%d, v%d' % (vM, vM, S + 3, S + 4))
            a('v_max3_f32 v%d, v%d, v%d, v%d' % (vM, vM, S + 5, S + 6))
            a('v_max_f32 v%d, v%d, v%d' % (vM, vM, S + 7))
        else:
            for i in range(4):
                a('v_max3_f32 v%d, v%d, v%d, v%d' % (vM, vM, S + 2 * i, S + 2 * i + 1))
        if t == 7:
            stamp(True)

    vMA, vL2 = (vBv, vBv + 1) if two else (None, vTmp + 1)

    def sm_maxA():
        allred([vM], 'max_f32', [vTmp], bits=(4, 5))
        a('v_mul_f32 v%d, %s, v%d' % (vMA, f32(LOG2E), vM))
        a('v_mov_b32 v%d, 0' % vLs)
        a('v_mov_b32 v%d, 0' % vL2)

    def sm_max():
        allred([vM], 'max_f32', [vTmp], bits=(4, 5))
        a('v_mul_f32 v%d, %s, v%d' % (vM, f32(LOG2E), vM))
        if two:
            a('v_sub_f32 v%d, v%d, v%d' % (vMA, vMA, vM))
            a('v_exp_f32 v%d, v%d' % (vMA, vMA))
            a('s_nop 1')
            for r in range(4):
                a('v_mov_b32_dpp v%d, v%d row_newbcast:%d row_mask:0x%x bank_mask:0xf' % (vTmp, vMA, 4 * r, 1 << r))
            a('v_mul_f32 v%d, v%d, v%d' % (vLs, vLs, vMA))
            a('v_mul_f32 v%d, v%d, v%d' % (vL2, vL2, vMA))
            for i in range(8):
                a('v_mul_f32 v%d, v%d, v%d' % (vO + i, vO + i, vTmp))
            return
        a('v_mov_b32 v%d, 0' % vLs)
        a('v_mov_b32 v%d, 0' % vL2)

    def sm_exp(t):
        S = vS + t * 8
        a('s_mov_b32 s%d, %s' % (sC0, f32(LOG2E)))
        for i in range(8):
            a('v_fma_f32 v%d, v%d, s%d, -v%d' % (S + i, S + i, sC0, vMA if two and t < 4 else vM))
        for i in range(8):
            a('v_exp_f32 v%d, v%d' % (S + i, S + i))
        for i in range(4):
            a('v_add_f32 v%d, v%d, v%d' % (vLs, vLs, S + 2 * i))
            a('v_add_f32 v%d, v%d, v%d' % (vL2, vL2, S + 2 * i + 1))
        for i in range(4):
            a('v_cvt_pk_bf16_f32 v%d, v%d, v%d' % (S + i, S + 2 * i, S + 2 * i + 1))

    def sm_fin():
        a('v_add_f32 v%d, v%d, v%d' % (vLs, vLs, vL2))
        allred([vLs], 'add_f32', [vTmp], bits=(4, 5))
        a('s_lshl_b32 s%d, s%d, 3' % (sT1, sW))
        a('s_add_u32 s%d, s%d, %d' % (sT1, sT1, L_ML))
        a('v_lshlrev_b32 v%d, 3, v%d' % (vTmp, vL))
        a('v_add_u32 v%d, s%d, v%d' % (vTmp, sT1, vTmp))
        a('s_mov_b64 exec, 0x1111')
        a('ds_write_b64 v%d, %s' % (vTmp, vr(vM, 2)))
        a('s_mov_b64 exec, -1')

    def p_prep(t):
        P = vKf + (t & 1) * 16
        S = vS + t * 8
        for g in range(2):
            for r in range(4):
                pk = S + g * 2 + (r >> 1)
                sl = vSel + (r & 1) * 2
                a('v_perm_b32 v%d, v%d, v%d, v%d' % (P + g * 8 + r * 2, pk, pk, sl))
                a('v_perm_b32 v%d, v%d, v%d, v%d' % (P + g * 8 + r * 2 + 1, pk, pk, sl + 1))

    def pv(t, fine=False):
        P = vKf + (t & 1) * 16
        if not fine:
            a.wait_vm(tok['V%db' % t])
        for g in range(2):
            for r in range(4):
                if fine:
                    a.wait_vm(vtok[(t, g, r)])
                for hf in range(2):
                    fst = (t == 0 and g == 0 and r == 0)
                    a('v_mfma_f32_16x16x16_bf16 %s, %s, %s, %s' % (vr(vO + 4 * hf, 4), vr(P + g * 8 + r * 2, 2), ar(t * 32 + g * 16 + r * 4 + hf * 2, 2), '0' if fst else vr(vO + 4 * hf, 4)))

    def wo_pair(w=True):
        if w:
            a.wait_vm(tok['WO'])
        a('s_mov_b32 s%d, 0x05040100' % sC0)
        a('s_mov_b32 s%d, 0x07060302' % sC1)
        for k in range(8):
            a('v_perm_b32 v%d, v%d, v%d, s%d' % (vWOp + k, vWOr + 2 * k + 1, vWOr + 2 * k, sC0))
            a('v_perm_b32 v%d, v%d, v%d, s%d' % (vWOp + 8 + k, vWOr + 2 * k + 1, vWOr + 2 * k, sC1))

    vTB = vZ + 16 if wol else vWOr
    vRw, vRr, vPo, vOo = vTB, vTB + 1, vTB + 2, vTB + 3
    vR2w, vR2r = vTB + 4, vTB + 5
    sGa = 52

    def tail_setup():
        if tailpf:
            a('v_and_b32 v%d, 31, v0' % vTmp)
            a('v_lshlrev_b32 v%d, 7, v%d' % (vTmp, vTmp))
            a('v_add_u32 v%d, L_tail-L_pc, v%d' % (vTmp, vTmp))
            a('v_min_u32 v%d, L_codeend-L_pc-4, v%d' % (vTmp, vTmp))
            a('global_load_dword v%d, v%d, %s' % (vJunk, vTmp, sr(sPC, 2)))
        a('s_mul_i32 s%d, s%d, %d' % (sT1, sW, 2304 if red2 else 2048))
        a('s_add_u32 s%d, s%d, %d' % (sT1, sT1, L_RED))
        a('v_lshlrev_b32 v%d, %d, v%d' % (vRw, 4 if red2 else 5, vL))
        a('v_add_u32 v%d, s%d, v%d' % (vRw, sT1, vRw))
        a('v_lshlrev_b32 v%d, 3, v0' % vRr)
        a('v_add_u32 v%d, %d, v%d' % (vR2w, L_RED2, vRr))
        if red2:
            a('v_and_b32 v%d, 8, v%d' % (vRr, vRr))
            a('v_lshrrev_b32 v%d, 2, v0' % vPo)
            a('v_lshl_add_u32 v%d, v%d, 4, v%d' % (vRr, vPo, vRr))
            a('v_bfe_u32 v%d, v0, 1, 1' % vPo)
            a('v_mul_u32_u24 v%d, 1152, v%d' % (vPo, vPo))
            a('v_add_u32 v%d, v%d, v%d' % (vRr, vPo, vRr))
        a('v_add_u32 v%d, %d, v%d' % (vRr, L_RED, vRr))
        a('v_lshrrev_b32 v%d, 3, v%d' % (vPo, vL))
        a('v_mul_u32_u24 v%d, %d, v%d' % (vPo, PST, vPo))
        a('v_and_b32 v%d, 7, v%d' % (vOo, vL))
        a('v_lshl_add_u32 v%d, v%d, 4, v%d' % (vPo, vOo, vPo))
        if olay == 'prod':
            a('v_mul_u32_u24 v%d, %d, v%d' % (vOo, OST, vL))
        else:
            a('v_mul_u32_u24 v%d, %d, v%d' % (vOo, CST, vL))
        a('s_mul_i32 s%d, s%d, %d' % (sPub, sJ, PST))
        a('s_add_u32 s%d, s%d, 0x%x' % (sPub, sPub, WS_PART))
        a('s_and_b32 s%d, s%d, 0xe0' % (sT1, sJ))
        a('s_mul_i32 s%d, s%d, %d' % (sT1, sT1, PST))
        a('s_and_b32 s%d, s%d, 0x1c' % (sT2, sJ))
        a('s_add_u32 s%d, s%d, s%d' % (sT2, sT2, sW))
        a('s_lshl_b32 s%d, s%d, 7' % (sT2, sT2))
        a('s_add_u32 s%d, s%d, s%d' % (sT1, sT1, sT2))
        for jj in range(4):
            a('s_add_u32 s%d, s%d, 0x%x' % (sGa + jj, sT1, WS_PART + jj * 8 * PST))
        if olay == 'prod':
            a('s_and_b32 s%d, s%d, 3' % (sT1, sJ))
            a('s_lshl_b32 s%d, s%d, 6' % (sT1, sT1))
            a('s_lshr_b32 s%d, s%d, 2' % (sT2, sJ))
            a('s_add_u32 s%d, s%d, s%d' % (sT1, sT1, sT2))
            a('s_mul_i32 s%d, s%d, %d' % (sT1, sT1, OST))
            a('s_add_u32 s%d, s%d, 0x%x' % (sGa + 4, sT1, WS_OUTP))
            a('s_and_b32 s%d, s%d, 0xc0' % (sT1, sP))
            a('s_mul_i32 s%d, s%d, %d' % (sT1, sT1, OST))
            a('s_and_b32 s%d, s%d, 63' % (sT2, sP))
            a('s_lshl_b32 s%d, s%d, 4' % (sT2, sT2))
            a('s_add_u32 s%d, s%d, s%d' % (sT1, sT1, sT2))
            a('s_add_u32 s%d, s%d, 0x%x' % (sGa + 5, sT1, WS_OUTP))
        else:
            a('s_and_b32 s%d, s%d, 3' % (sT1, sJ))
            a('s_mul_i32 s%d, s%d, %d' % (sT1, sT1, 64 * CST))
            a('s_lshr_b32 s%d, s%d, 2' % (sT2, sJ))
            a('s_lshl_b32 s%d, s%d, 4' % (sT2, sT2))
            a('s_add_u32 s%d, s%d, s%d' % (sT1, sT1, sT2))
            a('s_add_u32 s%d, s%d, 0x%x' % (sGa + 4, sT1, WS_OUTP))
            a('s_mul_i32 s%d, s%d, %d' % (sT1, sP, CST))
            a('s_add_u32 s%d, s%d, 0x%x' % (sGa + 5, sT1, WS_OUTP))

    def warmup():
        vOst, vOld = (vT16, vOo) if olay == 'prod' else (vOo, vT16)
        if warm & 1:
            for jj in range(4):
                a('buffer_load_dword v%d, v%d, %s, s%d offen sc1' % (vJunk, vPo, sr(rWS, 4), sGa + jj))
            a('buffer_load_dword v%d, v%d, %s, s%d offen sc1' % (vJunk, vT16, sr(rWS, 4), sPub))
        if warm & 2:
            a('buffer_load_dword v%d, v%d, %s, s%d offen sc1' % (vJunk, vOld, sr(rWS, 4), sGa + 5))
            a('buffer_load_dword v%d, v%d, %s, s%d offen sc1' % (vJunk, vL4, sr(rWS, 4), sGa + 4))
        if warm & 8:
            a('v_lshrrev_b32 v%d, 4, v%d' % (vBv, vL))
            a('v_mul_u32_u24 v%d, %d, v%d' % (vBv, 21 * OST, vBv))
            a('buffer_load_dword v%d, v%d, %s, s%d offen sc1' % (vJunk, vBv, sr(rWS, 4), sGa + 5))
            a('buffer_load_dword v%d, off, %s, s%d sc1' % (vJunk, sr(rWS, 4), sGa + 4))
        if warm & 16:
            a('v_lshrrev_b32 v%d, 4, v%d' % (vBv, vL))
            a('v_mul_u32_u24 v%d, %d, v%d' % (vBv, 10 * PST, vBv))
            a('buffer_load_dword v%d, v%d, %s, s%d offen sc1' % (vJunk, vBv, sr(rWS, 4), sGa))
        if warm & 4:
            a('global_load_dword v%d, v%d, %s sc1' % (vJunk, vL4, sr(pOUT, 2)))

    def predirty():
        D = vTmp + 4
        a('s_cmp_lg_u32 s%d, 0' % sMode)
        a('s_cbranch_scc1 L_nopd')
        a.cond += 1
        for i in range(3):
            a('v_mov_b32 v%d, 0' % (D + i))
        a('v_not_b32 v%d, v%d' % (D + 3, vTag))
        a('buffer_store_dwordx4 %s, v%d, %s, s%d offen %s' % (vr(D, 4), vT16, sr(rWS, 4), sPub, pflag))
        a('s_nop 1')
        a.cond -= 1
        a.label('L_nopd')

    btok = {}

    def b_pub(k):
        a('v_add_u32 v%d, %d, v%d' % (vBv, k, vBt))
        a('buffer_store_dwordx4 %s, v%d, %s, 0 offen sc1' % (vr(vBv, 4), vBst, sr(rWS, 4)))

    def b_load(k):
        btok[k] = a('buffer_load_dword v%d, v%d, %s, 0 offen sc1' % (vBr + (len(btok) & 1), vBld, sr(rWS, 4))), vBr + (len(btok) & 1)

    def b_use(k):
        t, r = btok[k]
        a.wait_vm(t)
        a('v_sub_u32 v%d, v%d, v%d' % (r, r, vBt))
        a('v_cmp_gt_u32 vcc, 0x100, v%d' % r)
        a('v_cndmask_b32 v%d, 0, v%d, vcc' % (r, r))
        a('v_readlane_b32 s%d, v%d, s%d' % (sT1, r, sG))
        for b in (4, 2, 1):
            a('v_add_u32_dpp v%d, v%d, v%d row_ror:%d row_mask:0xf bank_mask:0xf' % (r, r, r, b))
        a('s_lshl_b32 s%d, s%d, 3' % (sT1, sT1))
        a('v_readfirstlane_b32 s%d, v%d' % (sT2, r))
        if theta:
            a('s_add_u32 s%d, s%d, %d' % (sT2, sT2, theta))
        a('s_cmp_gt_i32 s%d, s%d' % (sT1, sT2))
        a('s_cselect_b32 s%d, 1, 0' % sThr)
        if stamps:
            a('s_add_u32 s15, s15, s%d' % sThr)

    ctok = {}

    def c_add(k):
        r = vBr + (k & 1)
        a('s_cmp_eq_u32 s%d, %d' % (sW, k & 3))
        a('s_cselect_b32 s%d, 0, 0x7ff00000' % sT1)
        a('v_or_b32 v%d, s%d, v%d' % (vBv + 1, sT1, vBv))
        a('v_mov_b32 v%d, 1' % r)
        ctok[k] = a('buffer_atomic_add v%d, v%d, %s, 0 offen %s' % (r, vBv + 1, sr(rWS, 4), cflag))

    def c_use(k):
        r = vBr + (k & 1)
        n = 256 // NC
        a.wait_vm(ctok[k])
        a('v_readfirstlane_b32 s%d, v%d' % (sT1, r))
        a('s_mov_b32 s%d, 0' % sT2)
        for d in dth:
            a('s_cmp_lt_i32 s%d, %d' % (sT1, k * n + n // 2 - d))
            a('s_addc_u32 s%d, s%d, 0' % (sT2, sT2))
        if cforce is not None:
            a('s_mov_b32 s%d, %d' % (sT2, cforce))
        a('s_cmp_eq_u32 s%d, %d' % (sW, k & 3))
        a('s_cselect_b32 s%d, 0, 4' % sT1)
        a('v_mov_b32 v%d, s%d' % (r, sT2))
        a('v_add_u32 v%d, s%d, v%d' % (vBv + 1, sT1, vBv + 3))
        a('s_mov_b64 exec, 1')
        a('ds_write_b32 v%d, v%d' % (vBv + 1, r))
        a('s_mov_b64 exec, -1')

    def s_add(k):
        if clat == k:
            stamp()
        a('s_mov_b32 s%d, 1' % sCD)
        if cop == 'add':
            a('s_atomic_add s%d, %s, 0 glc' % (sCD, sr(sCA, 2)))
        else:
            a('s_load_dword s%d, %s, %d glc' % (sCD, sr(sCA, 2), 128 * k))

    def s_use(k):
        n = 1024 // NC
        if clat == k:
            stamp()
        a.wait_lg()
        if clat == k:
            stamp()
            stamp()
            stamp()
        a('s_mov_b32 s%d, 0' % sThr)
        for d in dth:
            a('s_cmp_lt_i32 s%d, %d' % (sCD, k * n + n // 2 - d))
            a('s_addc_u32 s%d, s%d, 0' % (sThr, sThr))
        if cforce is not None:
            a('s_mov_b32 s%d, %d' % (sThr, cforce))

    def w_add(k):
        a('s_cmp_lg_u32 s%d, 0' % sW)
        a('s_cbranch_scc1 L_wa%d' % k)
        if clat == k:
            stamp()
        a('s_mov_b32 s%d, 1' % sCD)
        if cop == 'add':
            a('s_atomic_add s%d, %s, 0 glc' % (sCD, sr(sCA, 2)))
        elif cop == 'ld':
            a('s_load_dword s%d, %s, %d glc' % (sCD, sr(sCA, 2), 128 * k))
        a.label('L_wa%d' % k)

    def w_use(k):
        n = 256 // NC
        a('s_cmp_lg_u32 s%d, 0' % sW)
        a('s_cbranch_scc1 L_wu%d' % k)
        if clat == k:
            stamp()
        a.wait_lg()
        if clat == k:
            stamp()
            stamp()
            stamp()
        a('s_mov_b32 s%d, 0' % sThr)
        for d in dth:
            a('s_cmp_lt_i32 s%d, %d' % (sCD, k * n + n // 2 - d))
            a('s_addc_u32 s%d, s%d, 0' % (sThr, sThr))
        if cforce is not None:
            a('s_mov_b32 s%d, %d' % (sThr, cforce))
        a('v_mov_b32 v%d, s%d' % (vBv, sThr))
        a('s_mov_b64 exec, 1')
        a('ds_write_b32 v%d, v%d' % (vBv + 3, vBv))
        a('s_mov_b64 exec, -1')
        a.label('L_wu%d' % k)
        a.smem_out = True
        a.lg_done = 0

    nlab = [0]

    def w_read():
        nlab[0] += 1
        a('s_cmp_eq_u32 s%d, 0' % sW)
        a('s_cbranch_scc1 L_wr%d' % nlab[0])
        a('ds_read_b32 v%d, v%d' % (vBv + 2, vBv + 3))
        a.label('L_wr%d' % nlab[0])
        a.smem_out = True

    def w_get():
        nlab[0] += 1
        a('s_cmp_eq_u32 s%d, 0' % sW)
        a('s_cbranch_scc1 L_wr%d' % nlab[0])
        a.wait_lg()
        a('v_readfirstlane_b32 s%d, v%d' % (sThr, vBv + 2))
        a.label('L_wr%d' % nlab[0])
        a.smem_out = True
        a.lg_done = 0
        if stamps:
            a('s_add_u32 s15, s15, s%d' % sThr)

    def c_read():
        ctok['r'] = a('ds_read_b32 v%d, v%d' % (vBv + 2, vBv + 3))

    def c_get():
        a.wait_lg(ctok['r'])
        a('v_readfirstlane_b32 s%d, v%d' % (sThr, vBv + 2))
        if stamps:
            a('s_add_u32 s15, s15, s%d' % sThr)

    sched = {i: [] for i in range(-1, N)}

    def at(i, f):
        i = min(i, N - 1)
        sched[i].append(f)
        return i

    p = W0 * sub - 1
    if xpos:
        at(xpos - 1, xload)
    if pfpos:
        at(pfpos - 1, lambda: a('global_load_dword v%d, v%d, %s' % (vJunk, vTmp + 1, sr(sPC, 2))))
    if wwarm:
        at(last[wwarm], lambda: a('buffer_load_dword v%d, off, %s, 0' % (vJunk, sr(rWO, 4))) if wwarm != 'K0a' else None)
    at(p, setup)
    if wwarm == 'K0a':
        at(p, lambda: a('buffer_load_dword v%d, off, %s, 0' % (vJunk, sr(rWO, 4))))
    p = at(p + lnp, ln1)
    p = at(max(ready('WQ') + d1 * sub, p), qpart)
    pbar = p
    for f in [ln2] + [lambda k=k: gelu_chunk(k) for k in range(4)] + [y_finish]:
        p = at(p + sub, f)
    pq = at(last[qpos], q_issue)
    p1 = at(rdy(pq), q_take)
    p2 = at(p1 + d2 * sub, q_frag)
    assert p <= p2, 'gelu must finish before qk'
    assert p2 < first['K4a'], (p2, first['K4a'])
    p = p2
    for t in range(4):
        p = at(min(max(p, p2 + t * sub), first['K%da' % (t + 4)] - 1), lambda t=t: qk(t))
    at(p, q_mode)
    if wol:
        last['WO'] = 0
    else:
        at(max(ready('WO'), p), wo_pair)
    at(max(ready('WO'), p), tail_setup)
    if warm:
        at(last[warmpos] if warmpos else max(ready('WO'), p), warmup)
    if pdpos:
        assert last[pdpos] >= max(ready('WO'), p)
        at(last[pdpos], predirty)
    if two:
        assert not bal and not ctl
        pa = at(p + two[0], sm_maxA)
        at(pa, lambda: (sm_exp(0), sm_exp(1)))
        pa = at(p + two[1], lambda: (sm_exp(2), sm_exp(3)))
        for t in range(4):
            assert p + two[2 + t] >= max(pa, ready('V%db' % t)) and p + two[2 + t] < ready('K7b')
            at(p + two[2 + t], lambda t=t: (p_prep(t), pv(t)))
    for t in range(4, 8):
        p = at(ready('K%db' % (t | 1 if qkpair == 1 else 7 if qkpair == 2 else t)), lambda t=t: qk(t))
    at(p, sm_max)
    p0 = p
    for t in range(4 if two else 0, 8, 2):
        p = at(p0 + exo[t // 2] if exo else p + (sub if t % 4 else 0), lambda t=t: (sm_exp(t), sm_exp(t + 1)))
    at(p, sm_fin)
    late = []
    for t in range(4 if two else 0, 8):
        r = max(ready('V%db' % t), p + (pvo[t] if pvo and t < len(pvo) else 0))
        if r < N - 1 and t < 7:
            at(r, lambda t=t: (p_prep(t), pv(t)))
        else:
            late.append(t)
    if bal:
        b0 = (W0 * sub if bstart is None else bstart)
        b1 = (N - 1 if bend is None else bend)
        for i in range(b0, b1 if thrmask is None else b0):
            if (i - b0) % pub == 0:
                sched[i].insert(0, lambda i=i: b_pub(i))
            if (i - b0) % chk == 0 and i + Wn + 1 < N - 1:
                assert chk * 2 > Wn, 'only two result regs'
                sched[i].insert(0, lambda i=i: b_load(i))
                sched[i + Wn + 1].insert(0, lambda i=i: b_use(i))
        a('s_mov_b32 s%d, %d' % (sThr, bal - 1))
        a('s_mov_b32 s15, 0')
        if thrmask is not None:
            a('s_and_b32 s%d, s2, 7' % sThr)
            a('s_lshr_b32 s%d, %d, s%d' % (sThr, thrmask, sThr))
            a('s_and_b32 s%d, s%d, 1' % (sThr, sThr))
    cget = set()
    if verbose:
        for i in range(N):
            print(i, seq[i], [getattr(f, '__name__', '?') for f in sched[i]], file=sys.stderr)
    if ctl == 3:
        cfirst = cpts[0][1] * sub + 1
        for u in range(cpts[0][1], N // sub - 1):
            sched[u * sub + sub - 1].append(w_read)
            sched[u * sub + sub].insert(0, w_get)
        for k, (i, j) in enumerate(cpts):
            sched[i * sub + sub - 1].append(lambda k=k: w_add(k))
            sched[j * sub].insert(0, lambda k=k: w_use(k))
        a('s_mov_b32 s%d, 0' % sThr)
        a('s_mov_b32 s15, 0')
    elif ctl == 2:
        for k, (i, j) in enumerate(cpts):
            sched[i * sub + sub - 1].append(lambda k=k: s_add(k))
            sched[j * sub].insert(0, lambda k=k: s_use(k))
        cfirst = cpts[0][1] * sub + 1
        a('s_mov_b32 s%d, 0' % sThr)
        a('s_mov_b32 s15, 0')
    elif ctl:
        c0_ = max(pbar + 1, cstart or 0)
        c1_ = N - 1 if cend is None else cend
        k = 0
        assert CP * 2 > Wn
        fu = None
        for i in range(c0_, c1_, CP):
            if i + Wn + 1 >= N - 2:
                break
            sched[i].insert(0, lambda k=k: c_add(k))
            sched[i + Wn + 1].insert(0, lambda k=k: c_use(k))
            fu = fu or i + Wn + 1
            k += 1
        for i in range(fu, N - 1, sub if ctl == 1 else 1):
            sched[i].append(c_read)
            cget.add(i + 1)
        a('s_mov_b32 s%d, 0' % sThr)
        a('s_mov_b32 s15, 0')
    utok = []
    for i, (n, s) in enumerate(seq):
        if i >= W0 * sub and i - Wf(i) >= 0:
            a.wait_vm(utok[i - Wf(i)])
        if bal and i >= W0 * sub and i - Wlo >= 0:
            a('s_cmp_eq_u32 s%d, 0' % sThr)
            a('s_cbranch_scc1 L_b%d' % i)
            a('s_waitcnt vmcnt(%d)' % (a.vm - utok[i - Wlo]))
            a.label('L_b%d' % i)
        if i in cget:
            c_get()
        if ctl == 2 and stamps and i >= cfirst:
            a('s_add_u32 s15, s15, s%d' % sThr)
        if (ctl in (2, 3) and i >= cfirst) or (ctl == 1 and cget and i >= min(cget)):
            for li, wl in enumerate(Wl):
                a('s_cmp_eq_u32 s%d, %d' % (sThr, li))
                a('s_cbranch_scc1 L_c%d' % i)
                a('s_waitcnt vmcnt(%d)' % min(63, a.vm - utok[i - wl]))
            a.label('L_c%d' % i)
        if ts and i in ts:
            stamp()
            a.smem_out = False
        a.comment('unit %s.%d' % (n, s))
        utok.append(issue(n, s))
        for f in sched[i]:
            f()
    ool = []
    if wol == 2:
        issue('WO', 0)
    if wol == 8:
        issue('WO', (0, 1))
    a.label('L_tail')
    a.wait_lg()
    a('s_barrier')
    vA = vTmp
    a('s_lshl_b32 s%d, s%d, 5' % (sT1, sW))
    a('s_add_u32 s%d, s%d, %d' % (sT1, sT1, L_ML))
    a('v_mov_b32 v%d, s%d' % (vA, sT1))
    ML = vQ
    a('ds_read_b128 %s, v%d' % (vr(ML, 4), vA))
    a('ds_read_b128 %s, v%d offset:16' % (vr(ML + 4, 4), vA))
    a('v_mov_b32 v%d, %d' % (vA + 1, L_YP))
    a('ds_read_b128 %s, v%d' % (vr(ML + 8, 4), vA + 1))
    a('ds_read_b128 %s, v%d offset:16' % (vr(ML + 12, 4), vA + 1))
    if wol == 7:
        issue('WO', 0)
    a.wait_lg()
    Mx = vWt + 4
    a('v_max3_f32 v%d, v%d, v%d, v%d' % (Mx, ML, ML + 2, ML + 4))
    a('v_max_f32 v%d, v%d, v%d' % (Mx, Mx, ML + 6))
    for w in range(4):
        a('v_sub_f32 v%d, v%d, v%d' % (vWt + w, ML + 2 * w, Mx))
    for w in range(4):
        a('v_exp_f32 v%d, v%d' % (vWt + w, vWt + w))
    Ls = vWt + 5
    a('v_mul_f32 v%d, v%d, v%d' % (Ls, vWt, ML + 1))
    for w in range(1, 4):
        a('v_fmac_f32 v%d, v%d, v%d' % (Ls, vWt + w, ML + 2 * w + 1))
    a('v_rcp_f32 v%d, v%d' % (vWt + 6, Ls))
    a('v_log_f32 v%d, v%d' % (Ls, Ls))
    for w in range(4):
        a('v_mul_f32 v%d, v%d, v%d' % (vWt + w, vWt + w, vWt + 6))
    GP = vTmp + 4
    a('v_add_f32 v%d, v%d, v%d' % (GP + 2, Mx, Ls))
    a('v_xor_b32 v%d, v%d, v%d' % (GP + 3, GP + 2, vTag))
    for c in range(2):
        a('v_add_f32 v%d, v%d, v%d' % (ML + 8 + c, ML + 8 + c, ML + 10 + c))
        a('v_add_f32 v%d, v%d, v%d' % (ML + 12 + c, ML + 12 + c, ML + 14 + c))
    a('v_lshlrev_b32 v%d, 16, v%d' % (vB2, vB2))
    for c in range(2):
        a('v_add_f32 v%d, v%d, v%d' % (vY + c, ML + 8 + c, ML + 12 + c))
    for c in range(2):
        rnd(vY + c, vY + c)
    for c in range(2):
        a('v_add_f32 v%d, v%d, v%d' % (vY + c, vY + c, vB2))
    for c in range(2):
        rnd(vY + c, vY + c)
    vXu = vWt + 6
    unpack(vXu, vXp, 1)
    if wol == 4:
        issue('WO', 0)
    if wol == 8:
        issue('WO', (2, 3))
    if wol == 9:
        issue('WO', (0, 1))
    for t in late:
        p_prep(t)
        if wol == 3 and t == 7:
            a.wait_vm(tok['V7a'])
            issue('WO', 0)
        if wol == 5 and t == 7:
            issue('WO', 0)
        if wol == 9 and t == 7:
            issue('WO', (2, 3))
        pv(t, fine=True)
    if wol == 6:
        issue('WO', 0)
    stamp()
    a('ds_write_b128 v%d, %s' % (vRw, vr(vO, 4)))
    a('ds_write_b128 v%d, %s offset:%d' % (vRw, vr(vO + 4, 4), 1152 if red2 else 16))
    a.wait_lg()
    a('s_barrier')
    R = vQ
    lt = [a('ds_read_b64 %s, v%d offset:%d' % (vr(R + 2 * w, 2), vRr, w * (2304 if red2 else 2048))) for w in range(4)]
    a('s_mov_b32 s%d, 0' % sCnt)
    a('s_cmp_lg_u32 s%d, 0' % sMode)
    for w in range(4):
        a.wait_lg(lt[w])
        if red2:
            sel = 'op_sel:[0,1,0] op_sel_hi:[1,1,1]' if w & 1 else 'op_sel_hi:[1,0,1]'
            if w == 0:
                a('v_pk_mul_f32 %s, %s, %s op_sel_hi:[1,0]' % (vr(GP, 2), vr(R, 2), vr(vWt, 2)))
            else:
                a('v_pk_fma_f32 %s, %s, %s, %s %s' % (vr(GP, 2), vr(R + 2 * w, 2), vr(vWt + (w & 2), 2), vr(GP, 2), sel))
            continue
        for c in range(2):
            if w == 0:
                a('v_mul_f32 v%d, v%d, v%d' % (GP + c, vWt, R + c))
            else:
                a('v_fmac_f32 v%d, v%d, v%d' % (GP + c, vWt + w, R + 2 * w + c))
    xor3(GP + 3, GP + 3, GP, GP + 1)
    a('s_cbranch_scc1 L_pslow')
    a('buffer_store_dwordx4 %s, v%d, %s, s%d offen %s' % (vr(GP, 4), vT16, sr(rWS, 4), sPub, pflag))
    a.label('L_pback')
    stamp()
    Gq = vQ
    GO = vTmp
    C = vQ + 16
    Mx = C + 4
    K = C + 12
    A0, A1, Wt = C + 8, C + 9, C + 10
    if pm:
        sM = 60
        for i in range(4):
            a('v_mov_b32 v%d, 0' % (GO + i))
        for jj in range(4):
            a('buffer_load_dwordx4 %s, v%d, %s, s%d offen %s' % (vr(Gq + 4 * jj, 4), vPo, sr(rWS, 4), sGa + jj, pld))
        if wol:
            a('s_waitcnt vmcnt(4)')
            wo_pair(False)
        a.label('L_pg')
        a.wait_vm0()
        if pst:
            a('s_memrealtime %s' % sr(sST + 6, 2))
        for jj in range(4):
            xor3(K + jj, Gq + 4 * jj, Gq + 4 * jj + 1, Gq + 4 * jj + 2)
        for jj in range(4):
            xor3(K + jj, K + jj, Gq + 4 * jj + 3, vTag)
        a('v_max3_f32 v%d, v%d, v%d, v%d' % (Mx, Gq + 2, Gq + 6, Gq + 10))
        a('v_or3_b32 v%d, v%d, v%d, v%d' % (C + 6, K, K + 1, K + 2))
        a('v_max_f32 v%d, v%d, v%d' % (Mx, Mx, Gq + 14))
        a('v_or_b32 v%d, v%d, v%d' % (C + 6, C + 6, K + 3))
        a('v_cmp_ne_u32 vcc, 0, v%d' % (C + 6))
        a('v_max_f32_dpp v%d, v%d, v%d row_ror:8 row_mask:0xf bank_mask:0xf' % (Mx, Mx, Mx))
        a('v_mov_b32 v%d, v%d' % (C + 5, Mx))
        a('s_cbranch_vccnz L_pretry')
        a.label('L_pcont')
        if om == 3:
            a('s_cmp_lg_u32 s%d, %d' % (sW, ow))
            a('s_cbranch_scc1 L_noe')
            a('buffer_load_dwordx4 %s, v%d, %s, s%d offen sc1' % (vr(vS, 4), vOo if olay == 'prod' else vT16, sr(rWS, 4), sGa + 5))
            a.label('L_noe')
        a('v_permlane16_swap_b32 v%d, v%d' % (Mx, C + 5))
        a('v_max_f32 v%d, v%d, v%d' % (Mx, Mx, C + 5))
        a('v_mov_b32 v%d, v%d' % (C + 5, Mx))
        a('v_permlane32_swap_b32 v%d, v%d' % (Mx, C + 5))
        a('v_max_f32 v%d, v%d, v%d' % (Mx, Mx, C + 5))
        for jj in range(4):
            a('v_sub_f32 v%d, v%d, v%d' % (C + jj, Gq + 4 * jj + 2, Mx))
        for jj in range(4):
            a('v_exp_f32 v%d, v%d' % (C + jj, C + jj))
        a('v_pk_mul_f32 %s, %s, %s op_sel_hi:[1,0]' % (vr(A0, 2), vr(Gq, 2), vr(C, 2)))
        a('v_add_f32 v%d, v%d, v%d' % (Wt, C, C + 1))
        a('v_pk_fma_f32 %s, %s, %s, %s op_sel:[0,1,0] op_sel_hi:[1,1,1]' % (vr(A0, 2), vr(Gq + 4, 2), vr(C, 2), vr(A0, 2)))
        a('v_add_f32 v%d, v%d, v%d' % (Wt, Wt, C + 2))
        a('v_pk_fma_f32 %s, %s, %s, %s op_sel_hi:[1,0,1]' % (vr(A0, 2), vr(Gq + 8, 2), vr(C + 2, 2), vr(A0, 2)))
        a('v_add_f32 v%d, v%d, v%d' % (Wt, Wt, C + 3))
        a('v_pk_fma_f32 %s, %s, %s, %s op_sel:[0,1,0] op_sel_hi:[1,1,1]' % (vr(A0, 2), vr(Gq + 12, 2), vr(C + 2, 2), vr(A0, 2)))
        allred([Wt, A0, A1], 'add_f32', [C, C + 1, C + 2], bits=(3, 4, 5))
        a('v_rcp_f32 v%d, v%d' % (Wt, Wt))
        a('v_pk_mul_f32 %s, %s, %s op_sel_hi:[1,0]' % (vr(A0, 2), vr(A0, 2), vr(Wt, 2)))
        a('v_cvt_pk_bf16_f32 v%d, v%d, v%d' % (A0, A0, A1))
        for k in range(8):
            for c in range(2):
                a('v_dot2c_f32_bf16_dpp v%d, v%d, v%d row_newbcast:%d row_mask:0xf bank_mask:0xf' % (GO + c + 2 * (k & 1), A0, vWOp + 8 * c + k, k))
        a('v_pk_add_f32 %s, %s, %s' % (vr(GO, 2), vr(GO, 2), vr(GO + 2, 2)))

        def pretry():
            a.label('L_pretry')
            a('s_add_u32 s%d, s%d, 1' % (sCnt, sCnt))
            a('s_cmp_ge_u32 s%d, %d' % (sCnt, SPIN))
            a('s_cbranch_scc1 L_pcont')
            if pst:
                a('s_memrealtime %s' % sr(sST + 4, 2))
            if pm == 1:
                a('s_mov_b64 exec, vcc')
            for jj in range(4):
                if pm == 2:
                    a('v_cmp_ne_u32 vcc, 0, v%d' % (K + jj))
                    a('s_mov_b64 exec, vcc')
                a('buffer_load_dwordx4 %s, v%d, %s, s%d offen %s' % (vr(Gq + 4 * jj, 4), vPo, sr(rWS, 4), sGa + jj, pld))
                if pm == 2:
                    a('s_mov_b64 exec, -1')
            a('s_mov_b64 exec, -1')
            a('s_branch L_pg')
        ool.append(pretry)
    else:
        a.label('L_pg')
        if pst:
            a('s_memrealtime %s' % sr(sST + 4, 2))
        for jj in range(4):
            a('buffer_load_dwordx4 %s, v%d, %s, s%d offen %s' % (vr(Gq + 4 * jj, 4), vPo, sr(rWS, 4), sGa + jj, pld))
        for i in range(4):
            a('v_mov_b32 v%d, 0' % (GO + i))
        a.wait_vm0()
        if pst:
            a('s_memrealtime %s' % sr(sST + 6, 2))
        a('v_max3_f32 v%d, v%d, v%d, v%d' % (Mx, Gq + 2, Gq + 6, Gq + 10))
        a('v_max_f32 v%d, v%d, v%d' % (Mx, Mx, Gq + 14))
        for jj in range(2):
            xor3(K + jj, Gq + 4 * jj, Gq + 4 * jj + 1, Gq + 4 * jj + 2)
        a('v_max_f32_dpp v%d, v%d, v%d row_ror:8 row_mask:0xf bank_mask:0xf' % (Mx, Mx, Mx))
        a('v_mov_b32 v%d, v%d' % (C + 5, Mx))
        for jj in range(2, 4):
            xor3(K + jj, Gq + 4 * jj, Gq + 4 * jj + 1, Gq + 4 * jj + 2)
        a('v_permlane16_swap_b32 v%d, v%d' % (Mx, C + 5))
        a('v_max_f32 v%d, v%d, v%d' % (Mx, Mx, C + 5))
        a('v_mov_b32 v%d, v%d' % (C + 5, Mx))
        for jj in range(2):
            xor3(K + jj, K + jj, Gq + 4 * jj + 3, vTag)
        a('v_permlane32_swap_b32 v%d, v%d' % (Mx, C + 5))
        a('v_max_f32 v%d, v%d, v%d' % (Mx, Mx, C + 5))
        for jj in range(4):
            a('v_sub_f32 v%d, v%d, v%d' % (C + jj, Gq + 4 * jj + 2, Mx))
        for jj in range(4):
            a('v_exp_f32 v%d, v%d' % (C + jj, C + jj))
        a('v_mul_f32 v%d, v%d, v%d' % (A0, C, Gq))
        a('v_mul_f32 v%d, v%d, v%d' % (A1, C, Gq + 1))
        a('v_add_f32 v%d, v%d, v%d' % (Wt, C, C + 1))
        for jj in range(1, 4):
            a('v_fmac_f32 v%d, v%d, v%d' % (A0, C + jj, Gq + 4 * jj))
            a('v_fmac_f32 v%d, v%d, v%d' % (A1, C + jj, Gq + 4 * jj + 1))
            if jj > 1:
                a('v_add_f32 v%d, v%d, v%d' % (Wt, Wt, C + jj))
        allred([Wt, A0, A1], 'add_f32', [C, C + 1, C + 2], bits=(3, 4, 5))
        a('v_rcp_f32 v%d, v%d' % (Wt, Wt))
        for jj in range(2, 4):
            xor3(K + jj, K + jj, Gq + 4 * jj + 3, vTag)
        a('v_mul_f32 v%d, v%d, v%d' % (A0, A0, Wt))
        a('v_mul_f32 v%d, v%d, v%d' % (A1, A1, Wt))
        a('v_cvt_pk_bf16_f32 v%d, v%d, v%d' % (A0, A0, A1))
        a('v_or3_b32 v%d, v%d, v%d, v%d' % (K, K, K + 1, K + 2))
        a('v_or_b32 v%d, v%d, v%d' % (K, K, K + 3))
        for k in range(8):
            for c in range(2):
                a('v_dot2c_f32_bf16_dpp v%d, v%d, v%d row_newbcast:%d row_mask:0xf bank_mask:0xf' % (GO + c + 2 * (k & 1), A0, vWOp + 8 * c + k, k))
        a('v_cmp_ne_u32 vcc, 0, v%d' % K)
        a('s_add_u32 s%d, s%d, 1' % (sCnt, sCnt))
        a('v_add_f32 v%d, v%d, v%d' % (GO, GO, GO + 2))
        a('v_add_f32 v%d, v%d, v%d' % (GO + 1, GO + 1, GO + 3))
        a('s_cbranch_vccz L_pok')
        if sleep:
            a('s_sleep %d' % sleep)
        a('s_cmp_lt_u32 s%d, %d' % (sCnt, SPIN))
        a('s_cbranch_scc1 L_pg')
    a.label('L_pok')
    a('ds_write_b64 v%d, %s' % (vR2w, vr(GO, 2)))
    stamp()
    a.wait_lg()
    a('s_barrier')
    a('s_cmp_lg_u32 s%d, 0' % sW)
    a('s_cbranch_scc1 %s' % ('L_w1' if ow else 'L_clean' if clean else 'L_fin'))
    lt = [a('ds_read_b64 %s, v%d offset:%d' % (vr(R + 2 * w, 2), vR2w, w * 512)) for w in range(4)]
    a('s_mov_b32 s%d, 0' % sCnt)
    a.wait_lg(lt[1])
    a('v_pk_add_f32 %s, %s, %s' % (vr(R, 2), vr(R, 2), vr(R + 2, 2)))
    a.wait_lg(lt[3])
    a('v_pk_add_f32 %s, %s, %s' % (vr(R + 4, 2), vr(R + 4, 2), vr(R + 6, 2)))
    a('v_pk_add_f32 %s, %s, %s' % (vr(GO, 2), vr(R, 2), vr(R + 4, 2)))
    vOst, vOld = (vT16, vOo) if olay == 'prod' else (vOo, vT16)
    if oat:
        a('v_mov_b32 v%d, v%d' % (GO + 2, GO + 1))
        a('v_xor_b32 v%d, v%d, v%d' % (GO + 1, GO, vTag))
        a('v_xor_b32 v%d, v%d, v%d' % (GO + 3, GO + 2, vTag))
        a('buffer_atomic_swap_x2 %s, v%d, %s, s%d offen %s' % (vr(GO, 2), vOst, sr(rWS, 4), sGa + 4, oflag))
        a('buffer_atomic_swap_x2 %s, v%d, %s, s%d offen offset:8 %s' % (vr(GO + 2, 2), vOst, sr(rWS, 4), sGa + 4, oflag))
    else:
        xor3(GO + 2, GO, GO + 1, vTag)
        a('buffer_store_dwordx4 %s, v%d, %s, s%d offen %s' % (vr(GO, 4), vOst, sr(rWS, 4), sGa + 4, oflag))
    if clean == 1:
        a('buffer_store_dwordx4 %s, v%d, %s, s%d offen sc1' % (vr(GP, 4), vT16, sr(rWS, 4), sPub))
    stamp()
    if ow:
        a('s_branch L_fin')
        a.label('L_w1')
        a('s_cmp_lg_u32 s%d, %d' % (sW, ow))
        a('s_cbranch_scc1 L_fin')
        a('s_mov_b32 s%d, 0' % sCnt)
    a('s_lshl_b32 s%d, s%d, 2' % (sT1, sP))
    a('v_mov_b32 v%d, s%d' % (Gq + 8, sT1))
    def ofin(B):
        if oat:
            assert B == Gq
            xor3(C + 4, B, B + 1, vTag)
            xor3(C + 5, B + 2, B + 3, vTag)
            a('v_mov_b32 v%d, v%d' % (B + 1, B + 2))
            a('v_or_b32 v%d, v%d, v%d' % (C + 4, C + 4, C + 5))
            a('v_cmp_ne_u32 vcc, 0, v%d' % (C + 4))
        else:
            xor3(C + 4, B, B + 1, B + 2)
            a('v_cmp_ne_u32 vcc, v%d, v%d' % (C + 4, vTag))
        if B != Gq:
            for c in range(2):
                a('v_add_f32_dpp v%d, v%d, v%d row_ror:1 row_mask:0xf bank_mask:0xf' % (Gq + c, B + c, B + c))
            allred([Gq, Gq + 1], 'add_f32', [C, C + 1], bits=(1, 2, 3, 4, 5))
        else:
            allred([Gq, Gq + 1], 'add_f32', [C, C + 1])
        for c in range(2):
            rnd(Gq + c, Gq + c)
        for c in range(2):
            a('v_add_f32 v%d, v%d, v%d' % (Gq + c, Gq + c, vXu + c))
        for c in range(2):
            rnd(Gq + c, Gq + c)
        for c in range(2):
            a('v_add_f32 v%d, v%d, v%d' % (Gq + c, Gq + c, vY + c))
        a('v_cvt_pk_bf16_f32 v%d, v%d, v%d' % (Gq, Gq, Gq + 1))
    if om:
        B = vS
        a('buffer_load_dwordx4 %s, v%d, %s, s%d offen sc1' % (vr(B, 4), vOld, sr(rWS, 4), sGa + 5))
        a.label('L_og')
        a('s_waitcnt vmcnt(%d)' % (1 if om == 3 else 0))
        if pst:
            a('s_memrealtime %s' % sr(sST + 10, 2))
        xor3(C + 4, B, B + 1, B + 2)
        for c in range(2):
            a('v_add_f32_dpp v%d, v%d, v%d row_ror:1 row_mask:0xf bank_mask:0xf' % (Gq + c, B + c, B + c))
        a('v_cmp_ne_u32 vcc, v%d, v%d' % (C + 4, vTag))
        allred([Gq, Gq + 1], 'add_f32', [C, C + 1], bits=(1,))
        a('s_cbranch_vccnz L_oretry')
        a.label('L_ocont')
        allred([Gq, Gq + 1], 'add_f32', [C, C + 1], bits=(2, 3, 4, 5))
        for c in range(2):
            rnd(Gq + c, Gq + c)
        a('v_pk_add_f32 %s, %s, %s' % (vr(Gq, 2), vr(Gq, 2), vr(vXu, 2)))
        for c in range(2):
            rnd(Gq + c, Gq + c)
        a('v_pk_add_f32 %s, %s, %s' % (vr(Gq, 2), vr(Gq, 2), vr(vY, 2)))
        a('v_cvt_pk_bf16_f32 v%d, v%d, v%d' % (Gq, Gq, Gq + 1))

        def oretry():
            a.label('L_oretry')
            a('s_add_u32 s%d, s%d, 1' % (sCnt, sCnt))
            a('s_cmp_ge_u32 s%d, %d' % (sCnt, SPIN))
            a('s_cbranch_scc1 L_ocont')
            if pst:
                a('s_memrealtime %s' % sr(sST + 8, 2))
            if om in (1, 3):
                a('s_mov_b64 exec, vcc')
            if sleep:
                a('s_sleep %d' % sleep)
            a('buffer_load_dwordx4 %s, v%d, %s, s%d offen sc1' % (vr(B, 4), vOld, sr(rWS, 4), sGa + 5))
            a('s_mov_b64 exec, -1')
            a('s_branch L_og')
        ool.append(oretry)
    elif opoll == 1:
        a.label('L_og')
        if pst:
            a('s_memrealtime %s' % sr(sST + 8, 2))
        a('buffer_load_dwordx4 %s, v%d, %s, s%d offen sc1' % (vr(Gq, 4), vOld, sr(rWS, 4), sGa + 5))
        a.wait_vm0()
        if pst:
            a('s_memrealtime %s' % sr(sST + 10, 2))
        ofin(Gq)
        a('s_add_u32 s%d, s%d, 1' % (sCnt, sCnt))
        a('s_cbranch_vccz L_ook')
        if sleep:
            a('s_sleep %d' % sleep)
        a('s_cmp_lt_u32 s%d, %d' % (sCnt, SPIN))
        a('s_cbranch_scc1 L_og')
    else:
        OB = vS
        assert opoll * 4 <= 64
        for k in range(1, opoll):
            a('v_mov_b32 v%d, 0' % (OB + 4 * k))
            a('v_mov_b32 v%d, 0' % (OB + 4 * k + 1))
            a('v_not_b32 v%d, v%d' % (OB + 4 * k + 2, vTag))
        a.label('L_og')
        for k in range(opoll):
            a('buffer_load_dwordx4 %s, v%d, %s, s%d offen sc1' % (vr(OB + 4 * k, 4), vOld, sr(rWS, 4), sGa + 5))
            a('s_waitcnt vmcnt(%d)' % (opoll - 1))
            ofin(OB + 4 * ((k + 1) % opoll))
            a('s_cbranch_vccz L_ook')
        a('s_add_u32 s%d, s%d, 1' % (sCnt, sCnt))
        a('s_cmp_lt_u32 s%d, %d' % (sCnt, SPIN))
        a('s_cbranch_scc1 L_og')
    a.label('L_ook')
    a('s_mov_b64 exec, 1')
    a('global_store_dword v%d, v%d, %s %s' % (Gq + 8, Gq, sr(pOUT, 2), oflg))
    a('s_cmp_lg_u32 s2, 0')
    a('s_cbranch_scc1 L_fin')
    a('buffer_store_dword v%d, off, %s, 0 %s' % (vTag, sr(rWS, 4), tflag))
    if dbgpc:
        a('v_mov_b32 v%d, s%d' % (vS + 8, sPC))
        a('v_mov_b32 v%d, s%d' % (vS + 9, sPC + 1))
        a('v_mov_b32 v%d, 0' % (vS + 10))
        a('global_store_dwordx2 v%d, %s, s[26:27]' % (vS + 10, vr(vS + 8, 2)))
    a.label('L_fin')
    if dbg:
        a('s_memrealtime s[78:79]')
        a.wait_lg()
        a('s_mov_b64 exec, 1')
        a('v_mov_b32 v%d, 0' % vS)
        for i in range(nst[0]):
            if i == 10:
                continue
            a('v_mov_b32 v%d, s%d' % (vS + 1, sST + 2 * i))
            a('global_atomic_umax v%d, v%d, s[26:27] offset:%d' % (vS, vS + 1, 4 * i))
        a('v_mov_b32 v%d, s78' % (vS + 1))
        a('global_atomic_umax v%d, v%d, s[26:27] offset:%d' % (vS, vS + 1, 4 * 11))
        for k, i in enumerate((0, 2, 7)):
            a('s_not_b32 s78, s%d' % (sST + 2 * i))
            a('v_mov_b32 v%d, s78' % (vS + 1))
            a('global_atomic_umax v%d, v%d, s[26:27] offset:%d' % (vS, vS + 1, 4 * (12 + k)))
    elif stamps:
        a('s_memrealtime s[78:79]')
        a.wait_lg()
        a('s_waitcnt vmcnt(0)')
        a('s_mov_b64 exec, 1')
        a('s_getreg_b32 s%d, hwreg(HW_REG_XCC_ID)' % sT2)
        for i in range(11):
            a('v_mov_b32 v%d, s%d' % (vS + i, sST + 2 * i if i < nst[0] else sST))
        a('v_mov_b32 v%d, s78' % (vS + 11))
        a('v_mov_b32 v%d, s%d' % (vS + 12, sCnt))
        a('v_mov_b32 v%d, s%d' % (vS + 13, sT2))
        a('v_mov_b32 v%d, s%d' % (vS + 14, sMode))
        a('v_mov_b32 v%d, s15' % (vS + 15))
        a('s_lshl_b32 s%d, s2, 2' % sT1)
        a('s_add_u32 s%d, s%d, s%d' % (sT1, sT1, sW))
        a('s_lshl_b32 s%d, s%d, 6' % (sT1, sT1))
        a('s_add_u32 s%d, s%d, 0x%x' % (sT1, sT1, WS_STAMP))
        for i in range(4):
            a('buffer_store_dwordx4 %s, off, %s, s%d offset:%d' % (vr(vS + 4 * i, 4), sr(rWS, 4), sT1, 16 * i))
    a('s_endpgm')
    a.label('L_qretry')
    a.cond += 1
    a('s_mov_b32 s%d, 0' % sCnt)
    a.label('L_qr')
    q_loads()
    a('s_waitcnt vmcnt(0)')
    q_check()
    a('s_cbranch_vccz L_qok')
    a('s_add_u32 s%d, s%d, 1' % (sCnt, sCnt))
    a('s_cmp_lt_u32 s%d, %d' % (sCnt, SPIN))
    a('s_cbranch_scc1 L_qr')
    a('s_branch L_qok')
    if clean:
        a.label('L_clean')
        if clean == 1:
            a('buffer_store_dwordx4 %s, v%d, %s, s%d offen sc1' % (vr(GP, 4), vT16, sr(rWS, 4), sPub))
        else:
            a('s_cmp_lg_u32 s%d, 1' % sW)
            a('s_cbranch_scc1 L_fin')
            if clean == 2:
                a('s_cmp_lg_u32 s%d, 0' % sC)
                a('s_cbranch_scc1 L_fin')
            a('buffer_wbl2 sc1')
        a('s_branch L_fin')
    for f in ool:
        f()
    a.label('L_pslow')
    a('buffer_store_dwordx4 %s, v%d, %s, s%d offen sc1' % (vr(GP, 4), vT16, sr(rWS, 4), sPub))
    a('s_branch L_pback')
    a.cond -= 1
    a.label('L_codeend')
    a('s_endpgm')
    a.raw('.section .rodata,"a"')
    a.raw('.p2align 6')
    a.raw('.amdhsa_kernel ' + KN)
    for l in ('.amdhsa_next_free_vgpr 512', '.amdhsa_next_free_sgpr 102', '.amdhsa_accum_offset 256',
              '.amdhsa_group_segment_fixed_size 0', '.amdhsa_kernarg_size 104', '.amdhsa_user_sgpr_count 2',
              '.amdhsa_user_sgpr_kernarg_segment_ptr 1', '.amdhsa_system_sgpr_workgroup_id_x 1',
              '.amdhsa_float_denorm_mode_32 3'):
        a.raw('  ' + l)
    a.raw('.end_amdhsa_kernel')
    if verbose:
        print('late', late, 'N', N, 'vgpr', va.next, file=sys.stderr)
    return a.text()


if __name__ == '__main__':
    out = sys.argv[1]
    kw = eval('dict(%s)' % (sys.argv[2] if len(sys.argv) > 2 else ''))
    open(out, 'w').write(gen(verbose=True, **kw))
```

```python
import sys, math, struct
from asmlib import *

KN = "parallel_sum__gqa_block_cached__mixer_token_mlp__decode_kernel"
REF = "parallel_sum__gqa_block_cached__mixer_token_mlp__decode.s.ref"


def f32(x):
    return '0x%08x' % struct.unpack('<I', struct.pack('<f', x))[0]


WS_EPOCH = 0
WS_BRD = 0x8000
WS_Q = 0x10000
WS_PART = 0x100000
WS_OUTP = 0x200000
WS_STAMP = 0x300000
WS_SIZE = 0x400000
L_K = 0
L_WQ = 131072
L_RED = L_WQ
L_RED2 = L_RED + 9216
L_XN = 147456
L_QL = L_XN + 1024
L_ML = L_QL + 1024
L_YP = L_ML + 128
L_XF = L_YP + 32
L_CT = L_XF + 32
LDS_BYTES = 150016
OST = 1152
SPIN = 4000
LOG2E = 1.4426950408889634


def gen(W0=2, W=2, sub=1, mapping='mod', stamps=False, nv_pre=4, qpos='V0b', d1=1, d2=1, wo_pos='K3b', prefetch=True,
        tailpf=True, sleep=0, verbose=False, PST=4096, pflag='', pld='sc1', skip=(), dbg=False, clean=0, force=None, wqskew=0, gran=4, bal=0, Wlo=3, pub=2, chk=2, theta=0, bstart=None, bend=None, thrmask=None,
        pdpos=None, olay='prod', CST=1024, opoll=1, pexit=0, ts=None,
        ctl=0, NC=16, CP=2, Wl=(1,), dth=(2,), cstart=None, cend=None, CSTR=256, cforce=None, cflag='sc0 sc1', WSB=None, cpts=None, clat=None, cop='add', wsch=None, qflag='sc1', qkpair=0, warm=0, warmpos=None, vwarm=0, OUTP=None, qld='sc1', tld='sc1', pst=0, oat=0, oflag='sc1', pm=0, om=0, ow=0, red2=0, tflag='sc1', oflg='', polK=0, polV=0, wol=0, xpos=0, wwarm=None, wqa=None, wqe=1, pvo=None, exo=None, two=None, lnp=0, pfpos=0, dbgpc=0, aln=0, skp=0, r0=0):
    a = Asm()
    WS_OUTP = OUTP or globals()['WS_OUTP']
    hdr = [l for l in open(REF).read().split('\n') if l.startswith(';') and '@launch' not in l]
    for l in hdr:
        a.raw(l)
    a.raw('; @launch grid=(256,1,1) block=(256,1,1) lds=%d' % LDS_BYTES)
    a.raw('.amdgcn_target "amdgcn-amd-amdhsa--gfx950"')
    a.raw('.text')
    a.raw('.globl ' + KN)
    if aln:
        a.raw('.p2align %d' % aln)
    if skp:
        a.raw('.fill %d, 4, 0xbf800000' % (skp // 4))
    a.raw('.p2align 8')
    a.raw('.type %s,@function' % KN)
    a.label(KN)

    sW = 3
    pX, pK, pV, pWQ, pWO, pW1, pB1, pW2, pB2, pOUT, pWS = 4, 6, 8, 10, 12, 16, 18, 20, 22, 24, 28
    rK, rV, rWQ, rWO, rWS, rW1, rB1, rW2 = 32, 36, 40, 44, 48, 52, 56, 60
    sG, sC, sP, sJ = 64, 65, 66, 67
    sKL = 68
    sT0, sT1, sT2 = 69, 70, 71
    sOff = 72
    sCnt = 73
    sQg, sPub = 74, 75
    sPC = 76
    sXcc, sMode = 30, 31
    sC0, sC1 = 78, 79
    sST = 80
    sThr = 14
    sCA, sCD = 16, 18
    sTagS = 14
    nst = [0]

    def stamp(mid=False):
        if mid and ts:
            return
        if stamps:
            assert nst[0] < 11
            a('s_memrealtime %s' % sr(sST + 2 * nst[0], 2))
            nst[0] += 1

    va = VAlloc(1)
    vL = va(); vTag = va(); vT16 = va(); vL4 = va()
    vKo = va(4); vKa = va(4); vVo = va(2); vSel = va(4)
    vM = va(); vLs = va(); vY = va(2); vXp = va(); vB2 = va(); vJunk = va(); vTmp = va(8, 4)
    vZ = va(32, 4)
    vQ = va(32, 4)
    vKf = va(32, 4)
    vS = va(64, 4)
    vAS = va(8, 4)
    vO = va(8, 4)
    vWt = va(8, 4)
    vWOr = va(16, 4)
    vBv = va(4, 4); vBst = vBv + 1; vBld = vBv + 2; vBt = vBv + 3; vBr = va(2)
    vX = vZ; vXf = vZ + 4; vW1 = vZ + 12; vB1 = vZ + 16; vW2 = vZ + 20; vH = vZ + 24
    vWOp = vZ
    T = vKf

    def rnd(d, s):
        a('v_cvt_pk_bf16_f32 v%d, 0, v%d' % (d, s))

    def allred(regs, op, tmps, bits=(0, 1, 2, 3, 4, 5)):
        for b in bits:
            if b < 4:
                for r in regs:
                    a('v_%s_dpp v%d, v%d, v%d row_ror:%d row_mask:0xf bank_mask:0xf' % (op, r, r, r, 1 << b))
            else:
                for r, t in zip(regs, tmps):
                    a('v_mov_b32 v%d, v%d' % (t, r))
                for r, t in zip(regs, tmps):
                    a('v_permlane%d_swap_b32 v%d, v%d' % (16 if b == 4 else 32, r, t))
                for r, t in zip(regs, tmps):
                    a('v_%s v%d, v%d, v%d' % (op, r, r, t))

    def xor3(d, x, y, z):
        a('v_bitop3_b32 v%d, v%d, v%d, v%d bitop3:0x96' % (d, x, y, z))

    a('s_cmp_lt_u32 s2, 256')
    a('s_cbranch_scc1 L_go')
    a('s_endpgm')
    a.label('L_go')
    stamp()
    a('s_load_dwordx16 s[4:19], s[0:1], 0')
    a('s_load_dwordx8 s[20:27], s[0:1], 64')
    a('s_load_dwordx2 s[28:29], s[0:1], 96')
    a('v_lshrrev_b32 v%d, 6, v0' % vTmp)
    a('v_and_b32 v%d, 63, v0' % vL)
    a('v_readfirstlane_b32 s%d, v%d' % (sW, vTmp))
    a('s_getpc_b64 %s' % sr(sPC, 2))
    a.label('L_pc')
    if prefetch:
        a('s_lshr_b32 s%d, s2, 3' % sT0)
        a('s_and_b32 s%d, s%d, 3' % (sT0, sT0))
        a('s_lshl_b32 s%d, s%d, 2' % (sT0, sT0))
        a('s_add_u32 s%d, s%d, s%d' % (sT0, sT0, sW))
        a('s_lshl_b32 s%d, s%d, 10' % (sT0, sT0))
        a('v_and_b32 v%d, 7, v0' % (vTmp + 1))
        a('v_lshlrev_b32 v%d, 7, v%d' % (vTmp + 1, vTmp + 1))
        a('v_add_u32 v%d, s%d, v%d' % (vTmp + 1, sT0, vTmp + 1))
        a('v_min_u32 v%d, L_codeend-L_pc-4, v%d' % (vTmp + 1, vTmp + 1))
        if not pfpos:
            a('global_load_dword v%d, v%d, %s' % (vJunk, vTmp + 1, sr(sPC, 2)))
    a('s_and_b32 s%d, s2, 7' % sG)
    a('s_lshr_b32 s%d, s2, 3' % sC)
    a('s_lshl_b32 s%d, s%d, 5' % (sP, sG))
    a('s_add_u32 s%d, s%d, s%d' % (sP, sP, sC))
    a('s_lshr_b32 s%d, s%d, 3' % (sT1, sC))
    a('s_lshl_b32 s%d, s%d, 2' % (sT1, sT1))
    a('s_add_u32 s%d, s%d, s%d' % (sT1, sT1, sW))
    a('s_lshl_b32 s%d, s%d, 18' % (sT1, sT1))
    sG4, sWqo = sCnt, sMode
    WS_XC = WS_BRD
    if wqa:
        assert mapping == 'mod' and sorted(sum(wqa, [])) == list(range(8)) and not bal
        NB = max(len(l) for l in wqa)
        TB = [sum((l[b] if b < len(l) else 15) << (4 * x) for x, l in enumerate(wqa)) for b in range(NB)]
        a('s_lshl_b32 s%d, s%d, 2' % (sG4, sG))
        a('s_and_b32 s%d, s%d, 7' % (sT2, sC))
        a('s_lshl_b32 s%d, s%d, 7' % (sT2, sT2))
        a('s_add_u32 s%d, s%d, s%d' % (sWqo, sT1, sT2))
        a('s_lshr_b32 s%d, 0x%x, s%d' % (sOff, TB[0], sG4))
        a('s_and_b32 s%d, s%d, 15' % (sOff, sOff))
        a('s_lshl_b32 s%d, s%d, 10' % (sOff, sOff))
        a('s_add_u32 s%d, s%d, s%d' % (sT1, sWqo, sOff))
    else:
        a('s_lshl_b32 s%d, s%d, 10' % (sT2, sG))
        a('s_add_u32 s%d, s%d, s%d' % (sT1, sT1, sT2))
        a('s_and_b32 s%d, s%d, 7' % (sT2, sC))
        a('s_lshl_b32 s%d, s%d, 7' % (sT2, sT2))
        a('s_add_u32 s%d, s%d, s%d' % (sT1, sT1, sT2))

    def hb(b, d):
        a('s_lshr_b32 s%d, 0x%x, s%d' % (d, TB[b], sG4))
        a('s_and_b32 s%d, s%d, 15' % (d, d))
        a('s_cmp_eq_u32 s%d, 15' % d)
    sKb = sC
    if mapping == 'mod':
        a('s_mov_b32 s%d, s%d' % (sJ, sP))
    elif mapping == 'stk':
        a('s_lshr_b32 s%d, s2, 6' % sJ)
        a('s_and_b32 s%d, s%d, 7' % (sT0, sC))
        a('s_lshr_b32 s%d, s2, 2' % sKb)
        a('s_xor_b32 s%d, s%d, s%d' % (sKb, sKb, sJ))
        a('s_xor_b32 s%d, s%d, %d' % (sKb, sKb, polK))
        a('s_and_b32 s%d, s%d, 1' % (sKb, sKb))
        a('s_lshl_b32 s%d, s%d, 13' % (sKb, sKb))
        a('s_and_b32 s%d, s2, 1' % sT2)
        a('s_lshl_b32 s%d, s%d, 14' % (sT2, sT2))
        a('s_or_b32 s%d, s%d, s%d' % (sKb, sKb, sT2))
        a('s_and_b32 s%d, s2, 2' % sT2)
        a('s_lshl_b32 s%d, s%d, 11' % (sT2, sT2))
        a('s_or_b32 s%d, s%d, s%d' % (sKb, sKb, sT2))
        a('s_lshl_b32 s%d, s%d, 3' % (sJ, sJ))
        a('s_add_u32 s%d, s%d, s%d' % (sJ, sJ, sG))
        a('s_mov_b32 s%d, s%d' % (sG, sT0))
        a('s_lshl_b32 s%d, s%d, 5' % (sT2, sG))
        a('s_add_u32 s%d, s%d, s%d' % (sJ, sJ, sT2))
    else:
        a('s_lshr_b32 s%d, s2, 5' % sG)
        a('s_and_b32 s%d, s2, 31' % sC)
        a('s_mov_b32 s%d, s2' % sJ)
    i15, ks, bsw, vWq, l16, zero = vTmp + 2, vTmp + 3, vTmp + 4, vTmp + 5, vTmp + 6, vTmp + 7
    a('v_and_b32 v%d, 15, v%d' % (i15, vL))
    a('v_lshrrev_b32 v%d, 4, v%d' % (ks, vL))
    a('v_xor_b32 v%d, v%d, v%d' % (bsw, i15, ks))
    a('v_lshlrev_b32 v%d, 4, v%d' % (bsw, bsw))
    a('v_lshl_add_u32 v%d, v%d, 8, v%d' % (vKo, ks, bsw))
    for j in range(1, 4):
        a('v_xor_b32 v%d, 0x%x, v%d' % (vKo + j, j << 6, vKo))
    a('v_lshrrev_b32 v%d, 3, v%d' % (vWq, vL))
    a('v_lshlrev_b32 v%d, 13, v%d' % (vWq, vWq))
    a('v_and_b32 v%d, 7, v%d' % (l16, vL))
    a('v_lshl_add_u32 v%d, v%d, 4, v%d' % (vWq, l16, vWq))
    a('v_lshlrev_b32 v%d, 4, v%d' % (l16, vL))
    a('v_mov_b32 v%d, 0' % zero)
    a('s_lshl_b32 s%d, s%d, 18' % (sT0, sJ))
    a('s_lshl_b32 s%d, s%d, %d' % (sT2, sW, 12 if gran == 4 else 13))
    a('s_add_u32 s%d, s%d, s%d' % (sT0, sT0, sT2))
    KVN = 0x3d000 if gran == 4 else 0x3a000
    if mapping == 'stk':
        KVN = 0x1e8000
        a('s_lshr_b32 s%d, s%d, 3' % (sT0, sJ))
        a('s_lshl_b32 s%d, s%d, 21' % (sT0, sT0))
        a('s_lshl_b32 s%d, s%d, 15' % (sT2, sW))
        a('s_add_u32 s%d, s%d, s%d' % (sT0, sT0, sT2))

    def setoff(tl, half, isv):
        if mapping == 'stk':
            u = 2 * tl + half
            xm = (((u >> 2) & 1) << 14) | ((u >> 3) << 12) | (((polK ^ polV) << 13) if isv else 0)
            a('s_xor_b32 s%d, s%d, 0x%x' % (sOff, sKb, xm + u * 131072))
        else:
            a('s_mov_b32 s%d, 0x%x' % (sOff, uoff(tl, half)))
    uoff = (lambda tl, half: (2 * tl + half) * 16384) if gran == 4 else (lambda tl, half: tl * 32768 + half * 4096)
    a('s_lshl_b32 s%d, s%d, 15' % (sKL, sW))
    a('s_lshl_b32 s%d, s%d, 12' % (sT2, sW))
    a('s_add_u32 m0, s%d, %d' % (sT2, L_WQ))
    a('s_mov_b32 s%d, 0x%x' % (rWQ + 2, 31 * 8192 + 128))
    a('s_mov_b32 s%d, 0x20000' % (rWQ + 3))
    a('s_mov_b32 s%d, 0x%x' % (rK + 2, KVN))
    a('s_mov_b32 s%d, 0x20000' % (rK + 3))
    a.wait_lg()
    stamp()
    xtok = {}
    def xload():
        xtok['x'] = a('global_load_dwordx4 %s, v%d, %s' % (vr(vX, 4), l16, sr(pX, 2)))
    if not xpos:
        xload()
    if tld == 's':
        a('s_load_dword s%d, %s, 0' % (sTagS, sr(pWS, 2)))
        tE = None
    else:
        tE = a('global_load_dword v%d, v%d, %s %s' % (vTag, zero, sr(pWS, 2), tld))
    a('s_add_u32 s%d, s%d, s%d' % (rWQ, pWQ, sT1))
    a('s_addc_u32 s%d, s%d, 0' % (rWQ + 1, pWQ + 1))
    a('s_add_u32 s%d, s%d, s%d' % (rK, pK, sT0))
    a('s_addc_u32 s%d, s%d, 0' % (rK + 1, pK + 1))

    vtok = {}
    tok = {}

    def parts(s):
        n = 4 // sub
        return range(s * n, (s + 1) * n)

    def issue(name, s):
        if name in skip:
            t = a('global_load_dword v%d, v%d, %s' % (vJunk, vL, sr(pWQ, 2)))
        elif name == 'WQ' and wqskew:
            a('s_and_b32 s%d, s2, 7' % sOff)
            a('s_lshl_b32 s%d, 1, s%d' % (sOff, sOff))
            a('s_and_b32 s%d, s%d, %d' % (sMode, sOff, wqskew))
            a('s_cbranch_scc0 L_nowq')
            a.cond += 1
            a('s_mov_b32 s%d, 0x%x' % (rWQ + 2, 31 * 8192 + 128 + 1024))
            for rep in range(2):
                for j in parts(s):
                    a('s_mov_b32 s%d, 0x%x' % (sOff, j * (65536 - 1024) + rep * 1024))
                    a('buffer_load_dwordx4 v%d, %s, %s offen offset:%d nt lds' % (vWq, sr(rWQ, 4), 's%d' % sOff, j * 1024))
            a.cond -= 1
            a.label('L_nowq')
            t = a('global_load_dword v%d, v%d, %s' % (vJunk, vL, sr(pX, 2)))
        elif name == 'WQ' and wqa:
            def blk():
                for j in range(4):
                    if j:
                        a('s_mov_b32 s%d, 0x%x' % (sOff, j * (65536 - 1024)))
                    t = a('buffer_load_dwordx4 v%d, %s, %s offen offset:%d nt lds' % (vWq, sr(rWQ, 4), 's%d' % sOff if j else '0', j * 1024))
                return t
            a('s_cmp_lg_u32 s%d, 0x%x' % (sOff, 15 << 10))
            a('s_cbranch_scc1 L_a0')
            a.cond += 1
            if wqe:
                issue('K0b', -1)
            else:
                for j in range(4):
                    a('global_load_dword v%d, v%d, %s' % (vJunk, zero, sr(pX, 2)))
            a.cond -= 1
            a('s_branch L_a1')
            a.label('L_a0')
            t = blk()
            a.cond += 1
            for b in range(1, NB):
                hb(b, sT2)
                a('s_cbranch_scc1 L_a1')
                a('s_lshl_b32 s%d, s%d, 10' % (sT2, sT2))
                a('s_add_u32 s%d, s%d, s%d' % (sT2, sT2, sWqo))
                a('s_add_u32 s%d, s%d, s%d' % (rWQ, pWQ, sT2))
                a('s_addc_u32 s%d, s%d, 0' % (rWQ + 1, pWQ + 1))
                a('s_add_u32 m0, s%d, %d' % (sKL, 24576 + (b - 1) * 4096))
                blk()
            a.cond -= 1
            a.label('L_a1')
        elif name == 'K0b' and wqa and wqe and s >= 0:
            hb(0, sT2)
            a('s_cbranch_scc0 L_b0')
            a.cond += 1
            for j in range(4):
                a('global_load_dword v%d, v%d, %s' % (vJunk, zero, sr(pX, 2)))
            a.cond -= 1
            a('s_branch L_b1')
            a.label('L_b0')
            t = issue('K0b', -1)
            a.label('L_b1')
        elif name == 'WQ':
            for j in parts(s):
                if j:
                    a('s_mov_b32 s%d, 0x%x' % (sOff, j * (65536 - 1024)))
                t = a('buffer_load_dwordx4 v%d, %s, %s offen offset:%d nt lds' % (vWq, sr(rWQ, 4), 's%d' % sOff if j else '0', j * 1024))
        elif name == 'WO':
            for q in (parts(s) if isinstance(s, int) else s):
                a('s_mov_b32 s%d, %d' % (sOff, q * 4096))
                for r in range(4):
                    t = a('buffer_load_dword v%d, v%d, %s, s%d offen offset:%d nt' % (vWOr + q * 4 + r, vL4, sr(rWO, 4), sOff, r * 1024))
        elif name[0] == 'K':
            tl, half = int(name[1]), 'ab'.index(name[2])
            a('s_add_u32 m0, s%d, %d' % (sKL, (tl % 4) * 8192 + half * 4096))
            setoff(tl, half, 0)
            for j in parts(max(s, 0)):
                t = a('buffer_load_dwordx4 v%d, %s, s%d offen offset:%d nt lds' % (vKo + j, sr(rK, 4), sOff, j * 1024))
        else:
            tl, half = int(name[1]), 'ab'.index(name[2])
            setoff(tl, half, 1)
            for r in parts(s):
                t = a('buffer_load_dwordx4 %s, v%d, %s, s%d offen offset:%d nt' % (ar(tl * 32 + half * 16 + r * 4, 4), vVo, sr(rV, 4), sOff, r * 256))
                vtok[(tl, half, r)] = t
        tok[name] = t
        return t

    names = ['WQ']
    for t in range(4):
        names += ['K%da' % t, 'K%db' % t]
    for t in range(nv_pre):
        names += ['V%da' % t, 'V%db' % t]
    for t in range(4, 8):
        names += ['K%da' % t, 'K%db' % t]
    for t in range(nv_pre, 8):
        names += ['V%da' % t, 'V%db' % t]
    if not wol:
        names.insert(names.index(wo_pos) + 1, 'WO')
    seq = [(n, s) for n in names for s in range(sub)]
    Wn = W
    last = {n: i for i, (n, s) in enumerate(seq)}
    first = {}
    for i, (n, s) in enumerate(seq):
        first.setdefault(n, i)
    N = len(seq)

    def Wf(i):
        if not wsch:
            return Wn
        u = i / sub
        if u <= wsch[0][0]:
            return wsch[0][1]
        for (u0, w0), (u1, w1) in zip(wsch, wsch[1:]):
            if u <= u1:
                return int(round(w0 + (w1 - w0) * (u - u0) / (u1 - u0)))
        return wsch[-1][1]

    def rdy(j):
        i = j
        while i - Wf(i) < j:
            i += 1
        return i

    def ready(n):
        return rdy(last[n])

    vTr, vXb, vXw, vQw, vQf = vWt, vWt + 1, vWt + 2, vWt + 3, vWt + 4
    small = {}

    def setup():
        a('s_getreg_b32 s%d, hwreg(HW_REG_XCC_ID, 0, 4)' % sXcc)
        a('s_mov_b32 s%d, 0x%x' % (rV + 2, KVN))
        a('s_mov_b32 s%d, 0x20000' % (rV + 3))
        a('s_add_u32 s%d, s%d, s%d' % (rV, pV, sT0))
        a('s_addc_u32 s%d, s%d, 0' % (rV + 1, pV + 1))
        a('v_lshlrev_b32 v%d, 4, v0' % vT16)
        a('v_lshlrev_b32 v%d, 2, v%d' % (vL4, vL))
        for r, p in ((rW1, pW1), (rB1, pB1), (rW2, pW2)):
            a('s_mov_b32 s%d, s%d' % (r, p))
            a('s_mov_b32 s%d, s%d' % (r + 1, p + 1))
            a('s_mov_b32 s%d, 3584' % (r + 2))
            a('s_mov_b32 s%d, 0x20000' % (r + 3))
        a('s_lshl_b32 s%d, s%d, 2' % (sT1, sP))
        a('v_mov_b32 v%d, s%d' % (vXp, sT1))
        for r, v in ((rW1, vW1), (rB1, vB1), (rW2, vW2)):
            a('buffer_load_dwordx4 %s, v%d, %s, 0 offen' % (vr(v, 4), vT16, sr(r, 4)))
        a('global_load_ushort v%d, v%d, %s' % (vB2, zero, sr(pB2, 2)))
        small['t'] = a('global_load_dword v%d, v%d, %s' % (vXp, vXp, sr(pX, 2)))
        a('s_mov_b32 s%d, s%d' % (rWS, pWS))
        a('s_mov_b32 s%d, s%d' % (rWS + 1, pWS + 1))
        a('s_mov_b32 s%d, 0x%x' % (rWS + 2, WS_SIZE))
        a('s_mov_b32 s%d, 0x20000' % (rWS + 3))
        a('s_and_b32 s%d, s%d, 0xfc' % (sT1, sJ))
        a('s_add_u32 s%d, s%d, s%d' % (sT1, sT1, sW))
        a('s_lshl_b32 s%d, s%d, 14' % (sT1, sT1))
        a('s_and_b32 s%d, s%d, 3' % (sT2, sJ))
        a('s_lshl_b32 s%d, s%d, 8' % (sT2, sT2))
        a('s_add_u32 s%d, s%d, s%d' % (sT1, sT1, sT2))
        a('s_add_u32 s%d, s%d, s%d' % (rWO, pWO, sT1))
        a('s_addc_u32 s%d, s%d, 0' % (rWO + 1, pWO + 1))
        a('s_mov_b32 s%d, %d' % (rWO + 2, 15 * 1024 + 256))
        a('s_mov_b32 s%d, 0x20000' % (rWO + 3))
        a('v_lshlrev_b32 v%d, 4, v%d' % (vVo, i15))
        a('v_lshl_add_u32 v%d, v%d, 10, v%d' % (vVo, ks, vVo))
        a('v_lshl_add_u32 v%d, v%d, 8, v%d' % (vKa, i15, bsw))
        a('v_add_u32 v%d, s%d, v%d' % (vKa, sKL, vKa))
        for j in range(1, 4):
            a('v_xor_b32 v%d, 0x%x, v%d' % (vKa + j, j << 6, vKa))
        e = vTmp
        a('v_and_b32 v%d, 3, v%d' % (e, vL))
        a('v_bfe_u32 v%d, v%d, 2, 2' % (vTmp + 1, vL))
        a('s_lshl_b32 s%d, s%d, 5' % (sT1, sW))
        a('s_add_u32 s%d, s%d, %d' % (sT1, sT1, L_WQ))
        a('v_lshlrev_b32 v%d, 3, v%d' % (vTr, e))
        a('v_lshl_add_u32 v%d, v%d, 7, v%d' % (vTr, vTmp + 1, vTr))
        a('v_lshl_add_u32 v%d, v%d, 10, v%d' % (vTr, ks, vTr))
        a('v_add_u32 v%d, s%d, v%d' % (vTr, sT1, vTr))
        a('s_lshr_b32 s%d, s%d, 3' % (sT1, sP))
        a('s_and_b32 s%d, s%d, 3' % (sT1, sT1))
        a('s_lshl_b32 s%d, s%d, 8' % (sT2, sT1))
        a('s_add_u32 s%d, s%d, %d' % (sT2, sT2, L_XN))
        a('v_lshlrev_b32 v%d, 4, v%d' % (vXb, ks))
        a('v_add_u32 v%d, s%d, v%d' % (vXb, sT2, vXb))
        a('v_add_u32 v%d, %d, v%d' % (vXw, L_XN, l16))
        if wqa:
            a('s_lshl_b32 s%d, s%d, 12' % (sPub, sT1))
        else:
            a('s_lshr_b32 s%d, s%d, 5' % (sT2, sP))
            a('s_lshl_b32 s%d, s%d, 2' % (sT2, sT2))
            a('s_add_u32 s%d, s%d, s%d' % (sT2, sT2, sT1))
            a('s_lshl_b32 s%d, s%d, 12' % (sPub, sT2))
        a('s_and_b32 s%d, s%d, 7' % (sT2, sP))
        a('s_lshl_b32 s%d, s%d, 2' % (sT2, sT2))
        a('s_add_u32 s%d, s%d, s%d' % (sT2, sT2, sW))
        a('s_lshl_b32 s%d, s%d, 7' % (sT2, sT2))
        a('s_add_u32 s%d, s%d, s%d' % (sPub, sPub, sT2))
        a('s_add_u32 s%d, s%d, 0x%x' % (sPub, sPub, WS_Q))
        a('v_and_b32 v%d, 1, v%d' % (vQw, vL))
        a('v_lshl_add_u32 v%d, v%d, 1, v%d' % (vQw, ks, vQw))
        a('v_lshlrev_b32 v%d, 4, v%d' % (vQw, vQw))
        a('v_lshlrev_b32 v%d, 8, v%d' % (vQf, vTmp + 1))
        a('v_lshl_add_u32 v%d, v%d, 4, v%d' % (vQf, ks, vQf))
        a('v_add_u32 v%d, %d, v%d' % (vQf, L_QL, vQf))
        a('s_lshl_b32 s%d, s%d, 14' % (sQg, sG))
        a('s_add_u32 s%d, s%d, 0x%x' % (sQg, sQg, WS_Q))
        if bal:
            a('s_lshl_b32 s%d, s%d, 10' % (sT1, sC))
            a('s_add_u32 s%d, s%d, 0x%x' % (sT1, sT1, WS_BRD))
            a('v_and_b32 v%d, 7, v%d' % (vBld, vL))
            a('v_lshlrev_b32 v%d, 7, v%d' % (vBld, vBld))
            a('v_add_u32 v%d, s%d, v%d' % (vBld, sT1, vBld))
            a('s_lshl_b32 s%d, s%d, 7' % (sT2, sG))
            a('s_add_u32 s%d, s%d, s%d' % (sT1, sT1, sT2))
            a('v_add_u32 v%d, s%d, v%d' % (vBst, sT1, vT16))
            a('v_mov_b32 v%d, 0x7ffffff0' % vBv)
            a('v_cmp_gt_u32 vcc, 8, v0')
            a('v_cndmask_b32 v%d, v%d, v%d, vcc' % (vBst, vBv, vBst))
        if ctl in (2, 3):
            if ctl == 2:
                a('s_lshl_b32 s%d, s%d, 2' % (sT1, sC))
                a('s_add_u32 s%d, s%d, s%d' % (sT1, sT1, sW))
                a('s_lshr_b32 s%d, s%d, %d' % (sT2, sT1, NC.bit_length() - 1))
            else:
                a('v_mov_b32 v%d, %d' % (vBv + 3, L_CT))
                a('ds_write_b32 v%d, v%d' % (vBv + 3, zero))
                a('s_mov_b32 s%d, s%d' % (sT1, sC))
                a('s_lshr_b32 s%d, s%d, %d' % (sT2, sT1, NC.bit_length() - 1))
                a('s_or_b32 s%d, s%d, s%d' % (sT2, sT2, sW))
            a('s_and_b32 s%d, s%d, %d' % (sT1, sT1, NC - 1))
            a('s_mul_i32 s%d, s%d, %d' % (sT1, sT1, CSTR))
            a('s_add_u32 s%d, s%d, 0x%x' % (sT1, sT1, WSB or WS_BRD))
            a('s_add_u32 s%d, s%d, s%d' % (sCA, pWS, sT1))
            a('s_addc_u32 s%d, s%d, 0' % (sCA + 1, pWS + 1))
            a('s_or_b32 s%d, s%d, s%d' % (sT2, sT2, sG))
            a('s_cbranch_scc1 L_noinit')
            a('s_mov_b32 s%d, 0' % sCD)
            a('s_atomic_swap s%d, %s, 0' % (sCD, sr(sCA, 2)))
            a.label('L_noinit')
        elif ctl:
            a('s_and_b32 s%d, s%d, %d' % (sT1, sC, NC - 1))
            a('s_mul_i32 s%d, s%d, %d' % (sT1, sT1, CSTR))
            a('s_add_u32 s%d, s%d, 0x%x' % (sT1, sT1, WSB or WS_BRD))
            a('v_mov_b32 v%d, s%d' % (vBv + 1, sT1))
            a('v_mov_b32 v%d, 0x7ff00000' % vBv)
            a('v_cmp_eq_u32 vcc, 0, v%d' % vL)
            a('v_cndmask_b32 v%d, v%d, v%d, vcc' % (vBv, vBv, vBv + 1))
            a('s_or_b32 s%d, s%d, s%d' % (sT1, sG, sW))
            a('s_lshr_b32 s%d, s%d, %d' % (sT2, sC, NC.bit_length() - 1))
            a('s_or_b32 s%d, s%d, s%d' % (sT1, sT1, sT2))
            a('s_cselect_b32 s%d, 0x7ff00000, 0' % sT1)
            a('v_or_b32 v%d, s%d, v%d' % (vBv + 1, sT1, vBv))
            a('buffer_store_dword v%d, v%d, %s, 0 offen sc1' % (zero, vBv + 1, sr(rWS, 4)))
            a('v_mov_b32 v%d, %d' % (vBv + 3, L_CT))
            a('ds_write_b32 v%d, v%d' % (vBv + 3, zero))
        a('s_mov_b32 s%d, 0x0c0c0c0c' % sC0)
        for k, (ev0, lo) in enumerate(((0, 0x0100), (2, 0x0100), (0, 0x0302), (2, 0x0302))):
            a('v_mov_b32 v%d, s%d' % (vSel + k, sC0))
            a('v_mov_b32 v%d, 0x%08x' % (vTmp + 1, 0x0c0c0000 | lo))
            a('v_cmp_eq_u32 vcc, %d, v%d' % (ev0, e))
            a('v_cndmask_b32 v%d, v%d, v%d, vcc' % (vSel + k, vSel + k, vTmp + 1))
            a('v_mov_b32 v%d, 0x%08x' % (vTmp + 1, (lo << 16) | 0x0c0c))
            a('v_cmp_eq_u32 vcc, %d, v%d' % (ev0 + 1, e))
            a('v_cndmask_b32 v%d, v%d, v%d, vcc' % (vSel + k, vSel + k, vTmp + 1))

        if vwarm:
            a('buffer_load_dword v%d, v%d, %s, 0 offen' % (vJunk, zero, sr(rV, 4)))
            a('buffer_load_dword v%d, v%d, %s, 0 offen' % (vJunk, zero, sr(rWO, 4)))
            a('buffer_load_dword v%d, v%d, %s, s%d offen sc1' % (vJunk, zero, sr(rWS, 4), sQg))

    def unpack(dst, src, n):
        for i in range(n):
            a('v_lshlrev_b32 v%d, 16, v%d' % (dst + 2 * i, src + i))
            a('v_and_b32 v%d, 0xffff0000, v%d' % (dst + 2 * i + 1, src + i))

    def ln_stats(xf, t):
        s, tm = t + 8, t + 9
        a('v_add_f32 v%d, v%d, v%d' % (t, xf, xf + 1))
        a('v_add_f32 v%d, v%d, v%d' % (t + 1, xf + 2, xf + 3))
        a('v_add_f32 v%d, v%d, v%d' % (t + 2, xf + 4, xf + 5))
        a('v_add_f32 v%d, v%d, v%d' % (t + 3, xf + 6, xf + 7))
        a('v_add_f32 v%d, v%d, v%d' % (t, t, t + 1))
        a('v_add_f32 v%d, v%d, v%d' % (t + 2, t + 2, t + 3))
        a('v_add_f32 v%d, v%d, v%d' % (s, t, t + 2))
        allred([s], 'add_f32', [tm])
        a('v_mul_f32 v%d, %s, v%d' % (s, f32(1 / 512), s))
        for i in range(8):
            a('v_sub_f32 v%d, v%d, v%d' % (t + i, xf + i, s))
        rnd(s, s)
        a('v_mul_f32 v%d, v%d, v%d' % (t, t, t))
        a('v_mul_f32 v%d, v%d, v%d' % (t + 1, t + 1, t + 1))
        for i in range(2, 8):
            a('v_fmac_f32 v%d, v%d, v%d' % (t + (i & 1), t + i, t + i))
        a('v_add_f32 v%d, v%d, v%d' % (t, t, t + 1))
        allred([t], 'add_f32', [tm])
        a('v_mul_f32 v%d, %s, v%d' % (t, f32(1 / 512), t))
        rnd(t, t)
        a('v_add_f32 v%d, %s, v%d' % (t, f32(1e-5), t))
        rnd(t, t)
        a('v_sqrt_f32 v%d, v%d' % (t, t))
        rnd(t, t)
        a('v_rcp_f32 v%d, v%d' % (t, t))
        return s, t

    def ln1():
        if wqskew:
            n = a.vm - (tE or xtok['x'])
            a('s_cmp_eq_u32 s%d, 0' % sMode)
            a('s_cbranch_scc1 L_ws1')
            a('s_waitcnt vmcnt(%d)' % (n + 8))
            a('s_branch L_ws2')
            a.label('L_ws1')
            a('s_waitcnt vmcnt(%d)' % n)
            a.label('L_ws2')
            a.vm_done = tE or xtok['x']
        a.wait_vm(tE or xtok['x'])
        if tld == 's':
            a.wait_lg()
            a('v_mov_b32 v%d, s%d' % (vTag, sTagS))
        a('s_mov_b32 s%d, 1664525' % sC0)
        a('v_mul_lo_u32 v%d, v%d, s%d' % (vTag, vTag, sC0))
        a('v_add_u32 v%d, 1013904223, v%d' % (vTag, vTag))
        if bal:
            a('v_and_b32 v%d, 0xffffff00, v%d' % (vBt, vTag))
        unpack(vXf, vX, 4)
        mb, rc = ln_stats(vXf, T)
        for i in range(8):
            a('v_sub_f32 v%d, v%d, v%d' % (vXf + i, vXf + i, mb))
        for i in range(8):
            rnd(vXf + i, vXf + i)
        for i in range(8):
            a('v_mul_f32 v%d, v%d, v%d' % (vXf + i, vXf + i, rc))
        for i in range(4):
            a('v_cvt_pk_bf16_f32 v%d, v%d, v%d' % (vX + i, vXf + 2 * i, vXf + 2 * i + 1))
        a('ds_write_b128 v%d, %s' % (vXw, vr(vX, 4)))

    def qpart():
        a.wait_vm(tok['WQ'])
        a.wait_lg()
        stamp(True)
        a('s_barrier')
        for t in range(4):
            a('ds_read_b128 %s, v%d offset:%d' % (vr(vKf + 16 + 4 * t, 4), vXb, t * 64))
        if wqa:
            G = vAS + 4
            a('s_mov_b32 vcc_lo, 0xaaaaaaaa')
            a('s_mov_b32 vcc_hi, 0xaaaaaaaa')
            a('v_mov_b32 v%d, s%d' % (G + 3, sXcc))
            for b in range(NB):
                hb(b, sT1)
                a('s_cbranch_scc0 L_q%da' % b)
                a.cond += 1
                a('v_mov_b32 v%d, 0x7ff00000' % vTmp)
                a('buffer_store_dword v%d, v%d, %s, 0 offen' % (vTmp, vTmp, sr(rWS, 4)))
                a.cond -= 1
                a('s_branch L_q%db' % b)
                a.label('L_q%da' % b)
                if b:
                    a('v_add_u32 v%d, 0x%x, v%d' % (vTmp, (24576 + (b - 1) * 4096 - L_WQ) & 0xffffffff, vTr))
                    a('v_add_u32 v%d, 0x10000, v%d' % (vTmp + 1, vTmp))
                lt = []
                for t in range(4):
                    ad, of = (vTr, t * 4096) if b == 0 else (vTmp + (t >> 1), (t & 1) * 32768)
                    a('ds_read_b64_tr_b16 %s, v%d offset:%d' % (vr(vKf + 4 * t, 2), ad, of))
                    lt.append(a('ds_read_b64_tr_b16 %s, v%d offset:%d' % (vr(vKf + 4 * t + 2, 2), ad, of + 512)))
                a('s_lshl_b32 s%d, s%d, 14' % (sT1, sT1))
                a('s_add_u32 s%d, s%d, s%d' % (sT1, sT1, sPub))
                for t in range(4):
                    a.wait_lg(lt[t])
                    a('v_mfma_f32_16x16x32_bf16 %s, %s, %s, %s' % (vr(vAS, 4), vr(vKf + 4 * t, 4), vr(vKf + 16 + 4 * t, 4), '0' if t == 0 else vr(vAS, 4)))
                a('v_cndmask_b32 v%d, v%d, v%d, vcc' % (G, vAS, vAS + 2))
                a('v_cndmask_b32 v%d, v%d, v%d, vcc' % (G + 1, vAS + 1, vAS + 3))
                xor3(G + 2, G, G + 1, vTag)
                a('v_xor_b32 v%d, v%d, v%d' % (G + 2, G + 2, G + 3))
                a('s_mov_b32 exec_lo, 0x00030003')
                a('s_mov_b32 exec_hi, 0x00030003')
                a('buffer_store_dwordx4 %s, v%d, %s, s%d offen %s' % (vr(G, 4), vQw, sr(rWS, 4), sT1, qflag))
                a('s_mov_b64 exec, -1')
                a('s_nop 1')
                a.label('L_q%db' % b)
            a.wait_lg()
            if NB > 1:
                a('s_barrier')
            a('s_lshl_b32 s%d, s%d, 3' % (sT1, sP))
            a('s_add_u32 s%d, s%d, 0x%x' % (sT1, sT1, WS_XC))
            a('s_cmp_eq_u32 s%d, 0' % sW)
            a('s_cselect_b32 s%d, s%d, 0x7ff00000' % (sT1, sT1))
            a('v_mov_b32 v%d, s%d' % (vTmp, sT1))
            a('v_mov_b32 v%d, s%d' % (vAS, sXcc))
            a('v_xor_b32 v%d, s%d, v%d' % (vAS + 1, sXcc, vTag))
            a('s_mov_b64 exec, 1')
            a('buffer_store_dwordx2 %s, v%d, %s, 0 offen %s' % (vr(vAS, 2), vTmp, sr(rWS, 4), qflag))
            a('s_mov_b64 exec, -1')
            stamp(True)
            return
        lt = []
        for t in range(4):
            a('ds_read_b64_tr_b16 %s, v%d offset:%d' % (vr(vKf + 4 * t, 2), vTr, t * 4096))
            lt.append(a('ds_read_b64_tr_b16 %s, v%d offset:%d' % (vr(vKf + 4 * t + 2, 2), vTr, t * 4096 + 512)))
        a('s_mov_b32 vcc_lo, 0xaaaaaaaa')
        a('s_mov_b32 vcc_hi, 0xaaaaaaaa')
        for t in range(4):
            a.wait_lg(lt[t])
            a('v_mfma_f32_16x16x32_bf16 %s, %s, %s, %s' % (vr(vAS, 4), vr(vKf + 4 * t, 4), vr(vKf + 16 + 4 * t, 4), '0' if t == 0 else vr(vAS, 4)))
        G = vAS + 4
        a('v_cndmask_b32 v%d, v%d, v%d, vcc' % (G, vAS, vAS + 2))
        a('v_cndmask_b32 v%d, v%d, v%d, vcc' % (G + 1, vAS + 1, vAS + 3))
        a('v_mov_b32 v%d, s%d' % (G + 3, sXcc))
        xor3(G + 2, G, G + 1, vTag)
        a('v_xor_b32 v%d, v%d, v%d' % (G + 2, G + 2, G + 3))
        a('s_mov_b32 exec_lo, 0x00030003')
        a('s_mov_b32 exec_hi, 0x00030003')
        a('buffer_store_dwordx4 %s, v%d, %s, s%d offen %s' % (vr(G, 4), vQw, sr(rWS, 4), sPub, qflag))
        a('s_mov_b64 exec, -1')
        stamp(True)

    def ln2():
        a.wait_vm(small['t'])
        unpack(vXf, vX, 4)
        a('s_lshl_b32 s%d, s%d, 2' % (sT1, sP))
        a('s_add_u32 s%d, s%d, %d' % (sT1, sT1, L_XN))
        a('v_mov_b32 v%d, s%d' % (vH, sT1))
        a('ds_read_b32 v%d, v%d' % (vH + 2, vH))
        mb, rc = ln_stats(vXf, T)
        a.wait_lg()
        unpack(vH, vH + 2, 1)
        for i in range(2):
            a('v_sub_f32 v%d, v%d, v%d' % (vH + i, vH + i, mb))
        for i in range(2):
            rnd(vH + i, vH + i)
        for i in range(2):
            a('v_mul_f32 v%d, v%d, v%d' % (vH + i, vH + i, rc))
        for i in range(2):
            rnd(vH + i, vH + i)
        a('v_mov_b32 v%d, 0' % vY)
        a('v_mov_b32 v%d, 0' % (vY + 1))

    c0 = -2.0 * math.sqrt(2.0 / math.pi) * LOG2E
    c1 = c0 * 0.044715

    def gelu_chunk(k):
        wf, bf_, u, tt = T, T + 2, T + 4, T + 8
        unpack(wf, vW1 + k, 1)
        unpack(bf_, vB1 + k, 1)
        a('s_mov_b32 s%d, %s' % (sC0, f32(c0)))
        a('v_mov_b32 v%d, %s' % (T + 12, f32(c1)))
        for c in range(2):
            for i in range(2):
                a('v_mul_f32 v%d, v%d, v%d' % (u + 2 * c + i, vH + c, wf + i))
        for i in range(4):
            rnd(u + i, u + i)
        for i in range(4):
            a('v_add_f32 v%d, v%d, v%d' % (u + i, u + i, bf_ + (i & 1)))
        for i in range(4):
            rnd(u + i, u + i)
        for i in range(4):
            a('v_mul_f32 v%d, v%d, v%d' % (tt + i, u + i, u + i))
        for i in range(4):
            a('v_fma_f32 v%d, v%d, v%d, s%d' % (tt + i, tt + i, T + 12, sC0))
        for i in range(4):
            a('v_mul_f32 v%d, v%d, v%d' % (tt + i, tt + i, u + i))
        for i in range(4):
            a('v_exp_f32 v%d, v%d' % (tt + i, tt + i))
        for i in range(4):
            a('v_add_f32 v%d, 1.0, v%d' % (tt + i, tt + i))
        for i in range(4):
            a('v_rcp_f32 v%d, v%d' % (tt + i, tt + i))
        for i in range(4):
            a('v_mul_f32 v%d, v%d, v%d' % (u + i, u + i, tt + i))
        for c in range(2):
            a('v_cvt_pk_bf16_f32 v%d, v%d, v%d' % (tt + c, u + 2 * c, u + 2 * c + 1))
        for c in range(2):
            a('v_dot2c_f32_bf16 v%d, v%d, v%d' % (vY + c, tt + c, vW2 + k))

    def y_finish():
        allred([vY, vY + 1], 'add_f32', [T, T + 1])
        a('s_lshl_b32 s%d, s%d, 3' % (sT1, sW))
        a('s_add_u32 s%d, s%d, %d' % (sT1, sT1, L_YP))
        a('v_mov_b32 v%d, s%d' % (T, sT1))
        a('s_mov_b64 exec, 1')
        a('ds_write_b64 v%d, %s' % (T, vr(vY, 2)))
        a('s_mov_b64 exec, -1')

    QG = vQ + 16

    def q_loads(fl='sc1'):
        for k in range(4):
            if k:
                a('s_add_u32 s%d, s%d, %d' % (sOff, sQg, k * 4096))
            tk = a('buffer_load_dwordx4 %s, v%d, %s, s%d offen %s' % (vr(QG + 4 * k, 4), vT16, sr(rWS, 4), sOff if k else sQg, fl))
        if wqa:
            a('s_lshl_b32 s%d, s%d, 8' % (sOff, sG))
            a('s_add_u32 s%d, s%d, 0x%x' % (sOff, sOff, WS_XC))
            tk = a('buffer_load_dwordx2 %s, v%d, %s, s%d offen %s' % (vr(vS, 2), vS + 2, sr(rWS, 4), sOff, fl))
        tok['QG'] = tk

    def q_check():
        for k in range(4):
            xor3(T + k, QG + 4 * k, QG + 4 * k + 1, QG + 4 * k + 2)
        for k in range(4):
            xor3(T + k, T + k, QG + 4 * k + 3, vTag)
        a('v_or3_b32 v%d, v%d, v%d, v%d' % (vTmp, T, T + 1, T + 2))
        if wqa:
            xor3(T, vS, vS + 1, vTag)
            a('v_or3_b32 v%d, v%d, v%d, v%d' % (vTmp, vTmp, T + 3, T))
        else:
            a('v_or_b32 v%d, v%d, v%d' % (vTmp, vTmp, T + 3))
        a('v_cmp_ne_u32 vcc, 0, v%d' % vTmp)

    def q_issue():
        if wqa:
            a('v_and_b32 v%d, 31, v0' % (vS + 2))
            a('v_lshlrev_b32 v%d, 3, v%d' % (vS + 2, vS + 2))
        q_loads(qld)
        stamp(True)

    def q_take():
        a.wait_vm(tok['QG'])
        q_check()
        a('s_cbranch_vccnz L_qretry')
        a.label('L_qok')
        for c in range(2):
            a('v_add_f32 v%d, v%d, v%d' % (QG + c, QG + c, QG + 4 + c))
            a('v_add_f32 v%d, v%d, v%d' % (QG + 8 + c, QG + 8 + c, QG + 12 + c))
        for c in range(2):
            a('v_add_f32 v%d, v%d, v%d' % (QG + c, QG + c, QG + 8 + c))
        a('v_cvt_pk_bf16_f32 v%d, v%d, v%d' % (QG, QG, QG + 1))
        a('v_lshlrev_b32 v%d, 2, v0' % (QG + 1))
        a('v_add_u32 v%d, %d, v%d' % (QG + 1, L_QL, QG + 1))
        a('ds_write_b32 v%d, v%d' % (QG + 1, QG))
        if wqa:
            a('v_cmp_ne_u32 vcc, s%d, v%d' % (sXcc, vS))
        else:
            for k in range(4):
                a('v_xor_b32 v%d, s%d, v%d' % (T + k, sXcc, QG + 4 * k + 3))
            a('v_or3_b32 v%d, v%d, v%d, v%d' % (T, T, T + 1, T + 2))
            a('v_or_b32 v%d, v%d, v%d' % (T, T, T + 3))
            a('v_cmp_ne_u32 vcc, 0, v%d' % T)
        a('s_lshl_b32 s%d, s%d, 2' % (sT1, sW))
        a('s_add_u32 s%d, s%d, %d' % (sT1, sT1, L_XF))
        a('s_or_b32 s%d, vcc_lo, vcc_hi' % sT2)
        a('v_mov_b32 v%d, s%d' % (T, sT1))
        a('v_mov_b32 v%d, s%d' % (T + 1, sT2))
        a('ds_write_b32 v%d, v%d' % (T, T + 1))

    def q_mode():
        a.wait_lg(tok['XF'])
        a('v_or3_b32 v%d, v%d, v%d, v%d' % (vTmp + 4, vTmp + 4, vTmp + 5, vTmp + 6))
        a('v_or_b32 v%d, v%d, v%d' % (vTmp + 4, vTmp + 4, vTmp + 7))
        a('v_readfirstlane_b32 s%d, v%d' % (sMode, vTmp + 4))
        if mapping != 'mod':
            a('s_mov_b32 s%d, 1' % sMode)
        if force is not None:
            a('s_mov_b32 s%d, %d' % (sMode, force))

    def q_frag():
        a('v_mov_b32 v%d, %d' % (vTmp, L_XF))
        a.wait_lg()
        a('s_barrier')
        tok['XF'] = a('ds_read_b128 %s, v%d' % (vr(vTmp + 4, 4), vTmp))
        for t in range(4):
            a('ds_read_b128 %s, v%d offset:%d' % (vr(vQ + 4 * t, 4), vQf, t * 64))
        stamp(True)

    SCALE = float(struct.unpack('<f', struct.pack('<f', 128 ** -0.5))[0])

    def qk(t):
        a.wait_vm(tok['K%db' % t])
        lt = {}
        for g in range(2):
            for k in range(4):
                lt[g, k] = a('ds_read_b128 %s, v%d offset:%d' % (vr(vKf + g * 16 + k * 4, 4), vKa + k, (t % 4) * 8192 + g * 4096))
        for g in range(2):
            for k in range(4):
                a.wait_lg(lt[g, k])
                a('v_mfma_f32_16x16x32_bf16 %s, %s, %s, %s' % (vr(vAS + 4 * g, 4), vr(vKf + g * 16 + k * 4, 4), vr(vQ + k * 4, 4), '0' if k == 0 else vr(vAS + 4 * g, 4)))
        S = vS + t * 8
        a('s_mov_b32 s%d, %s' % (sC0, f32(SCALE)))
        for i in range(8):
            rnd(S + i, vAS + i)
        for i in range(8):
            a('v_mul_f32 v%d, s%d, v%d' % (S + i, sC0, S + i))
        for i in range(8):
            rnd(S + i, S + i)
        if t == 0:
            a('v_max3_f32 v%d, v%d, v%d, v%d' % (vM, S, S + 1, S + 2))
            a('v_max3_f32 v%d, v%d, v%d, v%d' % (vM, vM, S + 3, S + 4))
            a('v_max3_f32 v%d, v%d, v%d, v%d' % (vM, vM, S + 5, S + 6))
            a('v_max_f32 v%d, v%d, v%d' % (vM, vM, S + 7))
        else:
            for i in range(4):
                a('v_max3_f32 v%d, v%d, v%d, v%d' % (vM, vM, S + 2 * i, S + 2 * i + 1))
        if t == 7:
            stamp(True)

    vMA, vL2 = (vBv, vBv + 1) if two else (None, vTmp + 1)

    def sm_maxA():
        allred([vM], 'max_f32', [vTmp], bits=(4, 5))
        a('v_mul_f32 v%d, %s, v%d' % (vMA, f32(LOG2E), vM))
        a('v_mov_b32 v%d, 0' % vLs)
        a('v_mov_b32 v%d, 0' % vL2)

    def sm_max():
        allred([vM], 'max_f32', [vTmp], bits=(4, 5))
        a('v_mul_f32 v%d, %s, v%d' % (vM, f32(LOG2E), vM))
        if two:
            a('v_sub_f32 v%d, v%d, v%d' % (vMA, vMA, vM))
            a('v_exp_f32 v%d, v%d' % (vMA, vMA))
            a('s_nop 1')
            for r in range(4):
                a('v_mov_b32_dpp v%d, v%d row_newbcast:%d row_mask:0x%x bank_mask:0xf' % (vTmp, vMA, 4 * r, 1 << r))
            a('v_mul_f32 v%d, v%d, v%d' % (vLs, vLs, vMA))
            a('v_mul_f32 v%d, v%d, v%d' % (vL2, vL2, vMA))
            for i in range(8):
                a('v_mul_f32 v%d, v%d, v%d' % (vO + i, vO + i, vTmp))
            return
        a('v_mov_b32 v%d, 0' % vLs)
        a('v_mov_b32 v%d, 0' % vL2)

    def sm_exp(t):
        S = vS + t * 8
        a('s_mov_b32 s%d, %s' % (sC0, f32(LOG2E)))
        for i in range(8):
            a('v_fma_f32 v%d, v%d, s%d, -v%d' % (S + i, S + i, sC0, vMA if two and t < 4 else vM))
        for i in range(8):
            a('v_exp_f32 v%d, v%d' % (S + i, S + i))
        for i in range(4):
            a('v_add_f32 v%d, v%d, v%d' % (vLs, vLs, S + 2 * i))
            a('v_add_f32 v%d, v%d, v%d' % (vL2, vL2, S + 2 * i + 1))
        for i in range(4):
            a('v_cvt_pk_bf16_f32 v%d, v%d, v%d' % (S + i, S + 2 * i, S + 2 * i + 1))

    def sm_fin():
        a('v_add_f32 v%d, v%d, v%d' % (vLs, vLs, vL2))
        allred([vLs], 'add_f32', [vTmp], bits=(4, 5))
        a('s_lshl_b32 s%d, s%d, 3' % (sT1, sW))
        a('s_add_u32 s%d, s%d, %d' % (sT1, sT1, L_ML))
        a('v_lshlrev_b32 v%d, 3, v%d' % (vTmp, vL))
        a('v_add_u32 v%d, s%d, v%d' % (vTmp, sT1, vTmp))
        a('s_mov_b64 exec, 0x1111')
        a('ds_write_b64 v%d, %s' % (vTmp, vr(vM, 2)))
        a('s_mov_b64 exec, -1')

    def p_prep(t):
        P = vKf + (t & 1) * 16
        S = vS + t * 8
        for g in range(2):
            for r in range(4):
                pk = S + g * 2 + (r >> 1)
                sl = vSel + (r & 1) * 2
                a('v_perm_b32 v%d, v%d, v%d, v%d' % (P + g * 8 + r * 2, pk, pk, sl))
                a('v_perm_b32 v%d, v%d, v%d, v%d' % (P + g * 8 + r * 2 + 1, pk, pk, sl + 1))

    def pv(t, fine=False):
        P = vKf + (t & 1) * 16
        if not fine:
            a.wait_vm(tok['V%db' % t])
        for g in range(2):
            for r in range(4):
                if fine:
                    a.wait_vm(vtok[(t, g, r)])
                for hf in range(2):
                    fst = (t == 0 and g == 0 and r == 0)
                    a('v_mfma_f32_16x16x16_bf16 %s, %s, %s, %s' % (vr(vO + 4 * hf, 4), vr(P + g * 8 + r * 2, 2), ar(t * 32 + g * 16 + r * 4 + hf * 2, 2), '0' if fst else vr(vO + 4 * hf, 4)))

    def wo_pair(w=True):
        if w:
            a.wait_vm(tok['WO'])
        a('s_mov_b32 s%d, 0x05040100' % sC0)
        a('s_mov_b32 s%d, 0x07060302' % sC1)
        for k in range(8):
            a('v_perm_b32 v%d, v%d, v%d, s%d' % (vWOp + k, vWOr + 2 * k + 1, vWOr + 2 * k, sC0))
            a('v_perm_b32 v%d, v%d, v%d, s%d' % (vWOp + 8 + k, vWOr + 2 * k + 1, vWOr + 2 * k, sC1))

    vTB = vZ + 16 if wol else vWOr
    vRw, vRr, vPo, vOo = vTB, vTB + 1, vTB + 2, vTB + 3
    vR2w, vR2r = vTB + 4, vTB + 5
    sGa = 52

    def tail_setup():
        if tailpf:
            a('v_and_b32 v%d, 31, v0' % vTmp)
            a('v_lshlrev_b32 v%d, 7, v%d' % (vTmp, vTmp))
            a('v_add_u32 v%d, L_tail-L_pc, v%d' % (vTmp, vTmp))
            a('v_min_u32 v%d, L_codeend-L_pc-4, v%d' % (vTmp, vTmp))
            a('global_load_dword v%d, v%d, %s' % (vJunk, vTmp, sr(sPC, 2)))
        a('s_mul_i32 s%d, s%d, %d' % (sT1, sW, 2304 if red2 else 2048))
        a('s_add_u32 s%d, s%d, %d' % (sT1, sT1, L_RED))
        a('v_lshlrev_b32 v%d, %d, v%d' % (vRw, 4 if red2 else 5, vL))
        a('v_add_u32 v%d, s%d, v%d' % (vRw, sT1, vRw))
        a('v_lshlrev_b32 v%d, 3, v0' % vRr)
        a('v_add_u32 v%d, %d, v%d' % (vR2w, L_RED2, vRr))
        if red2:
            a('v_and_b32 v%d, 8, v%d' % (vRr, vRr))
            a('v_lshrrev_b32 v%d, 2, v0' % vPo)
            a('v_lshl_add_u32 v%d, v%d, 4, v%d' % (vRr, vPo, vRr))
            a('v_bfe_u32 v%d, v0, 1, 1' % vPo)
            a('v_mul_u32_u24 v%d, 1152, v%d' % (vPo, vPo))
            a('v_add_u32 v%d, v%d, v%d' % (vRr, vPo, vRr))
        a('v_add_u32 v%d, %d, v%d' % (vRr, L_RED, vRr))
        a('v_lshrrev_b32 v%d, 3, v%d' % (vPo, vL))
        a('v_mul_u32_u24 v%d, %d, v%d' % (vPo, PST, vPo))
        a('v_and_b32 v%d, 7, v%d' % (vOo, vL))
        a('v_lshl_add_u32 v%d, v%d, 4, v%d' % (vPo, vOo, vPo))
        if olay == 'prod':
            a('v_mul_u32_u24 v%d, %d, v%d' % (vOo, OST, vL))
        else:
            a('v_mul_u32_u24 v%d, %d, v%d' % (vOo, CST, vL))
        a('s_mul_i32 s%d, s%d, %d' % (sPub, sJ, PST))
        a('s_add_u32 s%d, s%d, 0x%x' % (sPub, sPub, WS_PART))
        a('s_and_b32 s%d, s%d, 0xe0' % (sT1, sJ))
        a('s_mul_i32 s%d, s%d, %d' % (sT1, sT1, PST))
        a('s_and_b32 s%d, s%d, 0x1c' % (sT2, sJ))
        a('s_add_u32 s%d, s%d, s%d' % (sT2, sT2, sW))
        a('s_lshl_b32 s%d, s%d, 7' % (sT2, sT2))
        a('s_add_u32 s%d, s%d, s%d' % (sT1, sT1, sT2))
        for jj in range(4):
            a('s_add_u32 s%d, s%d, 0x%x' % (sGa + jj, sT1, WS_PART + jj * 8 * PST))
        if olay == 'prod':
            a('s_and_b32 s%d, s%d, 3' % (sT1, sJ))
            a('s_lshl_b32 s%d, s%d, 6' % (sT1, sT1))
            a('s_lshr_b32 s%d, s%d, 2' % (sT2, sJ))
            a('s_add_u32 s%d, s%d, s%d' % (sT1, sT1, sT2))
            a('s_mul_i32 s%d, s%d, %d' % (sT1, sT1, OST))
            a('s_add_u32 s%d, s%d, 0x%x' % (sGa + 4, sT1, WS_OUTP))
            a('s_and_b32 s%d, s%d, 0xc0' % (sT1, sP))
            a('s_mul_i32 s%d, s%d, %d' % (sT1, sT1, OST))
            a('s_and_b32 s%d, s%d, 63' % (sT2, sP))
            a('s_lshl_b32 s%d, s%d, 4' % (sT2, sT2))
            a('s_add_u32 s%d, s%d, s%d' % (sT1, sT1, sT2))
            a('s_add_u32 s%d, s%d, 0x%x' % (sGa + 5, sT1, WS_OUTP))
        else:
            a('s_and_b32 s%d, s%d, 3' % (sT1, sJ))
            a('s_mul_i32 s%d, s%d, %d' % (sT1, sT1, 64 * CST))
            a('s_lshr_b32 s%d, s%d, 2' % (sT2, sJ))
            a('s_lshl_b32 s%d, s%d, 4' % (sT2, sT2))
            a('s_add_u32 s%d, s%d, s%d' % (sT1, sT1, sT2))
            a('s_add_u32 s%d, s%d, 0x%x' % (sGa + 4, sT1, WS_OUTP))
            a('s_mul_i32 s%d, s%d, %d' % (sT1, sP, CST))
            a('s_add_u32 s%d, s%d, 0x%x' % (sGa + 5, sT1, WS_OUTP))

    def warmup():
        vOst, vOld = (vT16, vOo) if olay == 'prod' else (vOo, vT16)
        if warm & 1:
            for jj in range(4):
                a('buffer_load_dword v%d, v%d, %s, s%d offen sc1' % (vJunk, vPo, sr(rWS, 4), sGa + jj))
            a('buffer_load_dword v%d, v%d, %s, s%d offen sc1' % (vJunk, vT16, sr(rWS, 4), sPub))
        if warm & 2:
            a('buffer_load_dword v%d, v%d, %s, s%d offen sc1' % (vJunk, vOld, sr(rWS, 4), sGa + 5))
            a('buffer_load_dword v%d, v%d, %s, s%d offen sc1' % (vJunk, vL4, sr(rWS, 4), sGa + 4))
        if warm & 8:
            a('v_lshrrev_b32 v%d, 4, v%d' % (vBv, vL))
            a('v_mul_u32_u24 v%d, %d, v%d' % (vBv, 21 * OST, vBv))
            a('buffer_load_dword v%d, v%d, %s, s%d offen sc1' % (vJunk, vBv, sr(rWS, 4), sGa + 5))
            a('buffer_load_dword v%d, off, %s, s%d sc1' % (vJunk, sr(rWS, 4), sGa + 4))
        if warm & 16:
            a('v_lshrrev_b32 v%d, 4, v%d' % (vBv, vL))
            a('v_mul_u32_u24 v%d, %d, v%d' % (vBv, 10 * PST, vBv))
            a('buffer_load_dword v%d, v%d, %s, s%d offen sc1' % (vJunk, vBv, sr(rWS, 4), sGa))
        if warm & 4:
            a('global_load_dword v%d, v%d, %s sc1' % (vJunk, vL4, sr(pOUT, 2)))

    def predirty():
        D = vTmp + 4
        a('s_cmp_lg_u32 s%d, 0' % sMode)
        a('s_cbranch_scc1 L_nopd')
        a.cond += 1
        for i in range(3):
            a('v_mov_b32 v%d, 0' % (D + i))
        a('v_not_b32 v%d, v%d' % (D + 3, vTag))
        a('buffer_store_dwordx4 %s, v%d, %s, s%d offen %s' % (vr(D, 4), vT16, sr(rWS, 4), sPub, pflag))
        a('s_nop 1')
        a.cond -= 1
        a.label('L_nopd')

    btok = {}

    def b_pub(k):
        a('v_add_u32 v%d, %d, v%d' % (vBv, k, vBt))
        a('buffer_store_dwordx4 %s, v%d, %s, 0 offen sc1' % (vr(vBv, 4), vBst, sr(rWS, 4)))

    def b_load(k):
        btok[k] = a('buffer_load_dword v%d, v%d, %s, 0 offen sc1' % (vBr + (len(btok) & 1), vBld, sr(rWS, 4))), vBr + (len(btok) & 1)

    def b_use(k):
        t, r = btok[k]
        a.wait_vm(t)
        a('v_sub_u32 v%d, v%d, v%d' % (r, r, vBt))
        a('v_cmp_gt_u32 vcc, 0x100, v%d' % r)
        a('v_cndmask_b32 v%d, 0, v%d, vcc' % (r, r))
        a('v_readlane_b32 s%d, v%d, s%d' % (sT1, r, sG))
        for b in (4, 2, 1):
            a('v_add_u32_dpp v%d, v%d, v%d row_ror:%d row_mask:0xf bank_mask:0xf' % (r, r, r, b))
        a('s_lshl_b32 s%d, s%d, 3' % (sT1, sT1))
        a('v_readfirstlane_b32 s%d, v%d' % (sT2, r))
        if theta:
            a('s_add_u32 s%d, s%d, %d' % (sT2, sT2, theta))
        a('s_cmp_gt_i32 s%d, s%d' % (sT1, sT2))
        a('s_cselect_b32 s%d, 1, 0' % sThr)
        if stamps:
            a('s_add_u32 s15, s15, s%d' % sThr)

    ctok = {}

    def c_add(k):
        r = vBr + (k & 1)
        a('s_cmp_eq_u32 s%d, %d' % (sW, k & 3))
        a('s_cselect_b32 s%d, 0, 0x7ff00000' % sT1)
        a('v_or_b32 v%d, s%d, v%d' % (vBv + 1, sT1, vBv))
        a('v_mov_b32 v%d, 1' % r)
        ctok[k] = a('buffer_atomic_add v%d, v%d, %s, 0 offen %s' % (r, vBv + 1, sr(rWS, 4), cflag))

    def c_use(k):
        r = vBr + (k & 1)
        n = 256 // NC
        a.wait_vm(ctok[k])
        a('v_readfirstlane_b32 s%d, v%d' % (sT1, r))
        a('s_mov_b32 s%d, 0' % sT2)
        for d in dth:
            a('s_cmp_lt_i32 s%d, %d' % (sT1, k * n + n // 2 - d))
            a('s_addc_u32 s%d, s%d, 0' % (sT2, sT2))
        if cforce is not None:
            a('s_mov_b32 s%d, %d' % (sT2, cforce))
        a('s_cmp_eq_u32 s%d, %d' % (sW, k & 3))
        a('s_cselect_b32 s%d, 0, 4' % sT1)
        a('v_mov_b32 v%d, s%d' % (r, sT2))
        a('v_add_u32 v%d, s%d, v%d' % (vBv + 1, sT1, vBv + 3))
        a('s_mov_b64 exec, 1')
        a('ds_write_b32 v%d, v%d' % (vBv + 1, r))
        a('s_mov_b64 exec, -1')

    def s_add(k):
        if clat == k:
            stamp()
        a('s_mov_b32 s%d, 1' % sCD)
        if cop == 'add':
            a('s_atomic_add s%d, %s, 0 glc' % (sCD, sr(sCA, 2)))
        else:
            a('s_load_dword s%d, %s, %d glc' % (sCD, sr(sCA, 2), 128 * k))

    def s_use(k):
        n = 1024 // NC
        if clat == k:
            stamp()
        a.wait_lg()
        if clat == k:
            stamp()
            stamp()
            stamp()
        a('s_mov_b32 s%d, 0' % sThr)
        for d in dth:
            a('s_cmp_lt_i32 s%d, %d' % (sCD, k * n + n // 2 - d))
            a('s_addc_u32 s%d, s%d, 0' % (sThr, sThr))
        if cforce is not None:
            a('s_mov_b32 s%d, %d' % (sThr, cforce))

    def w_add(k):
        a('s_cmp_lg_u32 s%d, 0' % sW)
        a('s_cbranch_scc1 L_wa%d' % k)
        if clat == k:
            stamp()
        a('s_mov_b32 s%d, 1' % sCD)
        if cop == 'add':
            a('s_atomic_add s%d, %s, 0 glc' % (sCD, sr(sCA, 2)))
        elif cop == 'ld':
            a('s_load_dword s%d, %s, %d glc' % (sCD, sr(sCA, 2), 128 * k))
        a.label('L_wa%d' % k)

    def w_use(k):
        n = 256 // NC
        a('s_cmp_lg_u32 s%d, 0' % sW)
        a('s_cbranch_scc1 L_wu%d' % k)
        if clat == k:
            stamp()
        a.wait_lg()
        if clat == k:
            stamp()
            stamp()
            stamp()
        a('s_mov_b32 s%d, 0' % sThr)
        for d in dth:
            a('s_cmp_lt_i32 s%d, %d' % (sCD, k * n + n // 2 - d))
            a('s_addc_u32 s%d, s%d, 0' % (sThr, sThr))
        if cforce is not None:
            a('s_mov_b32 s%d, %d' % (sThr, cforce))
        a('v_mov_b32 v%d, s%d' % (vBv, sThr))
        a('s_mov_b64 exec, 1')
        a('ds_write_b32 v%d, v%d' % (vBv + 3, vBv))
        a('s_mov_b64 exec, -1')
        a.label('L_wu%d' % k)
        a.smem_out = True
        a.lg_done = 0

    nlab = [0]

    def w_read():
        nlab[0] += 1
        a('s_cmp_eq_u32 s%d, 0' % sW)
        a('s_cbranch_scc1 L_wr%d' % nlab[0])
        a('ds_read_b32 v%d, v%d' % (vBv + 2, vBv + 3))
        a.label('L_wr%d' % nlab[0])
        a.smem_out = True

    def w_get():
        nlab[0] += 1
        a('s_cmp_eq_u32 s%d, 0' % sW)
        a('s_cbranch_scc1 L_wr%d' % nlab[0])
        a.wait_lg()
        a('v_readfirstlane_b32 s%d, v%d' % (sThr, vBv + 2))
        a.label('L_wr%d' % nlab[0])
        a.smem_out = True
        a.lg_done = 0
        if stamps:
            a('s_add_u32 s15, s15, s%d' % sThr)

    def c_read():
        ctok['r'] = a('ds_read_b32 v%d, v%d' % (vBv + 2, vBv + 3))

    def c_get():
        a.wait_lg(ctok['r'])
        a('v_readfirstlane_b32 s%d, v%d' % (sThr, vBv + 2))
        if stamps:
            a('s_add_u32 s15, s15, s%d' % sThr)

    sched = {i: [] for i in range(-1, N)}

    def at(i, f):
        i = min(i, N - 1)
        sched[i].append(f)
        return i

    p = W0 * sub - 1
    if xpos:
        at(xpos - 1, xload)
    if pfpos:
        at(pfpos - 1, lambda: a('global_load_dword v%d, v%d, %s' % (vJunk, vTmp + 1, sr(sPC, 2))))
    if wwarm:
        at(last[wwarm], lambda: a('buffer_load_dword v%d, off, %s, 0' % (vJunk, sr(rWO, 4))) if wwarm != 'K0a' else None)
    at(p, setup)
    if wwarm == 'K0a':
        at(p, lambda: a('buffer_load_dword v%d, off, %s, 0' % (vJunk, sr(rWO, 4))))
    p = at(p + lnp, ln1)
    p = at(max(ready('WQ') + d1 * sub, p), qpart)
    pbar = p
    for f in [ln2] + [lambda k=k: gelu_chunk(k) for k in range(4)] + [y_finish]:
        p = at(p + sub, f)
    pq = at(last[qpos], q_issue)
    p1 = at(rdy(pq), q_take)
    p2 = at(p1 + d2 * sub, q_frag)
    assert p <= p2, 'gelu must finish before qk'
    assert p2 < first['K4a'], (p2, first['K4a'])
    p = p2
    for t in range(4):
        p = at(min(max(p, p2 + t * sub), first['K%da' % (t + 4)] - 1), lambda t=t: qk(t))
    at(p, q_mode)
    if wol:
        last['WO'] = 0
    else:
        at(max(ready('WO'), p), wo_pair)
    at(max(ready('WO'), p), tail_setup)
    if warm:
        at(last[warmpos] if warmpos else max(ready('WO'), p), warmup)
    if pdpos:
        assert last[pdpos] >= max(ready('WO'), p)
        at(last[pdpos], predirty)
    if two:
        assert not bal and not ctl
        pa = at(p + two[0], sm_maxA)
        at(pa, lambda: (sm_exp(0), sm_exp(1)))
        pa = at(p + two[1], lambda: (sm_exp(2), sm_exp(3)))
        for t in range(4):
            assert p + two[2 + t] >= max(pa, ready('V%db' % t)) and p + two[2 + t] < ready('K7b')
            at(p + two[2 + t], lambda t=t: (p_prep(t), pv(t)))
    for t in range(4, 8):
        p = at(ready('K%db' % (t | 1 if qkpair == 1 else 7 if qkpair == 2 else t)), lambda t=t: qk(t))
    at(p, sm_max)
    p0 = p
    for t in range(4 if two else 0, 8, 2):
        p = at(p0 + exo[t // 2] if exo else p + (sub if t % 4 else 0), lambda t=t: (sm_exp(t), sm_exp(t + 1)))
    at(p, sm_fin)
    late = []
    for t in range(4 if two else 0, 8):
        r = max(ready('V%db' % t), p + (pvo[t] if pvo and t < len(pvo) else 0))
        if r < N - 1 and t < 7:
            at(r, lambda t=t: (p_prep(t), pv(t)))
        else:
            late.append(t)
    if bal:
        b0 = (W0 * sub if bstart is None else bstart)
        b1 = (N - 1 if bend is None else bend)
        for i in range(b0, b1 if thrmask is None else b0):
            if (i - b0) % pub == 0:
                sched[i].insert(0, lambda i=i: b_pub(i))
            if (i - b0) % chk == 0 and i + Wn + 1 < N - 1:
                assert chk * 2 > Wn, 'only two result regs'
                sched[i].insert(0, lambda i=i: b_load(i))
                sched[i + Wn + 1].insert(0, lambda i=i: b_use(i))
        a('s_mov_b32 s%d, %d' % (sThr, bal - 1))
        a('s_mov_b32 s15, 0')
        if thrmask is not None:
            a('s_and_b32 s%d, s2, 7' % sThr)
            a('s_lshr_b32 s%d, %d, s%d' % (sThr, thrmask, sThr))
            a('s_and_b32 s%d, s%d, 1' % (sThr, sThr))
    cget = set()
    if verbose:
        for i in range(N):
            print(i, seq[i], [getattr(f, '__name__', '?') for f in sched[i]], file=sys.stderr)
    if ctl == 3:
        cfirst = cpts[0][1] * sub + 1
        for u in range(cpts[0][1], N // sub - 1):
            sched[u * sub + sub - 1].append(w_read)
            sched[u * sub + sub].insert(0, w_get)
        for k, (i, j) in enumerate(cpts):
            sched[i * sub + sub - 1].append(lambda k=k: w_add(k))
            sched[j * sub].insert(0, lambda k=k: w_use(k))
        a('s_mov_b32 s%d, 0' % sThr)
        a('s_mov_b32 s15, 0')
    elif ctl == 2:
        for k, (i, j) in enumerate(cpts):
            sched[i * sub + sub - 1].append(lambda k=k: s_add(k))
            sched[j * sub].insert(0, lambda k=k: s_use(k))
        cfirst = cpts[0][1] * sub + 1
        a('s_mov_b32 s%d, 0' % sThr)
        a('s_mov_b32 s15, 0')
    elif ctl:
        c0_ = max(pbar + 1, cstart or 0)
        c1_ = N - 1 if cend is None else cend
        k = 0
        assert CP * 2 > Wn
        fu = None
        for i in range(c0_, c1_, CP):
            if i + Wn + 1 >= N - 2:
                break
            sched[i].insert(0, lambda k=k: c_add(k))
            sched[i + Wn + 1].insert(0, lambda k=k: c_use(k))
            fu = fu or i + Wn + 1
            k += 1
        for i in range(fu, N - 1, sub if ctl == 1 else 1):
            sched[i].append(c_read)
            cget.add(i + 1)
        a('s_mov_b32 s%d, 0' % sThr)
        a('s_mov_b32 s15, 0')
    utok = []
    for i, (n, s) in enumerate(seq):
        if i >= W0 * sub and i - Wf(i) >= 0:
            a.wait_vm(utok[i - Wf(i)])
        if bal and i >= W0 * sub and i - Wlo >= 0:
            a('s_cmp_eq_u32 s%d, 0' % sThr)
            a('s_cbranch_scc1 L_b%d' % i)
            a('s_waitcnt vmcnt(%d)' % (a.vm - utok[i - Wlo]))
            a.label('L_b%d' % i)
        if i in cget:
            c_get()
        if ctl == 2 and stamps and i >= cfirst:
            a('s_add_u32 s15, s15, s%d' % sThr)
        if (ctl in (2, 3) and i >= cfirst) or (ctl == 1 and cget and i >= min(cget)):
            for li, wl in enumerate(Wl):
                a('s_cmp_eq_u32 s%d, %d' % (sThr, li))
                a('s_cbranch_scc1 L_c%d' % i)
                a('s_waitcnt vmcnt(%d)' % min(63, a.vm - utok[i - wl]))
            a.label('L_c%d' % i)
        if ts and i in ts:
            stamp()
            a.smem_out = False
        a.comment('unit %s.%d' % (n, s))
        utok.append(issue(n, s))
        for f in sched[i]:
            f()
    ool = []
    if wol == 2:
        issue('WO', 0)
    if wol == 8:
        issue('WO', (0, 1))
    a.label('L_tail')
    a.wait_lg()
    a('s_barrier')
    vA = vTmp
    a('s_lshl_b32 s%d, s%d, 5' % (sT1, sW))
    a('s_add_u32 s%d, s%d, %d' % (sT1, sT1, L_ML))
    a('v_mov_b32 v%d, s%d' % (vA, sT1))
    ML = vQ
    a('ds_read_b128 %s, v%d' % (vr(ML, 4), vA))
    a('ds_read_b128 %s, v%d offset:16' % (vr(ML + 4, 4), vA))
    a('v_mov_b32 v%d, %d' % (vA + 1, L_YP))
    a('ds_read_b128 %s, v%d' % (vr(ML + 8, 4), vA + 1))
    a('ds_read_b128 %s, v%d offset:16' % (vr(ML + 12, 4), vA + 1))
    if wol == 7:
        issue('WO', 0)
    a.wait_lg()
    Mx = vWt + 4
    a('v_max3_f32 v%d, v%d, v%d, v%d' % (Mx, ML, ML + 2, ML + 4))
    a('v_max_f32 v%d, v%d, v%d' % (Mx, Mx, ML + 6))
    for w in range(4):
        a('v_sub_f32 v%d, v%d, v%d' % (vWt + w, ML + 2 * w, Mx))
    for w in range(4):
        a('v_exp_f32 v%d, v%d' % (vWt + w, vWt + w))
    Ls = vWt + 5
    a('v_mul_f32 v%d, v%d, v%d' % (Ls, vWt, ML + 1))
    for w in range(1, 4):
        a('v_fmac_f32 v%d, v%d, v%d' % (Ls, vWt + w, ML + 2 * w + 1))
    a('v_rcp_f32 v%d, v%d' % (vWt + 6, Ls))
    a('v_log_f32 v%d, v%d' % (Ls, Ls))
    for w in range(4):
        a('v_mul_f32 v%d, v%d, v%d' % (vWt + w, vWt + w, vWt + 6))
    GP = vTmp + 4
    a('v_add_f32 v%d, v%d, v%d' % (GP + 2, Mx, Ls))
    a('v_xor_b32 v%d, v%d, v%d' % (GP + 3, GP + 2, vTag))
    for c in range(2):
        a('v_add_f32 v%d, v%d, v%d' % (ML + 8 + c, ML + 8 + c, ML + 10 + c))
        a('v_add_f32 v%d, v%d, v%d' % (ML + 12 + c, ML + 12 + c, ML + 14 + c))
    a('v_lshlrev_b32 v%d, 16, v%d' % (vB2, vB2))
    for c in range(2):
        a('v_add_f32 v%d, v%d, v%d' % (vY + c, ML + 8 + c, ML + 12 + c))
    for c in range(2):
        rnd(vY + c, vY + c)
    for c in range(2):
        a('v_add_f32 v%d, v%d, v%d' % (vY + c, vY + c, vB2))
    for c in range(2):
        rnd(vY + c, vY + c)
    vXu = vWt + 6
    unpack(vXu, vXp, 1)
    if wol == 4:
        issue('WO', 0)
    if wol == 8:
        issue('WO', (2, 3))
    if wol == 9:
        issue('WO', (0, 1))
    for t in late:
        p_prep(t)
        if wol == 3 and t == 7:
            a.wait_vm(tok['V7a'])
            issue('WO', 0)
        if wol == 5 and t == 7:
            issue('WO', 0)
        if wol == 9 and t == 7:
            issue('WO', (2, 3))
        pv(t, fine=True)
    if wol == 6:
        issue('WO', 0)
    stamp()

    def pround():
        for jj in range(4):
            a('buffer_load_dwordx4 %s, v%d, %s, s%d offen %s' % (vr(vQ + 4 * jj, 4), vPo, sr(rWS, 4), sGa + jj, pld))
    if pm == 3 and r0 == 0:
        pround()
    a('ds_write_b128 v%d, %s' % (vRw, vr(vO, 4)))
    a('ds_write_b128 v%d, %s offset:%d' % (vRw, vr(vO + 4, 4), 1152 if red2 else 16))
    if pm == 3 and r0 == 1:
        pround()
    a.wait_lg()
    a('s_barrier')
    R = vS + 8 if pm == 3 else vQ
    lt = [a('ds_read_b64 %s, v%d offset:%d' % (vr(R + 2 * w, 2), vRr, w * (2304 if red2 else 2048))) for w in range(4)]
    a('s_mov_b32 s%d, 0' % sCnt)
    a('s_cmp_lg_u32 s%d, 0' % sMode)
    for w in range(4):
        a.wait_lg(lt[w])
        if red2:
            sel = 'op_sel:[0,1,0] op_sel_hi:[1,1,1]' if w & 1 else 'op_sel_hi:[1,0,1]'
            if w == 0:
                a('v_pk_mul_f32 %s, %s, %s op_sel_hi:[1,0]' % (vr(GP, 2), vr(R, 2), vr(vWt, 2)))
            else:
                a('v_pk_fma_f32 %s, %s, %s, %s %s' % (vr(GP, 2), vr(R + 2 * w, 2), vr(vWt + (w & 2), 2), vr(GP, 2), sel))
            continue
        for c in range(2):
            if w == 0:
                a('v_mul_f32 v%d, v%d, v%d' % (GP + c, vWt, R + c))
            else:
                a('v_fmac_f32 v%d, v%d, v%d' % (GP + c, vWt + w, R + 2 * w + c))
    xor3(GP + 3, GP + 3, GP, GP + 1)
    a('s_cbranch_scc1 L_pslow')
    a('buffer_store_dwordx4 %s, v%d, %s, s%d offen %s' % (vr(GP, 4), vT16, sr(rWS, 4), sPub, pflag))
    a.label('L_pback')
    stamp()
    Gq = vQ
    GO = vTmp
    C = vQ + 16
    Mx = C + 4
    K = C + 12
    A0, A1, Wt = C + 8, C + 9, C + 10
    if pm:
        sM = 60
        for i in range(4):
            a('v_mov_b32 v%d, 0' % (GO + i))
        for jj in range(4):
            a('buffer_load_dwordx4 %s, v%d, %s, s%d offen %s' % (vr(Gq + 4 * jj, 4), vPo, sr(rWS, 4), sGa + jj, pld))
        if wol:
            a('s_waitcnt vmcnt(%d)' % (5 if pm == 3 else 4))
            wo_pair(False)
        if pm == 3:
            pround()
        a.label('L_pg')
        if pm == 3:
            a('s_waitcnt vmcnt(4)')
        else:
            a.wait_vm0()
        if pst:
            a('s_memrealtime %s' % sr(sST + 6, 2))
        for jj in range(4):
            xor3(K + jj, Gq + 4 * jj, Gq + 4 * jj + 1, Gq + 4 * jj + 2)
        for jj in range(4):
            xor3(K + jj, K + jj, Gq + 4 * jj + 3, vTag)
        a('v_max3_f32 v%d, v%d, v%d, v%d' % (Mx, Gq + 2, Gq + 6, Gq + 10))
        a('v_or3_b32 v%d, v%d, v%d, v%d' % (C + 6, K, K + 1, K + 2))
        a('v_max_f32 v%d, v%d, v%d' % (Mx, Mx, Gq + 14))
        a('v_or_b32 v%d, v%d, v%d' % (C + 6, C + 6, K + 3))
        a('v_cmp_ne_u32 vcc, 0, v%d' % (C + 6))
        a('v_max_f32_dpp v%d, v%d, v%d row_ror:8 row_mask:0xf bank_mask:0xf' % (Mx, Mx, Mx))
        a('v_mov_b32 v%d, v%d' % (C + 5, Mx))
        a('s_cbranch_vccnz L_pretry')
        a.label('L_pcont')
        if om == 3:
            a('s_cmp_lg_u32 s%d, %d' % (sW, ow))
            a('s_cbranch_scc1 L_noe')
            a('buffer_load_dwordx4 %s, v%d, %s, s%d offen sc1' % (vr(vS, 4), vOo if olay == 'prod' else vT16, sr(rWS, 4), sGa + 5))
            a.label('L_noe')
        a('v_permlane16_swap_b32 v%d, v%d' % (Mx, C + 5))
        a('v_max_f32 v%d, v%d, v%d' % (Mx, Mx, C + 5))
        a('v_mov_b32 v%d, v%d' % (C + 5, Mx))
        a('v_permlane32_swap_b32 v%d, v%d' % (Mx, C + 5))
        a('v_max_f32 v%d, v%d, v%d' % (Mx, Mx, C + 5))
        for jj in range(4):
            a('v_sub_f32 v%d, v%d, v%d' % (C + jj, Gq + 4 * jj + 2, Mx))
        for jj in range(4):
            a('v_exp_f32 v%d, v%d' % (C + jj, C + jj))
        a('v_pk_mul_f32 %s, %s, %s op_sel_hi:[1,0]' % (vr(A0, 2), vr(Gq, 2), vr(C, 2)))
        a('v_add_f32 v%d, v%d, v%d' % (Wt, C, C + 1))
        a('v_pk_fma_f32 %s, %s, %s, %s op_sel:[0,1,0] op_sel_hi:[1,1,1]' % (vr(A0, 2), vr(Gq + 4, 2), vr(C, 2), vr(A0, 2)))
        a('v_add_f32 v%d, v%d, v%d' % (Wt, Wt, C + 2))
        a('v_pk_fma_f32 %s, %s, %s, %s op_sel_hi:[1,0,1]' % (vr(A0, 2), vr(Gq + 8, 2), vr(C + 2, 2), vr(A0, 2)))
        a('v_add_f32 v%d, v%d, v%d' % (Wt, Wt, C + 3))
        a('v_pk_fma_f32 %s, %s, %s, %s op_sel:[0,1,0] op_sel_hi:[1,1,1]' % (vr(A0, 2), vr(Gq + 12, 2), vr(C + 2, 2), vr(A0, 2)))
        allred([Wt, A0, A1], 'add_f32', [C, C + 1, C + 2], bits=(3, 4, 5))
        a('v_rcp_f32 v%d, v%d' % (Wt, Wt))
        a('v_pk_mul_f32 %s, %s, %s op_sel_hi:[1,0]' % (vr(A0, 2), vr(A0, 2), vr(Wt, 2)))
        a('v_cvt_pk_bf16_f32 v%d, v%d, v%d' % (A0, A0, A1))
        for k in range(8):
            for c in range(2):
                a('v_dot2c_f32_bf16_dpp v%d, v%d, v%d row_newbcast:%d row_mask:0xf bank_mask:0xf' % (GO + c + 2 * (k & 1), A0, vWOp + 8 * c + k, k))
        a('v_pk_add_f32 %s, %s, %s' % (vr(GO, 2), vr(GO, 2), vr(GO + 2, 2)))

        def pretry(Gq=Gq):
            a.label('L_pretry')
            a('s_add_u32 s%d, s%d, 1' % (sCnt, sCnt))
            a('s_cmp_ge_u32 s%d, %d' % (sCnt, SPIN))
            a('s_cbranch_scc1 L_pcont')
            if pst:
                a('s_memrealtime %s' % sr(sST + 4, 2))
            if pm in (1, 3):
                a('s_mov_b64 exec, vcc')
            for jj in range(4):
                if pm == 2:
                    a('v_cmp_ne_u32 vcc, 0, v%d' % (K + jj))
                    a('s_mov_b64 exec, vcc')
                a('buffer_load_dwordx4 %s, v%d, %s, s%d offen %s' % (vr(Gq + 4 * jj, 4), vPo, sr(rWS, 4), sGa + jj, pld))
                if pm == 2:
                    a('s_mov_b64 exec, -1')
            a('s_mov_b64 exec, -1')
            a('s_branch L_pg')
        ool.append(pretry)
    else:
        a.label('L_pg')
        if pst:
            a('s_memrealtime %s' % sr(sST + 4, 2))
        for jj in range(4):
            a('buffer_load_dwordx4 %s, v%d, %s, s%d offen %s' % (vr(Gq + 4 * jj, 4), vPo, sr(rWS, 4), sGa + jj, pld))
        for i in range(4):
            a('v_mov_b32 v%d, 0' % (GO + i))
        a.wait_vm0()
        if pst:
            a('s_memrealtime %s' % sr(sST + 6, 2))
        a('v_max3_f32 v%d, v%d, v%d, v%d' % (Mx, Gq + 2, Gq + 6, Gq + 10))
        a('v_max_f32 v%d, v%d, v%d' % (Mx, Mx, Gq + 14))
        for jj in range(2):
            xor3(K + jj, Gq + 4 * jj, Gq + 4 * jj + 1, Gq + 4 * jj + 2)
        a('v_max_f32_dpp v%d, v%d, v%d row_ror:8 row_mask:0xf bank_mask:0xf' % (Mx, Mx, Mx))
        a('v_mov_b32 v%d, v%d' % (C + 5, Mx))
        for jj in range(2, 4):
            xor3(K + jj, Gq + 4 * jj, Gq + 4 * jj + 1, Gq + 4 * jj + 2)
        a('v_permlane16_swap_b32 v%d, v%d' % (Mx, C + 5))
        a('v_max_f32 v%d, v%d, v%d' % (Mx, Mx, C + 5))
        a('v_mov_b32 v%d, v%d' % (C + 5, Mx))
        for jj in range(2):
            xor3(K + jj, K + jj, Gq + 4 * jj + 3, vTag)
        a('v_permlane32_swap_b32 v%d, v%d' % (Mx, C + 5))
        a('v_max_f32 v%d, v%d, v%d' % (Mx, Mx, C + 5))
        for jj in range(4):
            a('v_sub_f32 v%d, v%d, v%d' % (C + jj, Gq + 4 * jj + 2, Mx))
        for jj in range(4):
            a('v_exp_f32 v%d, v%d' % (C + jj, C + jj))
        a('v_mul_f32 v%d, v%d, v%d' % (A0, C, Gq))
        a('v_mul_f32 v%d, v%d, v%d' % (A1, C, Gq + 1))
        a('v_add_f32 v%d, v%d, v%d' % (Wt, C, C + 1))
        for jj in range(1, 4):
            a('v_fmac_f32 v%d, v%d, v%d' % (A0, C + jj, Gq + 4 * jj))
            a('v_fmac_f32 v%d, v%d, v%d' % (A1, C + jj, Gq + 4 * jj + 1))
            if jj > 1:
                a('v_add_f32 v%d, v%d, v%d' % (Wt, Wt, C + jj))
        allred([Wt, A0, A1], 'add_f32', [C, C + 1, C + 2], bits=(3, 4, 5))
        a('v_rcp_f32 v%d, v%d' % (Wt, Wt))
        for jj in range(2, 4):
            xor3(K + jj, K + jj, Gq + 4 * jj + 3, vTag)
        a('v_mul_f32 v%d, v%d, v%d' % (A0, A0, Wt))
        a('v_mul_f32 v%d, v%d, v%d' % (A1, A1, Wt))
        a('v_cvt_pk_bf16_f32 v%d, v%d, v%d' % (A0, A0, A1))
        a('v_or3_b32 v%d, v%d, v%d, v%d' % (K, K, K + 1, K + 2))
        a('v_or_b32 v%d, v%d, v%d' % (K, K, K + 3))
        for k in range(8):
            for c in range(2):
                a('v_dot2c_f32_bf16_dpp v%d, v%d, v%d row_newbcast:%d row_mask:0xf bank_mask:0xf' % (GO + c + 2 * (k & 1), A0, vWOp + 8 * c + k, k))
        a('v_cmp_ne_u32 vcc, 0, v%d' % K)
        a('s_add_u32 s%d, s%d, 1' % (sCnt, sCnt))
        a('v_add_f32 v%d, v%d, v%d' % (GO, GO, GO + 2))
        a('v_add_f32 v%d, v%d, v%d' % (GO + 1, GO + 1, GO + 3))
        a('s_cbranch_vccz L_pok')
        if sleep:
            a('s_sleep %d' % sleep)
        a('s_cmp_lt_u32 s%d, %d' % (sCnt, SPIN))
        a('s_cbranch_scc1 L_pg')
    a.label('L_pok')
    a('ds_write_b64 v%d, %s' % (vR2w, vr(GO, 2)))
    stamp()
    a.wait_lg()
    a('s_barrier')
    a('s_cmp_lg_u32 s%d, 0' % sW)
    a('s_cbranch_scc1 %s' % ('L_w1' if ow else 'L_clean' if clean else 'L_fin'))
    lt = [a('ds_read_b64 %s, v%d offset:%d' % (vr(R + 2 * w, 2), vR2w, w * 512)) for w in range(4)]
    a('s_mov_b32 s%d, 0' % sCnt)
    a.wait_lg(lt[1])
    a('v_pk_add_f32 %s, %s, %s' % (vr(R, 2), vr(R, 2), vr(R + 2, 2)))
    a.wait_lg(lt[3])
    a('v_pk_add_f32 %s, %s, %s' % (vr(R + 4, 2), vr(R + 4, 2), vr(R + 6, 2)))
    a('v_pk_add_f32 %s, %s, %s' % (vr(GO, 2), vr(R, 2), vr(R + 4, 2)))
    vOst, vOld = (vT16, vOo) if olay == 'prod' else (vOo, vT16)
    if oat:
        a('v_mov_b32 v%d, v%d' % (GO + 2, GO + 1))
        a('v_xor_b32 v%d, v%d, v%d' % (GO + 1, GO, vTag))
        a('v_xor_b32 v%d, v%d, v%d' % (GO + 3, GO + 2, vTag))
        a('buffer_atomic_swap_x2 %s, v%d, %s, s%d offen %s' % (vr(GO, 2), vOst, sr(rWS, 4), sGa + 4, oflag))
        a('buffer_atomic_swap_x2 %s, v%d, %s, s%d offen offset:8 %s' % (vr(GO + 2, 2), vOst, sr(rWS, 4), sGa + 4, oflag))
    else:
        xor3(GO + 2, GO, GO + 1, vTag)
        a('buffer_store_dwordx4 %s, v%d, %s, s%d offen %s' % (vr(GO, 4), vOst, sr(rWS, 4), sGa + 4, oflag))
    if clean == 1:
        a('buffer_store_dwordx4 %s, v%d, %s, s%d offen sc1' % (vr(GP, 4), vT16, sr(rWS, 4), sPub))
    stamp()
    if ow:
        a('s_branch L_fin')
        a.label('L_w1')
        a('s_cmp_lg_u32 s%d, %d' % (sW, ow))
        a('s_cbranch_scc1 L_fin')
        a('s_mov_b32 s%d, 0' % sCnt)
    if pm == 3:
        Gq = vS + 16
    a('s_lshl_b32 s%d, s%d, 2' % (sT1, sP))
    a('v_mov_b32 v%d, s%d' % (Gq + 8, sT1))
    def ofin(B):
        if oat:
            assert B == Gq
            xor3(C + 4, B, B + 1, vTag)
            xor3(C + 5, B + 2, B + 3, vTag)
            a('v_mov_b32 v%d, v%d' % (B + 1, B + 2))
            a('v_or_b32 v%d, v%d, v%d' % (C + 4, C + 4, C + 5))
            a('v_cmp_ne_u32 vcc, 0, v%d' % (C + 4))
        else:
            xor3(C + 4, B, B + 1, B + 2)
            a('v_cmp_ne_u32 vcc, v%d, v%d' % (C + 4, vTag))
        if B != Gq:
            for c in range(2):
                a('v_add_f32_dpp v%d, v%d, v%d row_ror:1 row_mask:0xf bank_mask:0xf' % (Gq + c, B + c, B + c))
            allred([Gq, Gq + 1], 'add_f32', [C, C + 1], bits=(1, 2, 3, 4, 5))
        else:
            allred([Gq, Gq + 1], 'add_f32', [C, C + 1])
        for c in range(2):
            rnd(Gq + c, Gq + c)
        for c in range(2):
            a('v_add_f32 v%d, v%d, v%d' % (Gq + c, Gq + c, vXu + c))
        for c in range(2):
            rnd(Gq + c, Gq + c)
        for c in range(2):
            a('v_add_f32 v%d, v%d, v%d' % (Gq + c, Gq + c, vY + c))
        a('v_cvt_pk_bf16_f32 v%d, v%d, v%d' % (Gq, Gq, Gq + 1))
    if om:
        B = vS
        a('buffer_load_dwordx4 %s, v%d, %s, s%d offen sc1' % (vr(B, 4), vOld, sr(rWS, 4), sGa + 5))
        a.label('L_og')
        a('s_waitcnt vmcnt(%d)' % (1 if om == 3 else 0))
        if pst:
            a('s_memrealtime %s' % sr(sST + 10, 2))
        xor3(C + 4, B, B + 1, B + 2)
        for c in range(2):
            a('v_add_f32_dpp v%d, v%d, v%d row_ror:1 row_mask:0xf bank_mask:0xf' % (Gq + c, B + c, B + c))
        a('v_cmp_ne_u32 vcc, v%d, v%d' % (C + 4, vTag))
        allred([Gq, Gq + 1], 'add_f32', [C, C + 1], bits=(1,))
        a('s_cbranch_vccnz L_oretry')
        a.label('L_ocont')
        allred([Gq, Gq + 1], 'add_f32', [C, C + 1], bits=(2, 3, 4, 5))
        for c in range(2):
            rnd(Gq + c, Gq + c)
        a('v_pk_add_f32 %s, %s, %s' % (vr(Gq, 2), vr(Gq, 2), vr(vXu, 2)))
        for c in range(2):
            rnd(Gq + c, Gq + c)
        a('v_pk_add_f32 %s, %s, %s' % (vr(Gq, 2), vr(Gq, 2), vr(vY, 2)))
        a('v_cvt_pk_bf16_f32 v%d, v%d, v%d' % (Gq, Gq, Gq + 1))

        def oretry():
            a.label('L_oretry')
            a('s_add_u32 s%d, s%d, 1' % (sCnt, sCnt))
            a('s_cmp_ge_u32 s%d, %d' % (sCnt, SPIN))
            a('s_cbranch_scc1 L_ocont')
            if pst:
                a('s_memrealtime %s' % sr(sST + 8, 2))
            if om in (1, 3):
                a('s_mov_b64 exec, vcc')
            if sleep:
                a('s_sleep %d' % sleep)
            a('buffer_load_dwordx4 %s, v%d, %s, s%d offen sc1' % (vr(B, 4), vOld, sr(rWS, 4), sGa + 5))
            a('s_mov_b64 exec, -1')
            a('s_branch L_og')
        ool.append(oretry)
    elif opoll == 1:
        a.label('L_og')
        if pst:
            a('s_memrealtime %s' % sr(sST + 8, 2))
        a('buffer_load_dwordx4 %s, v%d, %s, s%d offen sc1' % (vr(Gq, 4), vOld, sr(rWS, 4), sGa + 5))
        a.wait_vm0()
        if pst:
            a('s_memrealtime %s' % sr(sST + 10, 2))
        ofin(Gq)
        a('s_add_u32 s%d, s%d, 1' % (sCnt, sCnt))
        a('s_cbranch_vccz L_ook')
        if sleep:
            a('s_sleep %d' % sleep)
        a('s_cmp_lt_u32 s%d, %d' % (sCnt, SPIN))
        a('s_cbranch_scc1 L_og')
    else:
        OB = vS
        assert opoll * 4 <= 64
        for k in range(1, opoll):
            a('v_mov_b32 v%d, 0' % (OB + 4 * k))
            a('v_mov_b32 v%d, 0' % (OB + 4 * k + 1))
            a('v_not_b32 v%d, v%d' % (OB + 4 * k + 2, vTag))
        a.label('L_og')
        for k in range(opoll):
            a('buffer_load_dwordx4 %s, v%d, %s, s%d offen sc1' % (vr(OB + 4 * k, 4), vOld, sr(rWS, 4), sGa + 5))
            a('s_waitcnt vmcnt(%d)' % (opoll - 1))
            ofin(OB + 4 * ((k + 1) % opoll))
            a('s_cbranch_vccz L_ook')
        a('s_add_u32 s%d, s%d, 1' % (sCnt, sCnt))
        a('s_cmp_lt_u32 s%d, %d' % (sCnt, SPIN))
        a('s_cbranch_scc1 L_og')
    a.label('L_ook')
    a('s_mov_b64 exec, 1')
    a('global_store_dword v%d, v%d, %s %s' % (Gq + 8, Gq, sr(pOUT, 2), oflg))
    a('s_cmp_lg_u32 s2, 0')
    a('s_cbranch_scc1 L_fin')
    a('buffer_store_dword v%d, off, %s, 0 %s' % (vTag, sr(rWS, 4), tflag))
    if dbgpc:
        a('v_mov_b32 v%d, s%d' % (vS + 8, sPC))
        a('v_mov_b32 v%d, s%d' % (vS + 9, sPC + 1))
        a('v_mov_b32 v%d, 0' % (vS + 10))
        a('global_store_dwordx2 v%d, %s, s[26:27]' % (vS + 10, vr(vS + 8, 2)))
    a.label('L_fin')
    if dbg:
        a('s_memrealtime s[78:79]')
        a.wait_lg()
        a('s_mov_b64 exec, 1')
        a('v_mov_b32 v%d, 0' % vS)
        for i in range(nst[0]):
            if i == 10:
                continue
            a('v_mov_b32 v%d, s%d' % (vS + 1, sST + 2 * i))
            a('global_atomic_umax v%d, v%d, s[26:27] offset:%d' % (vS, vS + 1, 4 * i))
        a('v_mov_b32 v%d, s78' % (vS + 1))
        a('global_atomic_umax v%d, v%d, s[26:27] offset:%d' % (vS, vS + 1, 4 * 11))
        for k, i in enumerate((0, 2, 7)):
            a('s_not_b32 s78, s%d' % (sST + 2 * i))
            a('v_mov_b32 v%d, s78' % (vS + 1))
            a('global_atomic_umax v%d, v%d, s[26:27] offset:%d' % (vS, vS + 1, 4 * (12 + k)))
    elif stamps:
        a('s_memrealtime s[78:79]')
        a.wait_lg()
        a('s_waitcnt vmcnt(0)')
        a('s_mov_b64 exec, 1')
        a('s_getreg_b32 s%d, hwreg(HW_REG_XCC_ID)' % sT2)
        for i in range(11):
            a('v_mov_b32 v%d, s%d' % (vS + i, sST + 2 * i if i < nst[0] else sST))
        a('v_mov_b32 v%d, s78' % (vS + 11))
        a('v_mov_b32 v%d, s%d' % (vS + 12, sCnt))
        a('v_mov_b32 v%d, s%d' % (vS + 13, sT2))
        a('v_mov_b32 v%d, s%d' % (vS + 14, sMode))
        a('v_mov_b32 v%d, s15' % (vS + 15))
        a('s_lshl_b32 s%d, s2, 2' % sT1)
        a('s_add_u32 s%d, s%d, s%d' % (sT1, sT1, sW))
        a('s_lshl_b32 s%d, s%d, 6' % (sT1, sT1))
        a('s_add_u32 s%d, s%d, 0x%x' % (sT1, sT1, WS_STAMP))
        for i in range(4):
            a('buffer_store_dwordx4 %s, off, %s, s%d offset:%d' % (vr(vS + 4 * i, 4), sr(rWS, 4), sT1, 16 * i))
    a('s_endpgm')
    a.label('L_qretry')
    a.cond += 1
    a('s_mov_b32 s%d, 0' % sCnt)
    a.label('L_qr')
    q_loads()
    a('s_waitcnt vmcnt(0)')
    q_check()
    a('s_cbranch_vccz L_qok')
    a('s_add_u32 s%d, s%d, 1' % (sCnt, sCnt))
    a('s_cmp_lt_u32 s%d, %d' % (sCnt, SPIN))
    a('s_cbranch_scc1 L_qr')
    a('s_branch L_qok')
    if clean:
        a.label('L_clean')
        if clean == 1:
            a('buffer_store_dwordx4 %s, v%d, %s, s%d offen sc1' % (vr(GP, 4), vT16, sr(rWS, 4), sPub))
        else:
            a('s_cmp_lg_u32 s%d, 1' % sW)
            a('s_cbranch_scc1 L_fin')
            if clean == 2:
                a('s_cmp_lg_u32 s%d, 0' % sC)
                a('s_cbranch_scc1 L_fin')
            a('buffer_wbl2 sc1')
        a('s_branch L_fin')
    for f in ool:
        f()
    a.label('L_pslow')
    a('buffer_store_dwordx4 %s, v%d, %s, s%d offen sc1' % (vr(GP, 4), vT16, sr(rWS, 4), sPub))
    a('s_branch L_pback')
    a.cond -= 1
    a.label('L_codeend')
    a('s_endpgm')
    a.raw('.section .rodata,"a"')
    a.raw('.p2align 6')
    a.raw('.amdhsa_kernel ' + KN)
    for l in ('.amdhsa_next_free_vgpr 512', '.amdhsa_next_free_sgpr 102', '.amdhsa_accum_offset 256',
              '.amdhsa_group_segment_fixed_size 0', '.amdhsa_kernarg_size 104', '.amdhsa_user_sgpr_count 2',
              '.amdhsa_user_sgpr_kernarg_segment_ptr 1', '.amdhsa_system_sgpr_workgroup_id_x 1',
              '.amdhsa_float_denorm_mode_32 3'):
        a.raw('  ' + l)
    a.raw('.end_amdhsa_kernel')
    if verbose:
        print('late', late, 'N', N, 'vgpr', va.next, file=sys.stderr)
    return a.text()


if __name__ == '__main__':
    out = sys.argv[1]
    kw = eval('dict(%s)' % (sys.argv[2] if len(sys.argv) > 2 else ''))
    open(out, 'w').write(gen(verbose=True, **kw))
```
